```python
import torch

def _softmax(x, axis=-1):
    return torch.softmax(x, dim=axis)
def _gelu(x):
    return torch.nn.functional.gelu(x, approximate="tanh")
def _silu(x):
    return torch.nn.functional.silu(x)
def _sigmoid(x):
    return torch.sigmoid(x)
def _layernorm(x, axis=-1, eps=1e-5):
    m = x.mean(dim=axis, keepdim=True)
    v = x.var(dim=axis, keepdim=True, unbiased=False)
    return (x - m) / torch.sqrt(v + eps)
def _scatter_add(tgt, idx, src, axis=0):
    return tgt.clone().index_add_(axis, idx, src)
def _segment_sum(src, seg, n):
    out = torch.zeros((n,) + src.shape[1:], dtype=src.dtype)
    return out.index_add_(0, seg, src)
def _pad(x, pw):
    flat = tuple(v for pair in reversed(pw) for v in pair)
    return torch.nn.functional.pad(x, flat)

kernel_name = 'parallel_sum__linear_kernel_hedgehog__mixer_s_mlp__prompt'

def setup_inputs():

    _w = (lambda a: (lambda t: t.to(torch.bfloat16) if t.is_floating_point() else t)(torch.as_tensor(a)))
    def _A_setup():
        B, S, D, H = 1, 2048, 576, 32
        Dh = D // H
        return {
            "x": _w((lambda *s: torch.randn(*s, dtype=torch.bfloat16) * 0.05)(B, S, D)),
            "wqkv": _w((lambda *s: torch.randn(*s, dtype=torch.bfloat16) * 0.8)(D, 3 * D)),
            "w_phi": _w((lambda *s: torch.randn(*s, dtype=torch.bfloat16) * 0.8)(H, Dh, Dh) * (Dh ** -0.5)),
            "wo": _w((lambda *s: torch.randn(*s, dtype=torch.bfloat16) * 0.1)(D, D)),
        }
    _A_in = _A_setup()

    def _B_setup():
        B, S, D, F = 1, 2048, 576, 4608
        return {
            "x":  _w((lambda *s: torch.randn(*s, dtype=torch.bfloat16) * 0.05)(B, S, D)),
            "w1": _w((lambda *s: torch.randn(*s, dtype=torch.bfloat16) * 3.2)(D, D) * (D ** -0.5)),
            "w2": _w((lambda *s: torch.randn(*s, dtype=torch.bfloat16) * 3.2)(D, D) * (D ** -0.5)),
            "w3": _w((lambda *s: torch.randn(*s, dtype=torch.bfloat16) * 3.2)(D, F) * (D ** -0.5)),
            "w4": _w((lambda *s: torch.randn(*s, dtype=torch.bfloat16) * 3.2)(F, D) * (F ** -0.5)),
        }
    _B_in = _B_setup()

    return {
        "A_x": _A_in["x"],
        "A_wqkv": _A_in["wqkv"],
        "A_w_phi": _A_in["w_phi"],
        "A_wo": _A_in["wo"],
        "B_x": _B_in["x"],
        "B_w1": _B_in["w1"],
        "B_w2": _B_in["w2"],
        "B_w3": _B_in["w3"],
        "B_w4": _B_in["w4"],
    }

def reference(A_x, A_wqkv, A_w_phi, A_wo, B_x, B_w1, B_w2, B_w3, B_w4):
    def _A_ref(x, wqkv, w_phi, wo):
        B, S, D = x.shape
        H = 32; Dh = D // H
        qkv = (lambda x, *d: x.permute(*d))((x @ wqkv).reshape(B, S, 3, H, Dh), 2, 0, 3, 1, 4)
        q, k, v = qkv[0], qkv[1], qkv[2]
        pq = torch.einsum("bhsd,hdf->bhsf", q, w_phi)
        pk = torch.einsum("bhsd,hdf->bhsf", k, w_phi)
        phi_q = torch.concatenate([_softmax(pq, axis=-1), _softmax(-pq, axis=-1)], axis=-1)
        phi_k = torch.concatenate([_softmax(pk, axis=-1), _softmax(-pk, axis=-1)], axis=-1)
        kv = torch.einsum("bhsf,bhsd->bhfd", phi_k, v)
        z  = torch.einsum("bhsf->bhf", phi_k)
        num = torch.einsum("bhqf,bhfd->bhqd", phi_q, kv)
        den = torch.einsum("bhqf,bhf->bhq", phi_q, z)[..., None] + 1e-6
        o = num / den
        return (lambda x, *d: x.permute(*d))(o, 0, 2, 1, 3).reshape(B, S, D) @ wo

    def _B_ref(x, w1, w2, w3, w4):
        B, S, D = x.shape
        h = _gelu(_layernorm(x, axis=-1) @ w1)
        c = D // 4
        g0 = _pad(h[:, :, 0*c:1*c], ((0, 0), (1, 0), (0, 0)))[:, :S, :]
        g1 = _pad(h[:, :, 1*c:2*c], ((0, 0), (0, 1), (0, 0)))[:, 1:, :]
        g2 = _pad(h[:, :, 2*c:3*c], ((0, 0), (2, 0), (0, 0)))[:, :S, :]
        g3 = _pad(h[:, :, 3*c:   ], ((0, 0), (0, 2), (0, 0)))[:, 2:, :]
        hs = torch.concatenate([g0, g1, g2, g3], axis=-1) @ w2
        x1 = x + hs
        h2 = _gelu(_layernorm(x1, axis=-1) @ w3) @ w4
        return x1 + h2

    x = A_x
    xn = _layernorm(x, axis=-1)
    return x + _A_ref(xn, A_wqkv, A_w_phi, A_wo) + _B_ref(xn, B_w1, B_w2, B_w3, B_w4)
```

```python
import re

def v(b, n=1): return f'v{b}' if n == 1 else f'v[{b}:{b+n-1}]'
def s(b, n=1): return f's{b}' if n == 1 else f's[{b}:{b+n-1}]'

_REG = re.compile(r'\b([vs])(?:(\d+)\b|\[(\d+):(\d+)\])')
def regs(tok):
    out = []
    for m in _REG.finditer(tok):
        k = m.group(1)
        if m.group(2) is not None: out.append((k, int(m.group(2))))
        else: out += [(k, i) for i in range(int(m.group(3)), int(m.group(4)) + 1)]
    if re.search(r'\bvcc\b', tok): out.append(('s', 106))
    if re.search(r'\bm0\b', tok): out.append(('s', 124))
    if re.search(r'\bexec\b', tok): out.append(('s', 126))
    return out

TRANS = ('v_exp_f32', 'v_log_f32', 'v_rcp_f32', 'v_rsq_f32', 'v_sqrt_f32')

class Ins:
    def __init__(self, text, tag=None, untracked=False):
        self.text = text; self.tag = tag; self.untracked = untracked
        t = text.split(';')[0].strip()
        self.label = t.endswith(':') or t.startswith('.') or t == ''
        self.op = t.split()[0] if t else ''
        ops = [o.strip() for o in t[len(self.op):].split(',')] if not self.label else []
        self.ops = ops
        op = self.op
        self.kind = 'other'
        self.w = []; self.r = []
        if self.label: return
        R = [regs(o) for o in ops]
        allr = [x for r_ in R for x in r_]
        rest = [x for r_ in R[1:] for x in r_]
        if op.startswith('v_mfma'):
            self.kind = 'mfma'; self.w = R[0]; self.a = R[1]; self.b = R[2]; self.c = R[3]; self.r = rest
        elif op.startswith('v_'):
            self.kind = 'valu'
            if op.startswith(('v_permlane16_swap', 'v_permlane32_swap', 'v_swap_b32')):
                self.w = allr; self.r = allr
            elif op.startswith(('v_fmac', 'v_dot2c')):
                self.w = R[0]; self.r = allr
            else:
                self.w = R[0]; self.r = rest
        elif op.startswith('ds_'):
            self.kind = 'ds'
            if op.startswith(('ds_read', 'ds_bpermute')): self.w = R[0]; self.r = rest
            else: self.r = allr
        elif op.startswith(('buffer_', 'global_')):
            self.kind = 'vm'
            if 'load' in op:
                if re.search(r'\blds\b', t): self.r = allr + [('s', 124)]; self.dma = True
                else: self.w = R[0]; self.r = rest
            elif 'atomic' in op:
                self.r = allr
                if re.search(r'\bsc0\b', t): self.w = R[0]
            else:
                self.r = allr; self.store_data = R[0]
        elif op.startswith('s_'):
            self.kind = 'salu'
            if op.startswith(('s_cmp', 's_bitcmp', 's_waitcnt', 's_nop', 's_barrier', 's_cbranch', 's_branch', 's_endpgm', 's_sleep', 's_setprio')):
                self.r = allr
            else:
                self.w = R[0] if R else []; self.r = rest
            if op.startswith(('s_load', 's_memtime', 's_memrealtime')): self.kind = 'smem'

class Asm:
    def __init__(self):
        self.out = []
        self.hist = []
        self.vmq = []
        self.lgq = []
        self.nlab = 0
        self.count = {}
    def raw(self, text):
        self.out.append(text)
    def _issue(self, text, ins=None, states=1):
        self.out.append('    ' + text)
        self.hist.append((ins, states))
        if len(self.hist) > 40: self.hist = self.hist[-24:]
    def nop(self, n):
        while n > 0:
            k = min(n, 16); self._issue(f's_nop {k-1}', None, k); n -= k
    def label(self, name):
        self.out.append(f'{name}:')
    def newlabel(self, base):
        Asm._lab = getattr(Asm, '_lab', 0) + 1
        return f'L_{base}_{Asm._lab}'
    def _wait(self, vm=None, lg=None):
        parts = []
        if vm is not None and vm < len(self.vmq):
            vm = min(vm, 63); self.vmq = self.vmq[len(self.vmq)-vm:] if vm else []; parts.append(f'vmcnt({vm})')
        if lg is not None and lg < len(self.lgq):
            lg = min(lg, 15); self.lgq = self.lgq[len(self.lgq)-lg:] if lg else []; parts.append(f'lgkmcnt({lg})')
        if parts: self._issue('s_waitcnt ' + ' '.join(parts))
    def wait_vm_tag(self, *tags):
        last = -1
        for i, (_, t) in enumerate(self.vmq):
            if t in tags: last = i
        if last >= 0: self._wait(vm=len(self.vmq) - 1 - last)
    def wait_regs(self, rs):
        need = set(('v', x) for x in rs)
        self._auto_wait(need)
    def wait_all(self, vm=True, lg=True):
        parts = []
        if vm: self.vmq = []; parts.append('vmcnt(0)')
        if lg: self.lgq = []; parts.append('lgkmcnt(0)')
        self._issue('s_waitcnt ' + ' '.join(parts))
    def _auto_wait(self, touched):
        vm = lg = None
        for i, (w, _) in enumerate(self.vmq):
            if w & touched: vm = len(self.vmq) - 1 - i
        for i, (w, _) in enumerate(self.lgq):
            if w & touched: lg = len(self.lgq) - 1 - i
        self._wait(vm, lg)
    def _hazard(self, ins):
        need = 0; dist = 0
        rset = set(ins.r); wset = set(ins.w)
        rv = set(x for x in rset if x[0] == 'v'); wv = set(x for x in wset if x[0] == 'v')
        rs_ = set(x for x in rset if x[0] == 's')
        for p, st in reversed(self.hist):
            if dist >= 12: break
            if p is not None:
                req = 0
                pw = set(p.w); pwv = set(x for x in pw if x[0] == 'v'); pws = pw - pwv
                if p.kind == 'valu':
                    if ins.kind == 'mfma' and pwv & rv: req = max(req, 2)
                    if ins.kind == 'valu':
                        if ins.op.startswith('v_permlane') and pwv & rv: req = max(req, 2)
                        if ('dpp' in ins.text or 'quad_perm' in ins.text or 'row_' in ins.text) and pwv & rv: req = max(req, 2)
                        if ins.op.startswith(('v_readfirstlane', 'v_readlane')) and pwv & rv: req = max(req, 1)
                        if p.op.startswith(TRANS) and pwv & rv: req = max(req, 1)
                        if pws & rs_: req = max(req, 2)
                    if ins.kind == 'vm' and pws & rs_: req = max(req, 5)
                    if ins.kind == 'salu' and pws & rs_: req = max(req, 2)
                    if ins.kind in ('vm', 'ds') and p.op.startswith(TRANS) and pwv & rv: req = max(req, 1)
                elif p.kind == 'mfma':
                    if ins.kind == 'mfma':
                        if pwv & (set(ins.a) | set(ins.b)): req = max(req, 8)
                        c = set(ins.c)
                        if pwv & c and list(p.w) != list(ins.c): req = max(req, 6)
                        if pwv & wv and not (pwv & c): req = max(req, 6)
                    else:
                        if pwv & (rv | wv): req = max(req, 8)
                        if ins.kind == 'valu' and set(p.c) & wv: req = max(req, 3)
                elif p.kind == 'vm' and hasattr(p, 'store_data') and len(p.store_data) >= 3:
                    if set(p.store_data) & wv: req = max(req, 2)
                elif p.kind == 'salu':
                    if ('s', 124) in pws and getattr(ins, 'dma', False): req = max(req, 1)
                need = max(need, req - dist)
            dist += st
        if need > 0: self.nop(need)
    def __call__(self, text, tag=None, untracked=False):
        ins = Ins(text, tag, untracked)
        if ins.label:
            self.out.append(text); return
        self.count[ins.kind] = self.count.get(ins.kind, 0) + 1
        touched = set(x for x in ins.r + ins.w if x[0] == 'v')
        self._auto_wait(touched)
        self._hazard(ins)
        if ins.op == 's_nop':
            self._issue(text, None, int(ins.ops[0]) + 1); return
        self._issue(text, ins)
        if untracked: return
        if ins.kind == 'vm': self.vmq.append((set(ins.w), tag))
        elif ins.kind == 'ds': self.lgq.append((set(ins.w), tag))
    def lines(self, txt):
        for l in txt.strip().split('\n'):
            l = l.strip()
            if l: self(l)
    def fork(self):
        a = Asm(); a.hist = list(self.hist); a.vmq = list(self.vmq); a.lgq = list(self.lgq); return a
    def text(self): return '\n'.join(self.out) + '\n'
```

```python
import sys, math, struct
sys.path.insert(0, 'gen')
from asmlib import Asm, v, s

NAME = 'parallel_sum__linear_kernel_hedgehog__mixer_s_mlp__prompt_kernel'
def f2u(x): return struct.unpack('<I', struct.pack('<f', x))[0]
def hx(x): return f'0x{x & 0xffffffff:08x}'
LOG2E = 1.4426950408889634
C0 = -2.0 * math.sqrt(2.0 / math.pi) * LOG2E
C1 = C0 * 0.044715
POLL_LIMIT = 40000

SX, SQKV, SPHI, SWO, SW1, SW2, SW3, SW4, SOUT, SDBG, SWS = 4, 8, 12, 16, 20, 24, 28, 32, 36, 40, 44
KARG = {SX: (0, 2359296), SQKV: (8, 1990656), SPHI: (16, 20736), SWO: (24, 663552), SW1: (40, 663552), SW2: (48, 663552),
        SW3: (56, 5308416), SW4: (64, 5308416), SOUT: (72, 2359296), SDBG: (80, 256), SWS: (88, 268435456)}
sW, sTG, sXC, sIDX, sMI, sJ, sC, sNONCE = 48, 49, 50, 51, 52, 53, 54, 55
sR0, sR1, sR2, sR3, sR4, sR5 = 56, 57, 58, 59, 60, 61
sCNT = 62
sT0, sT1, sT2, sT3, sT4, sT5 = 64, 65, 66, 67, 68, 69
sM = 70
sSTAMP = 72
def srd(b): return s(b, 4)

WS_EPOCH = 0
MB_H  = 0x1000
MB_X  = MB_H + 128 * 128
MB_K1 = MB_X + 1024 * 128
MB_K2 = MB_K1 + 512 * 128
MB_E  = MB_K2 + 128 * 256
MB_P  = MB_E + 2048 * 128
WS_STAMP = MB_P + 256 * 128
WS_ST = 0x100000
WS_KVF = WS_ST + 128 * 2048
WS_KVP = 0x180000
WS_HS = 0x400000
WS_X1 = WS_HS + 128 * 18432
WS_O  = WS_X1 + 128 * 18432
WS_H  = 0xC00000
WS_P  = WS_H + 512 * 36864
WS_END = WS_P + 256 * 73728
assert WS_STAMP + 2048 * 128 <= WS_ST and WS_KVP + 512 * 3072 <= WS_HS and WS_O + 512 * 5120 <= WS_H

vLANE, vL16 = 255, 254
XB, HOWN, ACC3A, ACCB, RING = 0, 144, 168, 192, 208
vALO, vAHI, vAOD = 232, 233, 234
vDP, vDO = 235, 236
vGC = 237
vPOLL = 245
vTMP = 246
L3A, L3P2, L3P3, LCS, LSC2 = 0, 92160, 129024, 161792, 162816
L3P3L = 88064

class Cfg:
    stamps = False
    no_a = False
cfg = Cfg()
OOL = []

class AddrReg:
    def __init__(self, reg, base=0): self.reg = reg; self.base = base
    def off(self, a, addr):
        d = addr - self.base
        if d < 0 or d > 65535 - 16:
            nb = addr & ~0x3ff
            a(f'v_add_u32 {v(self.reg)}, {hx(nb - self.base)}, {v(self.reg)}')
            self.base = nb; d = addr - nb
        return d
    def copy(self): return AddrReg(self.reg, self.base)

def stamp(a, i):
    if not cfg.stamps: return
    a(f's_memrealtime {s(sM, 2)}')
    a.wait_all(vm=False)
    a(f's_mov_b32 {s(sSTAMP + i)}, {s(sM)}')

def barrier(a): a('s_barrier')
def mfma(a, d, x, y, c, k16=False):
    n = 2 if k16 else 4
    op = 'v_mfma_f32_16x16x16_bf16' if k16 else 'v_mfma_f32_16x16x32_bf16'
    a(f'{op} {v(d,4)}, {v(x,n)}, {v(y,n)}, {"0" if c is None else v(c,4)}')
def tr(a, d, ar, addr):
    o = ar.off(a, addr); a(f'ds_read_b64_tr_b16 {v(d,2)}, {v(ar.reg)} offset:{o}')
def dsr(a, n, d, ar, addr):
    o = ar.off(a, addr); a(f'ds_read_b{32*n} {v(d,n)}, {v(ar.reg)} offset:{o}')
def setexec(a, mask):
    if mask == -1: a('s_mov_b64 exec, -1'); return
    lo, hi = mask & 0xffffffff, mask >> 32
    if lo == 0xffffffff: a(f's_mov_b32 exec_hi, {hx(hi)}'); return
    if hi == 0 and lo < 0x80000000: a(f's_mov_b64 exec, {hx(lo)}'); return
    a(f's_mov_b32 exec_lo, {hx(lo)}'); a(f's_mov_b32 exec_hi, {hx(hi)}')
def dma(a, sr, vaddr, soff, sm0, ldsaddr, goff=0, flags='', tag=None):
    assert ldsaddr >= goff
    a(f's_add_u32 m0, {s(sm0)}, {hx(ldsaddr - goff)}')
    o = f' offset:{goff}' if goff else ''
    a(f'buffer_load_dwordx4 {v(vaddr)}, {srd(sr)}, {s(soff)} offen{o} {flags} lds'.replace('  ', ' '), tag=tag)

def interleave(a, main, side, start=0, every=None):
    n = len(main); m = len(side)
    if every is None: every = max(1, (n - start) // (m + 1)) if m else 1
    k = 0
    for i, f in enumerate(main):
        f()
        if k < m and i >= start and (i - start) % every == every - 1:
            side[k](); k += 1
    while k < m: side[k](); k += 1

def get_nonce_issue(a, vt):
    a(f'v_mov_b32 {v(vt)}, 0')
    a(f'buffer_load_dword {v(vt)}, {v(vt)}, {srd(SDBG)}, 0 offen sc1')
def get_nonce_check(a, vt):
    a(f'v_readfirstlane_b32 {s(sNONCE)}, {v(vt)}')
    a(f's_cmp_eq_u32 {s(sNONCE)}, 0')
    slow, back = a.newlabel('nslow'), a.newlabel('nback')
    a(f's_cbranch_scc1 {slow}')
    a.label(back)
    o = Asm(); o.label(slow)
    o(f's_mov_b32 {s(sCNT)}, 0')
    lp = o.newlabel('nloop'); o.label(lp)
    o(f'v_mov_b32 {v(vt)}, 0')
    o(f'buffer_load_dword {v(vt)}, {v(vt)}, {srd(SDBG)}, 0 offen sc1')
    o(f's_add_u32 {s(sCNT)}, {s(sCNT)}, 1')
    o(f'v_readfirstlane_b32 {s(sNONCE)}, {v(vt)}')
    o(f's_cmp_ge_u32 {s(sCNT)}, {POLL_LIMIT}'); o(f's_cbranch_scc1 {back}')
    o(f's_cmp_eq_u32 {s(sNONCE)}, 0'); o(f's_cbranch_scc1 {lp}')
    o(f's_branch {back}')
    OOL.append(o)

def flag_write(a, vaddr, soff, mask, vt):
    a(f'v_mov_b32 {v(vt)}, {s(sNONCE)}')
    setexec(a, mask)
    a(f'buffer_atomic_swap {v(vt)}, {v(vaddr)}, {srd(SWS)}, {s(soff)} offen')
    setexec(a, -1)
def poll_issue(a, vt, va, soff, mask):
    a(f'v_lshlrev_b32 {v(va)}, 2, {v(vLANE)}')
    a(f'v_mov_b32 {v(vt)}, 0')
    setexec(a, mask)
    a(f'buffer_atomic_add {v(vt)}, {v(va)}, {srd(SWS)}, {s(soff)} offen sc0')
    setexec(a, -1)
def poll_check(a, vt, va, soff, mask):
    a.wait_regs([vt])
    setexec(a, mask)
    a(f'v_cmp_ne_u32 vcc, {s(sNONCE)}, {v(vt)}')
    slow, back = a.newlabel('pslow'), a.newlabel('pback')
    a.nop(1)
    a(f's_cbranch_vccnz {slow}')
    a.label(back)
    setexec(a, -1)
    o = Asm(); o.label(slow)
    o(f's_mov_b32 {s(sCNT)}, 0')
    o(f'v_lshlrev_b32 {v(va)}, 2, {v(vLANE)}')
    lp = o.newlabel('ploop'); o.label(lp)
    o(f'v_mov_b32 {v(vt)}, 0')
    o(f'buffer_atomic_add {v(vt)}, {v(va)}, {srd(SWS)}, {s(soff)} offen sc0')
    o(f's_add_u32 {s(sCNT)}, {s(sCNT)}, 1')
    o(f'v_cmp_ne_u32 vcc, {s(sNONCE)}, {v(vt)}')
    o(f's_cmp_ge_u32 {s(sCNT)}, {POLL_LIMIT}'); o(f's_cbranch_scc1 {back}')
    o(f's_cbranch_vccnz {lp}')
    o(f's_branch {back}')
    OOL.append(o)
def poll(a, vt, va, soff, mask):
    poll_issue(a, vt, va, soff, mask); poll_check(a, vt, va, soff, mask)

def pat_pair(a, d, t0, t1, pitch, natural):
    a(f'v_lshrrev_b32 {v(t0)}, 2, {v(vLANE)}')
    if natural:
        a(f'v_and_b32 {v(t1)}, 12, {v(t0)}'); a(f'v_add_u32 {v(t0)}, {v(t0)}, {v(t1)}')
    a(f'v_mul_u32_u24 {v(t0)}, {pitch}, {v(t0)}')
    a(f'v_lshrrev_b32 {v(t1)}, 3, {v(vLANE)}'); a(f'v_and_b32 {v(t1)}, 2, {v(t1)}')
    a(f'v_xor_b32 {v(t1)}, {v(t1)}, {v(vLANE)}'); a(f'v_and_b32 {v(t1)}, 3, {v(t1)}')
    a(f'v_lshl_add_u32 {v(d)}, {v(t1)}, 4, {v(t0)}')
def pat_odd(a, d, t0, t1, pitch, natural):
    a(f'v_bfe_u32 {v(t0)}, {v(vLANE)}, 1, 4')
    if natural:
        a(f'v_and_b32 {v(t1)}, 12, {v(t0)}'); a(f'v_add_u32 {v(t0)}, {v(t0)}, {v(t1)}')
    a(f'v_mul_u32_u24 {v(t0)}, {pitch}, {v(t0)}')
    a(f'v_and_b32 {v(t1)}, 1, {v(vLANE)}')
    a(f'v_lshl_add_u32 {v(d)}, {v(t1)}, 4, {v(t0)}')
def pat_x(a, d, t0, t1):
    a(f'v_lshrrev_b32 {v(t0)}, 2, {v(vLANE)}'); a(f'v_mul_u32_u24 {v(t0)}, 1152, {v(t0)}')
    a(f'v_lshrrev_b32 {v(t1)}, 4, {v(vLANE)}'); a(f'v_and_b32 {v(t1)}, 2, {v(t1)}')
    a(f'v_xor_b32 {v(t1)}, {v(t1)}, {v(vLANE)}'); a(f'v_and_b32 {v(t1)}, 3, {v(t1)}')
    a(f'v_lshl_add_u32 {v(d)}, {v(t1)}, 4, {v(t0)}')
def pat_trlo(a, lo, hi, t0):
    a(f'v_lshrrev_b32 {v(t0)}, 2, {v(vLANE)}'); a(f'v_lshlrev_b32 {v(lo)}, 6, {v(t0)}')
    a(f'v_and_b32 {v(t0)}, 3, {v(vLANE)}'); a(f'v_lshl_add_u32 {v(lo)}, {v(t0)}, 3, {v(lo)}')
    a(f'v_and_b32 {v(t0)}, 16, {v(vLANE)}'); a(f'v_lshl_add_u32 {v(lo)}, {v(t0)}, 1, {v(lo)}')
    a(f'v_xor_b32 {v(hi)}, 32, {v(lo)}')
def pat_xread(a, d, t0, t1):
    a(f'v_and_b32 {v(t0)}, 15, {v(vLANE)}'); a(f'v_lshlrev_b32 {v(d)}, 6, {v(t0)}')
    a(f'v_lshrrev_b32 {v(t0)}, 2, {v(vLANE)}'); a(f'v_and_b32 {v(t0)}, 2, {v(t0)}')
    a(f'v_lshrrev_b32 {v(t1)}, 4, {v(vLANE)}'); a(f'v_xor_b32 {v(t0)}, {v(t0)}, {v(t1)}')
    a(f'v_lshl_add_u32 {v(d)}, {v(t0)}, 4, {v(d)}')

def allreduce_g(a, r, t):
    a(f'v_mov_b32 {v(t)}, {v(r)}'); a(f'v_permlane32_swap_b32 {v(r)}, {v(t)}'); a(f'v_add_f32 {v(r)}, {v(r)}, {v(t)}')
    a(f'v_mov_b32 {v(t)}, {v(r)}'); a(f'v_permlane16_swap_b32 {v(r)}, {v(t)}'); a(f'v_add_f32 {v(r)}, {v(r)}, {v(t)}')

def mean_var(a, su, sq, nm, var):
    a(f'v_mul_f32 {v(nm)}, {hx(f2u(-1.0/576))}, {v(su)}')
    a(f'v_mul_f32 {v(var)}, {hx(f2u(1.0/576))}, {v(sq)}')
    a(f'v_fma_f32 {v(var)}, -{v(nm)}, {v(nm)}, {v(var)}')
    a(f'v_max_f32 {v(var)}, 0, {v(var)}')
def gelu_consts(a, rho, c0, c1, ri):
    a(f'v_rcp_f32 {v(ri)}, {v(rho)}')
    a(f'v_mul_f32 {v(c1)}, {v(rho)}, {v(rho)}')
    a(f'v_mul_f32 {v(c0)}, {hx(f2u(C0))}, {v(rho)}')
    a(f'v_mul_f32 {v(c1)}, {hx(f2u(0.044715))}, {v(c1)}')
    a(f'v_mul_f32 {v(c1)}, {v(c1)}, {v(c0)}')

def gelu8(a, items, tmp):
    L = []
    n = len(items)
    E = lambda t: L.append(lambda: a(t))
    for i, (x, cs, k) in enumerate(items): E(f'v_fmac_f32 {v(x)}, {v(k)}, {v(cs)}')
    for i, (x, cs, k) in enumerate(items): E(f'v_mul_f32 {v(tmp+i)}, {v(x)}, {v(x)}')
    for i, (x, cs, k) in enumerate(items): E(f'v_fma_f32 {v(tmp+i)}, {v(tmp+i)}, {v(k+2)}, {v(k+1)}')
    for i, (x, cs, k) in enumerate(items): E(f'v_mul_f32 {v(tmp+i)}, {v(tmp+i)}, {v(x)}')
    for i, (x, cs, k) in enumerate(items): E(f'v_exp_f32 {v(tmp+i)}, {v(tmp+i)}')
    for i, (x, cs, k) in enumerate(items): E(f'v_fma_f32 {v(tmp+i)}, {v(tmp+i)}, {v(k+3)}, {v(k+3)}')
    for i, (x, cs, k) in enumerate(items): E(f'v_rcp_f32 {v(tmp+i)}, {v(tmp+i)}')
    for i, (x, cs, k) in enumerate(items): E(f'v_mul_f32 {v(tmp+i)}, {v(tmp+i)}, {v(x)}')
    return L
def pack(a, dst, src, n):
    return [(lambda i=i: a(f'v_cvt_pk_bf16_f32 {v(dst+i)}, {v(src+2*i)}, {v(src+2*i+1)}')) for i in range(n)]
def run(L):
    for f in L: f()

def diag_select(a, d, g4, t0):
    a(f'v_and_b32 {v(t0)}, 3, {v(vLANE)}')
    a(f'v_mov_b32 {v(d)}, {v(g4)}')
    for r in (1, 2, 3):
        a(f'v_cmp_eq_u32 vcc, {r}, {v(t0)}')
        a(f'v_cndmask_b32 {v(d)}, {v(d)}, {v(g4+r)}, vcc')
DIAG = 0xF0000F0000F0000F

def front_loop(a, reads, mfmas, refill, gtag, first_wait=True):
    if first_wait: a.wait_vm_tag(gtag(0))
    barrier(a)
    run(reads(0))
    for pos in range(18):
        a.wait_all(vm=False)
        side = []
        if pos + 1 < 18:
            if (pos + 1) % 2 == 0:
                G = (pos + 1) // 2
                a.wait_vm_tag(gtag(G)); barrier(a)
                side = reads(pos + 1) + refill(G)
            else:
                side = reads(pos + 1)
        main = mfmas(pos)
        per = -(-len(side) // len(main))
        for f in main:
            f()
            for _ in range(per):
                if side: side.pop(0)()
        run(side)

def w3_dma_list(a):
    L = []
    def init():
        pat_pair(a, vDP, vTMP, vTMP + 1, 9216, False)
        pat_odd(a, vDO, vTMP, vTMP + 1, 9216, False)
        a(f's_mul_i32 {s(sT0)}, {s(sTG)}, {16*9216}')
        a(f's_mul_i32 {s(sT1)}, {s(sJ)}, 1152'); a(f's_add_u32 {s(sT0)}, {s(sT0)}, {s(sT1)}')
        a(f's_lshl_b32 {s(sT1)}, {s(sC)}, 8'); a(f's_add_u32 {s(sT1)}, {s(sT1)}, {s(sT0)}')
        a(f'v_add_u32 {v(vDP)}, {s(sT1)}, {v(vDP)}')
        a(f's_lshl_b32 {s(sT1)}, {s(sC)}, 5'); a(f's_add_u32 {s(sT1)}, {s(sT1)}, {s(sT0)}'); a(f's_add_u32 {s(sT1)}, {s(sT1)}, 1024')
        a(f'v_add_u32 {v(vDO)}, {s(sT1)}, {v(vDO)}')
        a(f's_mul_i32 {s(sR4)}, {s(sTG)}, 2560'); a(f's_lshl_b32 {s(sR5)}, {s(sTG)}, 10')
    L.append(init)
    for h in range(9):
        def fa(h=h):
            a(f's_mov_b32 {s(sT2)}, {h*64*9216}')
            dma(a, SW3, vDP, sT2, sR4, L3A + h*10240, 0, tag='w3')
            dma(a, SW3, vDP, sT2, sR4, L3A + h*10240 + 1024, 64, tag='w3')
        def fo(h=h):
            a(f's_mov_b32 {s(sT2)}, {h*64*9216}')
            setexec(a, 0xffffffff)
            dma(a, SW3, vDO, sT2, sR4, L3A + h*10240 + 2048, 0, tag='w3')
            setexec(a, -1)
        L += [fa, fo]
    for h in range(9):
        def fb(h=h):
            a(f's_mov_b32 {s(sT2)}, {h*64*9216}')
            dma(a, SW3, vDP, sT2, sR5, L3P2 + h*4096, 128, tag='w3')
            if h < 8: dma(a, SW3, vDP, sT2, sR5, L3P3 + h*4096, 192, tag='w3')
        L.append(fb)
    return L

def e2_poll(a):
    a(f's_lshl_b32 {s(sT0)}, {s(sMI)}, 2'); a(f's_lshr_b32 {s(sT1)}, {s(sW)}, 1'); a(f's_add_u32 {s(sT0)}, {s(sT0)}, {s(sT1)}')
    a(f's_lshl_b32 {s(sT0)}, {s(sT0)}, 3'); a(f's_add_u32 {s(sT0)}, {s(sT0)}, {s(sJ)}')
    a(f's_lshl_b32 {s(sT0)}, {s(sT0)}, 2'); a(f's_add_u32 {s(sT0)}, {s(sT0)}, {s(sC)}')
    a(f's_lshl_b32 {s(sT0)}, {s(sT0)}, 7'); a(f's_add_u32 {s(sT3)}, {s(sT0)}, {MB_X}')
    poll(a, vPOLL, vTMP, sT3, 0xF)

STREG = HOWN
def x_loads(a):
    a(f's_lshl_b32 {s(sT0)}, {s(sMI)}, 3'); a(f's_add_u32 {s(sT0)}, {s(sT0)}, {s(sW)}')
    a(f's_mul_i32 {s(sT1)}, {s(sT0)}, {2*18432}'); a(f's_add_u32 {s(sT1)}, {s(sT1)}, {WS_X1}')
    a(f's_add_u32 {s(sT2)}, {s(sT1)}, 18432')
    a(f'v_lshlrev_b32 {v(vTMP)}, 3, {v(vLANE)}')
    for k in range(18):
        if k and k % 4 == 0:
            a(f's_add_u32 {s(sT1)}, {s(sT1)}, 4096'); a(f's_add_u32 {s(sT2)}, {s(sT2)}, 4096')
        for i in range(2):
            r = XB + 8*k + 4*i; so = (sT1, sT2)[i]; o = (k % 4) * 1024
            if k < 16:
                a(f'buffer_load_dwordx4 {v(r,4)}, {v(vL16)}, {srd(SWS)}, {s(so)} offen offset:{o} sc1')
            else:
                a(f'buffer_load_dwordx2 {v(r,2)}, {v(vTMP)}, {srd(SWS)}, {s(so)} offen offset:{o} sc1')
                a(f'buffer_load_dwordx2 {v(r+2,2)}, {v(vTMP)}, {srd(SWS)}, {s(so)} offen offset:{o+512} sc1')
    a(f's_lshl_b32 {s(sT1)}, {s(sT0)}, 12'); a(f's_add_u32 {s(sT1)}, {s(sT1)}, {WS_ST}')
    for n in range(4):
        a(f'buffer_load_dwordx4 {v(STREG+4*n,4)}, {v(vL16)}, {srd(SWS)}, {s(sT1)} offen offset:{n*1024} sc1')

def s3_addr_init(a):
    pat_trlo(a, vALO, vAHI, vTMP + 1)
    a(f'v_lshlrev_b32 {v(vAOD)}, 3, {v(vLANE)}')

def w3frag(k, half, what, p=None):
    rb = 2*k + half
    if what == 'odd': return L3A + rb*2560 + 2048
    if p < 2: return L3A + rb*2560 + p*1024
    if p == 2: return L3P2 + rb*1024
    return L3P3 + rb*1024 if k < 16 else L3P3L + (rb - 32)*1024

def cs_w3(a):
    ones, acc = ACC3A, ACC3A + 4
    lo, hi, od = vTMP + 2, vTMP + 3, vTMP + 4
    pat_trlo(a, lo, hi, vTMP + 1)
    a(f'v_lshlrev_b32 {v(od)}, 3, {v(vLANE)}'); a(f'v_add_u32 {v(od)}, {L3A + 2048}, {v(od)}')
    a(f's_cmp_lt_u32 {s(sTG)}, 2')
    a(f's_cselect_b32 {s(sT0)}, 5, 2'); a(f's_lshl_b32 {s(sT0)}, {s(sT0)}, 9')
    a(f's_lshl_b32 {s(sT1)}, {s(sTG)}, 10')
    a(f's_cmp_eq_u32 {s(sTG)}, 2'); a(f's_cselect_b32 {s(sT1)}, {L3P2}, {s(sT1)}')
    a(f's_cmp_eq_u32 {s(sTG)}, 3'); a(f's_cselect_b32 {s(sT1)}, {L3P3}, {s(sT1)}')
    a(f's_cselect_b32 {s(sT2)}, 0, 0x3f803f80')
    a(f's_cselect_b32 {s(sT3)}, 0, {s(sT0)}')
    a(f'v_add_u32 {v(lo)}, {s(sT1)}, {v(lo)}'); a(f'v_add_u32 {v(hi)}, {s(sT1)}, {v(hi)}')
    for r in range(4):
        a(f'v_mov_b32 {v(ones+r)}, 0x3f803f80'); a(f'v_mov_b32 {v(acc+12+r)}, {s(sT2)}')
    def reads(k):
        b = RING + 12*(k & 1)
        for half in range(2):
            a(f'ds_read_b64_tr_b16 {v(b+2*half,2)}, {v(lo)}')
            a(f'ds_read_b64_tr_b16 {v(b+4+2*half,2)}, {v(hi)}')
            a(f'ds_read_b64_tr_b16 {v(b+8+2*half,2)}, {v(od)}')
            st = sT0 if 2*k + half < 31 else sT3
            a(f'v_add_u32 {v(lo)}, {s(st)}, {v(lo)}'); a(f'v_add_u32 {v(hi)}, {s(st)}, {v(hi)}')
            a(f'v_add_u32 {v(od)}, 2560, {v(od)}')
    reads(0)
    for k in range(18):
        if k + 1 < 18: reads(k + 1)
        b = RING + 12*(k & 1)
        bo = ones if k < 16 else acc + 12
        mfma(a, acc, b, bo, None if k == 0 else acc)
        mfma(a, acc+4, b+4, bo, None if k == 0 else acc+4)
        mfma(a, acc+8, b+8, ones, None if k == 0 else acc+8)
    a(f'v_and_b32 {v(lo)}, 48, {v(vLANE)}')
    a(f's_lshl_b32 {s(sT0)}, {s(sTG)}, 7'); a(f's_add_u32 {s(sT0)}, {s(sT0)}, {LCS}')
    a(f'v_add_u32 {v(hi)}, {LCS + 512}, {v(lo)}'); a(f'v_add_u32 {v(lo)}, {s(sT0)}, {v(lo)}')
    setexec(a, 0x0001000100010001)
    a(f'ds_write_b128 {v(lo)}, {v(acc,4)}'); a(f'ds_write_b128 {v(lo)}, {v(acc+4,4)} offset:64')
    a(f'ds_write_b128 {v(hi)}, {v(acc+8,4)}')
    setexec(a, -1)
    a.wait_all(vm=False)

def front_B(a, Y):
    sTT, sG, sQ, sB0 = sR0, sR1, sR2, sR3
    SLOT = 26624
    BF, AF, ACC, CSA, ODD, ODC, ONES = 0, 16, 40, 56, 64, 68, 72
    XN, STT, K0, T8, PK = 76, 88, 96, 104, 112
    aLo, aHi, aOd, aB0, aB1, aH0, aH1 = 200, 201, 202, 203, 204, 205, 206
    dP, dO, dX, t0, t1, t2, vN = 207, 208, 209, 210, 211, 212, 213
    aS0, aS1, aSO, mk0, mk1 = 214, 215, 216, 217, 218
    a(f's_and_b32 {s(sG)}, {s(sIDX)}, 3')
    a(f's_bfe_u32 {s(sT0)}, {s(sIDX)}, 0x20002'); a(f's_lshl_b32 {s(sTT)}, {s(sXC)}, 2'); a(f's_add_u32 {s(sTT)}, {s(sTT)}, {s(sT0)}')
    def ggroup(i, dst):
        if i == 8: a(f's_mov_b32 {s(dst)}, 8'); return
        a(f's_lshl_b32 {s(dst)}, {s(sG)}, 1'); a(f's_add_u32 {s(dst)}, {s(dst)}, {2+i}'); a(f's_and_b32 {s(dst)}, {s(dst)}, 7')
    def wload(sr, slot, tag):
        L = []
        for p in range(4): L.append(lambda p=p: dma(a, sr, dP, sT2, sR4, slot*SLOT + p*1024, 64*p, tag=tag))
        def fo():
            setexec(a, 0xffffffff); dma(a, sr, dO, sT2, sR4, slot*SLOT + 4096, 0, tag=tag); setexec(a, -1)
        return L + [fo]
    def load1(i):
        if not Y:
            def f0(): ggroup(i, sT2); a(f's_mul_i32 {s(sT2)}, {s(sT2)}, {64*1152}')
            return [f0] + wload(SW1, i % 6, ('g', i))
        def fx():
            ggroup(i, sT2); a(f's_lshl_b32 {s(sT2)}, {s(sT2)}, 7')
            dma(a, SX, dX, sT2, sR4, (i % 6)*SLOT + 18432, 0, tag=('g', i))
            dma(a, SX, dX, sT2, sR4, (i % 6)*SLOT + 18432 + 4096, 64, tag=('g', i))
        return [fx]
    def w2init():
        pat_pair(a, dP, t0, t1, 1152, False); pat_odd(a, dO, t0, t1, 1152, False)
        a(f's_mul_i32 {s(sT0)}, {s(sTG)}, {16*1152}')
        a(f's_lshl_b32 {s(sT1)}, {s(sG)}, 8'); a(f's_add_u32 {s(sT1)}, {s(sT1)}, {s(sT0)}'); a(f'v_add_u32 {v(dP)}, {s(sT1)}, {v(dP)}')
        a(f's_lshl_b32 {s(sT1)}, {s(sG)}, 5'); a(f's_add_u32 {s(sT1)}, {s(sT1)}, {s(sT0)}'); a(f's_add_u32 {s(sT1)}, {s(sT1)}, 1024')
        a(f'v_add_u32 {v(dO)}, {s(sT1)}, {v(dO)}')
    def load2(i):
        slot = (i + 3) % 6
        if not Y:
            return [lambda: a(f's_mov_b32 {s(sT2)}, {i*64*1152}')] + wload(SW2, slot, ('h', i))
        def fx():
            a(f's_add_u32 {s(sT2)}, {s(sR5)}, {i*2048}')
            dma(a, SWS, vL16, sT2, sR4, slot*SLOT + 18432, 0, 'sc1', tag=('h', i))
            dma(a, SWS, vL16, sT2, sR4, slot*SLOT + 18432 + 4096, 1024, 'sc1', tag=('h', i))
        return [fx]
    if not Y:
        pat_pair(a, dP, t0, t1, 1152, True); pat_odd(a, dO, t0, t1, 1152, True)
        a(f's_lshr_b32 {s(sT0)}, {s(sTG)}, 1'); a(f's_lshl_b32 {s(sT0)}, {s(sT0)}, 5')
        a(f's_and_b32 {s(sT1)}, {s(sTG)}, 1'); a(f's_lshl_b32 {s(sT1)}, {s(sT1)}, 2'); a(f's_add_u32 {s(sT0)}, {s(sT0)}, {s(sT1)}')
        a(f's_mul_i32 {s(sT0)}, {s(sT0)}, 1152')
        a(f's_mul_i32 {s(sT1)}, {s(sG)}, 288'); a(f's_add_u32 {s(sT0)}, {s(sT0)}, {s(sT1)}')
        a(f's_bitcmp1_b32 {s(sG)}, 0')
        a(f's_cselect_b32 {s(sT1)}, 32, 0'); a(f's_cselect_b32 {s(sT3)}, 0, 256')
        a(f's_add_u32 {s(sT1)}, {s(sT1)}, {s(sT0)}'); a(f's_add_u32 {s(sT3)}, {s(sT3)}, {s(sT0)}')
        a(f'v_add_u32 {v(dP)}, {s(sT1)}, {v(dP)}'); a(f'v_add_u32 {v(dO)}, {s(sT3)}, {v(dO)}')
        a(f's_mul_i32 {s(sR4)}, {s(sTG)}, 4608')
    else:
        pat_x(a, dX, t0, t1)
        a(f's_lshl_b32 {s(sT0)}, {s(sTT)}, 2'); a(f's_add_u32 {s(sT0)}, {s(sT0)}, {s(sTG)}')
        a(f's_mul_i32 {s(sT0)}, {s(sT0)}, 18432')
        a(f'v_add_u32 {v(dX)}, {s(sT0)}, {v(dX)}')
        a(f's_add_u32 {s(sR5)}, {s(sT0)}, {WS_HS}')
        a(f's_lshl_b32 {s(sR4)}, {s(sTG)}, 10')
    a.wait_all(vm=False)
    if Y: nonce_issue(a, 219, 220)
    for i in range(6): run(load1(i))
    if Y: nonce_make(a, 219, 220)
    a(f's_and_b32 {s(sQ)}, {s(sW)}, 1')
    if Y: a(f's_add_u32 {s(sQ)}, {s(sQ)}, 2')
    pat_trlo(a, aLo, aHi, t0)
    a(f's_lshl_b32 {s(sT0)}, {s(sQ)}, 10')
    a(f'v_add_u32 {v(aLo)}, {s(sT0)}, {v(aLo)}'); a(f'v_add_u32 {v(aHi)}, {s(sT0)}, {v(aHi)}')
    a(f'v_lshlrev_b32 {v(aOd)}, 3, {v(vLANE)}')
    pat_xread(a, aB0, t0, t1)
    a(f's_lshl_b32 {s(sT0)}, {s(sTG)}, 10'); a(f'v_add_u32 {v(aB0)}, {s(sT0)}, {v(aB0)}')
    a(f'v_xor_b32 {v(aB1)}, 1024, {v(aB0)}')
    for r in range(4): a(f'v_mov_b32 {v(ONES+r)}, 0x3f803f80')
    RLo, RHi, ROd, RB0, RB1 = (AddrReg(x) for x in (aLo, aHi, aOd, aB0, aB1))
    def areads(pos, slot):
        L = []; b = AF + 12*(pos & 1)
        for half in range(2):
            base = slot*SLOT + (2*(pos & 1) + half)*4608
            L.append(lambda base=base, half=half: tr(a, b + 2*half, RLo, base))
            L.append(lambda base=base, half=half: tr(a, b + 4 + 2*half, RHi, base))
            if not Y: L.append(lambda base=base, half=half: tr(a, b + 8 + 2*half, ROd, base + 4096))
        return L
    def reads1(pos):
        slot = (pos // 2) % 6; xb = slot*SLOT + 18432 + (pos & 1)*4096; b = BF + 8*(pos & 1)
        return [lambda: dsr(a, 4, b, RB0, xb), lambda: dsr(a, 4, b + 4, RB1, xb)] + areads(pos, slot)
    def mf1(pos):
        A_ = AF + 12*(pos & 1); B_ = BF + 8*(pos & 1); z = pos == 0
        M = lambda d, x, y: (lambda: mfma(a, d, x, y, None if z else d))
        L = [M(ACC, A_, B_), M(ACC+4, A_+4, B_), M(ACC+8, A_, B_+4), M(ACC+12, A_+4, B_+4), M(CSA, A_, ONES), M(CSA+4, A_+4, ONES)]
        if not Y: L += [M(ODD, A_+8, B_), M(ODC, A_+8, ONES)]
        else: L += [M(ODD, B_, B_), M(ODC, ONES, B_)]
        return L
    def refill1(G):
        L = []
        if G + 5 < 9: L = load1(G + 5)
        elif not Y:
            if G + 5 == 9: L.append(w2init)
            L += load2(G + 5 - 9)
        if G == 5: L.append(lambda: get_nonce_issue(a, vN))
        return L
    stamp(a, 0)
    front_loop(a, reads1, mf1, refill1, lambda G: ('g', G))
    stamp(a, 1)
    a(f'v_and_b32 {v(t0)}, 15, {v(vLANE)}'); a(f'v_lshlrev_b32 {v(t2)}, 6, {v(t0)}')
    a(f'v_and_b32 {v(t0)}, 8, {v(vLANE)}'); a(f'v_lshl_add_u32 {v(t2)}, {v(t0)}, 2, {v(t2)}')
    a(f'v_lshrrev_b32 {v(t0)}, 4, {v(vLANE)}'); a(f'v_lshl_add_u32 {v(t2)}, {v(t0)}, 3, {v(t2)}')
    a(f's_lshl_b32 {s(sT0)}, {s(sTG)}, 10'); a(f'v_add_u32 {v(t2)}, {s(sT0)}, {v(t2)}')
    a(f's_and_b32 {s(sT0)}, {s(sQ)}, 1'); a(f's_lshl_b32 {s(sT0)}, {s(sT0)}, 12')
    a(f's_add_u32 {s(sT0)}, {s(sT0)}, {((7 if Y else 6) % 6)*SLOT + 18432}')
    a(f'v_add_u32 {v(t0)}, {s(sT0)}, {v(t2)}')
    a(f'ds_read_b64 {v(XN,2)}, {v(t0)}'); a(f'v_xor_b32 {v(t1)}, 32, {v(t0)}'); a(f'ds_read_b64 {v(XN+2,2)}, {v(t1)}')
    a(f'v_xor_b32 {v(t0)}, 1024, {v(t0)}'); a(f'ds_read_b64 {v(XN+4,2)}, {v(t0)}')
    a(f'v_xor_b32 {v(t1)}, 1024, {v(t1)}'); a(f'ds_read_b64 {v(XN+6,2)}, {v(t1)}')
    if not Y:
        a(f's_lshr_b32 {s(sT0)}, {s(sG)}, 1'); a(f's_lshl_b32 {s(sT0)}, {s(sT0)}, 12'); a(f's_add_u32 {s(sT0)}, {s(sT0)}, {2*SLOT + 18432}')
        a(f's_and_b32 {s(sT1)}, {s(sG)}, 1'); a(f's_lshl_b32 {s(sT1)}, {s(sT1)}, 5')
        a(f'v_xor_b32 {v(t2)}, {s(sT1)}, {v(t2)}'); a(f'v_add_u32 {v(t2)}, {s(sT0)}, {v(t2)}')
        a(f'ds_read_b64 {v(XN+8,2)}, {v(t2)}')
    a(f'v_and_b32 {v(t2)}, 15, {v(vLANE)}'); a(f'v_lshlrev_b32 {v(t2)}, 4, {v(t2)}')
    a(f's_lshl_b32 {s(sT0)}, {s(sTG)}, 8'); a(f's_add_u32 {s(sT0)}, {s(sT0)}, {LSC2}'); a(f'v_add_u32 {v(t2)}, {s(sT0)}, {v(t2)}')
    if Y:
        diag_select(a, T8, ODD, t0)
        mean_var(a, ODC, T8, STT, T8+1)
        a(f'v_add_f32 {v(T8+2)}, {hx(f2u(1e-5))}, {v(T8+1)}'); a(f'v_rsq_f32 {v(STT+2)}, {v(T8+2)}')
        a(f'v_mul_f32 {v(T8+1)}, {v(T8+1)}, {v(STT+2)}'); a(f'v_mov_b32 {v(T8+3)}, {hx(f2u(1e-5))}')
        a(f'v_fmac_f32 {v(T8+3)}, {v(T8+1)}, {v(STT+2)}'); a(f'v_rsq_f32 {v(T8+3)}, {v(T8+3)}')
        a(f'v_mul_f32 {v(STT+1)}, {v(T8+3)}, {v(STT+2)}'); a(f'v_mov_b32 {v(STT+3)}, 0')
        setexec(a, DIAG); a(f'ds_write_b128 {v(t2)}, {v(STT,4)}'); setexec(a, -1)
    a(f's_lshr_b32 {s(sT0)}, {s(sG)}, 1'); a(f's_add_u32 {s(sT0)}, {s(sT0)}, 1')
    a(f's_sub_u32 {s(sT1)}, 0, {s(sT0)}'); a(f's_bitcmp1_b32 {s(sG)}, 0'); a(f's_cselect_b32 {s(sT0)}, {s(sT1)}, {s(sT0)}')
    a(f's_lshl_b32 {s(sT1)}, {s(sTT)}, 6'); a(f's_add_u32 {s(sT0)}, {s(sT0)}, {s(sT1)}')
    for i, (ad, mk) in enumerate(((aS0, mk0), (aS1, mk1))):
        a(f's_xor_b32 {s(sT1)}, {s(sTG)}, {i}'); a(f's_lshl_b32 {s(sT1)}, {s(sT1)}, 4'); a(f's_add_u32 {s(sT1)}, {s(sT1)}, {s(sT0)}')
        a(f'v_and_b32 {v(t0)}, 15, {v(vLANE)}'); a(f'v_add_u32 {v(t0)}, {s(sT1)}, {v(t0)}')
        a(f'v_cmp_gt_u32 vcc, 2048, {v(t0)}'); a(f'v_cndmask_b32 {v(mk)}, 0, -1, vcc')
        a(f'v_bfe_u32 {v(t1)}, {v(t0)}, 4, 7'); a(f'v_mul_u32_u24 {v(ad)}, 18432, {v(t1)}')
        a(f'v_and_b32 {v(t0)}, 15, {v(t0)}'); a(f'v_and_or_b32 {v(t0)}, {v(vLANE)}, 48, {v(t0)}')
        if i == 0 and not Y: a(f'v_lshl_add_u32 {v(aSO)}, {v(t0)}, 3, {v(ad)}')
        a(f'v_lshl_add_u32 {v(ad)}, {v(t0)}, 4, {v(ad)}')
    a.wait_all(vm=False); barrier(a)
    a(f'ds_read_b128 {v(STT,4)}, {v(t2)}'); a(f'v_xor_b32 {v(t2)}, 256, {v(t2)}'); a(f'ds_read_b128 {v(STT+4,4)}, {v(t2)}')
    late = load2(5) if not Y else []
    a(f's_mul_i32 {s(sT0)}, {s(sG)}, 9'); a(f's_add_u32 {s(sT0)}, {s(sT0)}, 1'); a(f's_lshr_b32 {s(sT0)}, {s(sT0)}, 1')
    a(f's_add_u32 {s(sT0)}, {s(sT0)}, {s(sQ)}'); a(f's_lshl_b32 {s(sT0)}, {s(sT0)}, 10'); a(f's_add_u32 {s(sT4)}, {s(sT0)}, {WS_HS}')
    a(f's_cmp_lt_u32 {s(sG)}, 2'); a(f's_cselect_b32 {s(sT0)}, 0, {9*1024}'); a(f's_add_u32 {s(sT0)}, {s(sT0)}, {WS_HS + 4*1024}')
    a(f's_and_b32 {s(sT1)}, {s(sG)}, 1'); a(f's_lshl_b32 {s(sT1)}, {s(sT1)}, 9'); a(f's_add_u32 {s(sT5)}, {s(sT0)}, {s(sT1)}')
    for i in range(2):
        a(f'v_mov_b32 {v(K0+4*i)}, {v(STT+4*i)}')
        gelu_consts(a, STT+4*i+1, K0+4*i+1, K0+4*i+2, K0+4*i+3)
    for i, (ad, mk) in enumerate(((aS0, mk0), (aS1, mk1))):
        run(gelu8(a, [(ACC+8*i+r, CSA+r, K0+4*i) for r in range(8)], T8))
        run(pack(a, PK+4*i, T8, 4))
        for r in range(4): a(f'v_and_b32 {v(PK+4*i+r)}, {v(PK+4*i+r)}, {v(mk)}')
        a(f'buffer_store_dwordx4 {v(PK+4*i,4)}, {v(ad)}, {srd(SWS)}, {s(sT4)} offen sc1', tag='st')
    if not Y:
        run(gelu8(a, [(ODD+r, ODC+r, K0) for r in range(4)], T8))
        run(pack(a, PK+8, T8, 2))
        for r in range(2): a(f'v_and_b32 {v(PK+8+r)}, {v(PK+8+r)}, {v(mk0)}')
        a(f'buffer_store_dwordx2 {v(PK+8,2)}, {v(aSO)}, {srd(SWS)}, {s(sT5)} offen sc1', tag='st')
    run(late)
    get_nonce_check(a, vN)
    for i in range(2):
        a(f'v_mul_f32 {v(STT+4*i)}, {v(STT+4*i)}, {v(STT+4*i+2)}')
    def xn_init(dst, src, i, n):
        for r in range(n):
            a(f'v_lshlrev_b32 {v(dst+2*r)}, 16, {v(src+r)}'); a(f'v_and_b32 {v(dst+2*r+1)}, 0xffff0000, {v(src+r)}')
        for r in range(2*n): a(f'v_fma_f32 {v(dst+r)}, {v(dst+r)}, {v(STT+4*i+2)}, {v(STT+4*i)}')
    xn_init(ACC, XN, 0, 4); xn_init(ACC+8, XN+4, 1, 4)
    if not Y: xn_init(ODD, XN+8, 0, 2)
    a(f's_lshl_b32 {s(sT0)}, {s(sTG)}, 10')
    a(f'v_add_u32 {v(aB0)}, {s(sT0)}, {v(vL16)}'); a(f'v_xor_b32 {v(aB1)}, 1024, {v(aB0)}')
    a(f'v_lshlrev_b32 {v(aH0)}, 3, {v(vLANE)}'); a(f'v_add_u32 {v(aH0)}, {s(sT0)}, {v(aH0)}'); a(f'v_xor_b32 {v(aH1)}, 1024, {v(aH0)}')
    RB0, RB1, RH0, RH1 = (AddrReg(x) for x in (aB0, aB1, aH0, aH1))
    if Y:
        a(f's_bitcmp1_b32 {s(sG)}, 0'); a(f's_cselect_b32 {s(sT0)}, 31, 1'); a(f's_cselect_b32 {s(sT1)}, 24, 16')
        a(f's_add_u32 {s(sT0)}, {s(sT0)}, {s(sTT)}'); a(f's_and_b32 {s(sT0)}, {s(sT0)}, 31'); a(f's_lshl_b32 {s(sT0)}, {s(sT0)}, 9')
        a(f's_add_u32 {s(sT0)}, {s(sT0)}, {s(sT1)}'); a(f's_and_b32 {s(sT1)}, {s(sG)}, 2'); a(f's_lshl_b32 {s(sT1)}, {s(sT1)}, 1')
        a(f's_add_u32 {s(sT0)}, {s(sT0)}, {s(sT1)}')
        a(f's_lshl_b32 {s(sT1)}, {s(sTT)}, 9'); a(f's_lshl_b32 {s(sT3)}, {s(sG)}, 2'); a(f's_add_u32 {s(sT1)}, {s(sT1)}, {s(sT3)}')
        a(f'v_mov_b32 {v(t0)}, {s(sT0)}'); a(f'v_mov_b32 {v(t1)}, {s(sT1)}')
        a(f'v_cmp_gt_u32 vcc, 4, {v(vLANE)}'); a(f'v_cndmask_b32 {v(t0)}, {v(t0)}, {v(t1)}, vcc')
        a(f'v_and_b32 {v(t1)}, 3, {v(vLANE)}'); a(f'v_lshl_add_u32 {v(t0)}, {v(t1)}, 7, {v(t0)}')
    a.wait_vm_tag('st');
    stamp(a, 2)
    barrier(a)
    if Y:
        sk = a.newlabel('noflag')
        a(f's_mov_b32 {s(sT3)}, {MB_H}')
        a(f's_cmp_lg_u32 {s(sTG)}, 0'); a(f's_cbranch_scc1 {sk}')
        flag_write(a, t0, sT3, 0xFF, t1); a.vmq.pop()
        a.label(sk)
        a(f's_lshl_b32 {s(sT0)}, {s(sTT)}, 2'); a(f's_add_u32 {s(sT0)}, {s(sT0)}, {s(sG)}'); a(f's_lshl_b32 {s(sT0)}, {s(sT0)}, 7')
        a(f's_add_u32 {s(sT3)}, {s(sT0)}, {MB_H}')
        poll(a, t1, t2, sT3, 0xFF)
        stamp(a, 3)
        for i in range(6): run(load2(i))
    def reads2(pos):
        slot = (pos // 2 + 3) % 6; xb = slot*SLOT + 18432 + (pos & 1)*4096; b = BF + 8*(pos & 1)
        if pos in (4, 13):
            L = [lambda: dsr(a, 2, b, RH0, xb), lambda: dsr(a, 2, b+2, RH0, xb+512), lambda: dsr(a, 2, b+4, RH1, xb), lambda: dsr(a, 2, b+6, RH1, xb+512)]
        else:
            L = [lambda: dsr(a, 4, b, RB0, xb), lambda: dsr(a, 4, b + 4, RB1, xb)]
        return L + areads(pos, slot)
    def mf2(pos):
        A_ = AF + 12*(pos & 1); B_ = BF + 8*(pos & 1)
        M = lambda d, x, y: (lambda: mfma(a, d, x, y, d))
        L = [M(ACC, A_, B_), M(ACC+4, A_+4, B_), M(ACC+8, A_, B_+4), M(ACC+12, A_+4, B_+4)]
        if not Y: L += [M(ODD, A_+8, B_)]
        return L
    front_loop(a, reads2, mf2, lambda G: load2(G + 5) if G + 5 < 9 else [], lambda G: ('h', G))
    stamp(a, 4)
    a(f's_lshl_b32 {s(sT0)}, {s(sTT)}, 2'); a(f's_add_u32 {s(sT0)}, {s(sT0)}, {s(sTG)}')
    a(f's_lshl_b32 {s(sT1)}, {s(sG)}, 2'); a(f's_add_u32 {s(sT1)}, {s(sT1)}, {s(sQ)}'); a(f's_lshl_b32 {s(sT1)}, {s(sT1)}, 10')
    a(f's_add_u32 {s(sT1)}, {s(sT1)}, {WS_X1}')
    for i in range(2):
        run(pack(a, PK+4*i, ACC+8*i, 4))
        a(f's_xor_b32 {s(sT2)}, {s(sT0)}, {i}'); a(f's_mul_i32 {s(sT2)}, {s(sT2)}, 18432'); a(f's_add_u32 {s(sT2)}, {s(sT2)}, {s(sT1)}')
        a(f'buffer_store_dwordx4 {v(PK+4*i,4)}, {v(vL16)}, {srd(SWS)}, {s(sT2)} offen sc1', tag='st')
    if not Y:
        run(pack(a, PK+8, ODD, 2))
        a(f's_mul_i32 {s(sT2)}, {s(sT0)}, 18432'); a(f's_lshl_b32 {s(sT3)}, {s(sG)}, 9'); a(f's_add_u32 {s(sT2)}, {s(sT2)}, {s(sT3)}')
        a(f's_add_u32 {s(sT2)}, {s(sT2)}, {WS_X1 + 16*1024}')
        a(f'v_lshlrev_b32 {v(t0)}, 3, {v(vLANE)}')
        a(f'buffer_store_dwordx2 {v(PK+8,2)}, {v(t0)}, {srd(SWS)}, {s(sT2)} offen sc1', tag='st')
    for i in range(2):
        rs = [ACC+8*i+r for r in range(8)] + ([ODD+r for r in range(4)] if (i == 0 and not Y) else [])
        su, sq = T8 + i, T8 + 2 + i
        a(f'v_add_f32 {v(su)}, {v(rs[0])}, {v(rs[1])}'); a(f'v_mul_f32 {v(sq)}, {v(rs[0])}, {v(rs[0])}')
        a(f'v_fmac_f32 {v(sq)}, {v(rs[1])}, {v(rs[1])}')
        for r in rs[2:]:
            a(f'v_add_f32 {v(su)}, {v(su)}, {v(r)}'); a(f'v_fmac_f32 {v(sq)}, {v(r)}, {v(r)}')
    a(f'v_permlane32_swap_b32 {v(T8)}, {v(T8+1)}'); a(f'v_permlane32_swap_b32 {v(T8+2)}, {v(T8+3)}')
    a(f'v_add_f32 {v(T8)}, {v(T8)}, {v(T8+1)}'); a(f'v_add_f32 {v(T8+2)}, {v(T8+2)}, {v(T8+3)}')
    a(f'v_lshrrev_b32 {v(t0)}, 5, {v(vLANE)}'); a(f'v_xor_b32 {v(t0)}, {s(sT0)}, {v(t0)}'); a(f'v_lshlrev_b32 {v(t0)}, 11, {v(t0)}')
    a(f'v_permlane16_swap_b32 {v(T8)}, {v(T8+2)}')
    a(f'v_and_b32 {v(t1)}, 16, {v(vLANE)}'); a(f'v_lshl_add_u32 {v(t0)}, {v(t1)}, 6, {v(t0)}')
    a(f'v_and_b32 {v(t1)}, 15, {v(vLANE)}'); a(f'v_lshl_add_u32 {v(t0)}, {v(t1)}, 4, {v(t0)}')
    a(f'v_add_f32 {v(T8)}, {v(T8)}, {v(T8+2)}')
    a(f's_lshl_b32 {s(sT1)}, {s(sG)}, 8'); a(f's_lshl_b32 {s(sT2)}, {s(sQ)}, 2'); a(f's_add_u32 {s(sT1)}, {s(sT1)}, {s(sT2)}')
    a(f's_add_u32 {s(sT1)}, {s(sT1)}, {WS_ST}')
    a(f'buffer_store_dword {v(T8)}, {v(t0)}, {srd(SWS)}, {s(sT1)} offen sc1', tag='st')
    w3 = w3_dma_list(a) if Y else []
    if Y: w3.pop(0)()
    a(f'v_lshlrev_b32 {v(t0)}, 7, {v(vLANE)}')
    a(f's_lshl_b32 {s(sT3)}, {s(sTT)}, 12'); a(f's_lshl_b32 {s(sT1)}, {s(sG)}, 2'); a(f's_add_u32 {s(sT3)}, {s(sT3)}, {s(sT1)}')
    a(f's_add_u32 {s(sT3)}, {s(sT3)}, {MB_X}')
    a.wait_vm_tag('st')
    stamp(a, 5)
    barrier(a)
    if not Y:
        sk = a.newlabel('noflag')
        a(f's_cmp_lg_u32 {s(sTG)}, 0'); a(f's_cbranch_scc1 {sk}')
        flag_write(a, t0, sT3, 0xFFFFFFFF, t1); a.vmq.pop()
        a.label(sk)
        e2_poll(a)
        stamp(a, 6)
        x_loads(a)
        s3_addr_init(a)
        barrier(a)
    else:
        run(w3)
        e2_poll(a)
        a.wait_all(lg=False)
        stamp(a, 6)
        barrier(a)
        x_loads(a)
        cs_w3(a)
        s3_addr_init(a)

def nonce_issue(a, vz, ve):
    a(f'v_mov_b32 {v(vz)}, 0')
    a(f'buffer_load_dword {v(ve)}, {v(vz)}, {srd(SWS)}, 0 offen sc1')
def nonce_make(a, vz, ve):
    sk = a.newlabel('nononce')
    a(f's_or_b32 {s(sT0)}, s2, {s(sTG)}'); a(f's_cmp_lg_u32 {s(sT0)}, 0'); a(f's_cbranch_scc1 {sk}')
    o = a.fork()
    o(f'v_readfirstlane_b32 {s(sT0)}, {v(ve)}')
    o(f's_mul_i32 {s(sT0)}, {s(sT0)}, 1664525'); o(f's_add_u32 {s(sT0)}, {s(sT0)}, 1013904223')
    o(f's_cmp_eq_u32 {s(sT0)}, 0'); o(f's_cselect_b32 {s(sT0)}, 1013904223, {s(sT0)}')
    o(f'v_mov_b32 {v(ve)}, {s(sT0)}')
    setexec(o, 1)
    o(f'buffer_store_dword {v(ve)}, {v(vz)}, {srd(SDBG)}, 0 offen sc1')
    o(f'buffer_store_dword {v(ve)}, {v(vz)}, {srd(SWS)}, 0 offen sc1')
    setexec(o, -1)
    a.out += o.out
    a.label(sk)
    a.nop(2)

class Ring:
    def __init__(self, a, nslot=6):
        self.a = a; self.n = nslot
    def prefetch(self, steps, count):
        for i in range(count): self._read(steps, i)
        return count
    def _rd(self, steps, i):
        r = RING + 4*(i % self.n)
        return [(lambda h=h, ar=ar, ad=ad: tr(self.a, r + 2*h, ar, ad)) for h, (ar, ad) in enumerate(steps[i][0])]
    def _read(self, steps, i): run(self._rd(steps, i))
    def block(self, steps, done=0, hooks=None, pd=5):
        hooks = hooks or {}
        nxt = done
        while nxt < min(pd, len(steps)): self._read(steps, nxt); nxt += 1
        for i, (_, mf) in enumerate(steps):
            if i in hooks: hooks[i]()
            rd = []
            if nxt < len(steps) and nxt <= i + pd: rd = self._rd(steps, nxt); nxt += 1
            ms = mf(RING + 4*(i % self.n))
            for m in ms:
                m()
                if rd: rd.pop(0)()
            run(rd)

S4B = []
for p in range(4): S4B.append(HOWN + 8*p)
for n in range(6): S4B.append(XB + 8*n)
for n in range(2): S4B.append(XB + 48 + 8*n)
for n in range(2): S4B.append(XB + 64 + 8*n)
S4B.append(XB + 80)
for n in range(6): S4B.append(XB + 84 + 8*n)
ACC4O, ACC4 = XB + 132, 176
A4CH = {0: 0, 1: 10240, 2: 20480, 3: 30720, 4: 40960, 5: 51200, 6: 61440, 7: 71680, 'x': 81920, 8: 92160, 9: 102400}
B4CH = {0: 112640, 1: 120832, 2: 129024, 3: 137216, 4: 145408, 5: 153600, 'x': 84480, 6: 1024, 7: 9216, 8: 17408, 9: 25600}
def s4_rb(slot, half):
    if slot == 14: return 'x', 0
    sl = slot if slot < 14 else slot - 1
    return sl // 2, 2*(sl % 2) + half

def s34(a, Y):
    R = Ring(a)
    Lo, Hi, Od = AddrReg(vALO), AddrReg(vAHI), AddrReg(vAOD)
    sH, sE, sP = sR0, sR1, sR2
    CS = RING + 16
    a(f's_lshl_b32 {s(sT0)}, {s(sMI)}, 3'); a(f's_add_u32 {s(sT0)}, {s(sT0)}, {s(sJ)}')
    a(f's_lshl_b32 {s(sT1)}, {s(sT0)}, 3'); a(f's_add_u32 {s(sT1)}, {s(sT1)}, {s(sW)}')
    a(f's_mul_i32 {s(sH)}, {s(sT1)}, 36864'); a(f's_add_u32 {s(sH)}, {s(sH)}, {WS_H}')
    a(f's_lshl_b32 {s(sE)}, {s(sT1)}, 9'); a(f's_add_u32 {s(sE)}, {s(sE)}, {MB_E}')
    a(f's_lshl_b32 {s(sT0)}, {s(sMI)}, 2'); a(f's_add_u32 {s(sT0)}, {s(sT0)}, {s(sC)}')
    a(f's_lshl_b32 {s(sR3)}, {s(sT0)}, 3')
    a(f's_add_u32 {s(sT0)}, {s(sR3)}, {s(sW)}'); a(f's_mul_i32 {s(sP)}, {s(sT0)}, 73728')
    a(f's_lshl_b32 {s(sT1)}, {s(sJ)}, 10'); a(f's_add_u32 {s(sP)}, {s(sP)}, {s(sT1)}'); a(f's_add_u32 {s(sP)}, {s(sP)}, {WS_P}')

    def steps3(tiles, acc0, extra=None):
        St = []
        for k in range(18):
            for n, (what, p, eta) in enumerate(tiles):
                ar = Od if what == 'odd' else (Lo, Hi)[eta]
                def mf(fr, k=k, n=n, what=what, eta=eta):
                    L = []
                    for i in range(2):
                        d = acc0(n, i)
                        L.append(lambda d=d, i=i: mfma(a, d, fr, XB + 8*k + 4*i, None if k == 0 else d))
                    if extra and k >= 16: L.append(lambda: mfma(a, extra[0] + 4*eta, fr, extra[1], extra[0] + 4*eta))
                    return L
                St.append(([(ar, w3frag(k, h, what, p)) for h in range(2)], mf))
        return St
    TA = [('odd', None, 0), ('p', 0, 0), ('p', 0, 1), ('p', 1, 0), ('p', 1, 1)]
    accA3 = lambda n, i: ACC3A + 4*i if n == 0 else ACC3A + 8 + 16*((n-1)//2) + 8*i + 4*((n-1) % 2)
    accB3 = lambda n, i: ACCB + 8*i + 4*n
    A3 = steps3(TA, accA3)
    B3a = steps3([('p', 2, 0), ('p', 2, 1)], accB3)
    CS3, ONE3 = 176, 184
    B3b = steps3([('p', 3, 0), ('p', 3, 1)], accB3, extra=(CS3, ONE3))

    def cs_read(dst, tile, n):
        a(f'v_and_b32 {v(vPOLL)}, 48, {v(vLANE)}'); a(f'v_add_u32 {v(vPOLL)}, {LCS}, {v(vPOLL)}')
        for u in range(n): a(f'ds_read_b128 {v(dst+4*u,4)}, {v(vPOLL)} offset:{(tile+u)*64}')
    def hstore(src, kslot_expr_imm, odd=False):
        if odd:
            a(f's_lshl_b32 {s(sT4)}, {s(sC)}, 10'); a(f's_add_u32 {s(sT4)}, {s(sT4)}, 32768')
        else:
            a(f's_lshl_b32 {s(sT4)}, {s(sC)}, 13'); a(f's_add_u32 {s(sT4)}, {s(sT4)}, {kslot_expr_imm}')
        a(f's_add_u32 {s(sT4)}, {s(sT4)}, {s(sH)}')
        a(f'buffer_store_dwordx4 {v(src,4)}, {v(vL16)}, {srd(SWS)}, {s(sT4)} offen sc1', tag='hs')
    def gelu_pair(acc, p, cs, read=True):
        L = []
        if read: L.append(lambda: cs_read(cs, 2*p, 2))
        for i in range(2):
            L += gelu8(a, [(acc + 8*i + r, cs + r, vGC + 4*i) for r in range(8)], vTMP)
            L += pack(a, HOWN + 8*p + 4*i, vTMP, 4)
            L.append(lambda i=i: hstore(HOWN + 8*p + 4*i, p*2048 + i*1024))
        return L
    def stats():
        for n in range(4):
            r = STREG + 4*n
            a(f'v_add_f32 {v(r)}, {v(r)}, {v(r+1)}'); a(f'v_add_f32 {v(r+2)}, {v(r+2)}, {v(r+3)}'); a(f'v_add_f32 {v(r)}, {v(r)}, {v(r+2)}')
        for n in range(4): allreduce_g(a, STREG + 4*n, STREG + 4*n + 1)
        for i in range(2):
            mean_var(a, STREG + 8*i, STREG + 8*i + 4, vGC + 4*i, STREG + 8*i + 1)
            a(f'v_add_f32 {v(STREG+8*i+1)}, {hx(f2u(1e-5))}, {v(STREG+8*i+1)}'); a(f'v_rsq_f32 {v(STREG+8*i+2)}, {v(STREG+8*i+1)}')
            gelu_consts(a, STREG+8*i+2, vGC+4*i+1, vGC+4*i+2, vGC+4*i+3)
    def G3a():
        L = [stats, lambda: cs_read(CS, 8, 1)]
        L += gelu8(a, [(ACC3A + r, CS + (r & 3), vGC + 4*(r >> 2)) for r in range(8)], vTMP)
        L += pack(a, HOWN + 16, vTMP, 4)
        L.append(lambda: hstore(HOWN + 16, 0, odd=True))
        L += gelu_pair(ACC3A + 8, 0, CS) + gelu_pair(ACC3A + 24, 1, CS)
        return L
    def eflag(word):
        a.wait_vm_tag('hs')
        a(f'v_lshlrev_b32 {v(vTMP)}, 7, {v(vLANE)}')
        a(f's_lshl_b32 {s(sT4)}, {s(sC)}, 2'); a(f's_add_u32 {s(sT4)}, {s(sT4)}, {word*4}'); a(f's_add_u32 {s(sT4)}, {s(sT4)}, {s(sE)}')
        flag_write(a, vTMP, sT4, 0xF, vTMP + 1)
    def ebox():
        a(f's_lshl_b32 {s(sT5)}, {s(sC)}, 7'); a(f's_add_u32 {s(sT5)}, {s(sT5)}, {s(sE)}')
    M1 = 0x0F if cfg.no_a else 0x1F
    def w4init():
        pat_pair(a, vDP, vPOLL, vDO, 1152, False)
        a(f'v_bfe_u32 {v(vPOLL)}, {v(vLANE)}, 1, 4'); a(f'v_mul_u32_u24 {v(vPOLL)}, 1152, {v(vPOLL)}')
        a(f'v_and_b32 {v(vDO)}, 1, {v(vLANE)}'); a(f'v_lshl_add_u32 {v(vDO)}, {v(vDO)}, 4, {v(vPOLL)}')
        a(f's_mul_i32 {s(sT0)}, {s(sTG)}, {16*1152}'); a(f's_mul_i32 {s(sT1)}, {s(sJ)}, {576*1152}'); a(f's_add_u32 {s(sT0)}, {s(sT0)}, {s(sT1)}')
        colfix(sT0)
    def colfix(sb):
        a(f's_lshl_b32 {s(sT1)}, {s(sC)}, 8'); a(f's_add_u32 {s(sT1)}, {s(sT1)}, {s(sb)}'); a(f'v_add_u32 {v(vDP)}, {s(sT1)}, {v(vDP)}')
        a(f's_lshl_b32 {s(sT1)}, {s(sC)}, 5'); a(f's_add_u32 {s(sT1)}, {s(sT1)}, {s(sb)}'); a(f's_add_u32 {s(sT1)}, {s(sT1)}, 1024')
        a(f'v_add_u32 {v(vDO)}, {s(sT1)}, {v(vDO)}')
    def woinit(last):
        for d, sh, nb in ((vDP, 2, 2), (vDO, 1, 1)):
            a(f'v_bfe_u32 {v(vPOLL)}, {v(vLANE)}, {sh + 2}, 2')
            a(f'v_mul_u32_u24 {v(d)}, 18, {v(vPOLL)}')
            a(f'v_and_b32 {v(vPOLL)}, 1, {v(vPOLL)}')
            if not last: a(f'v_xor_b32 {v(vPOLL)}, 1, {v(vPOLL)}')
            a(f'v_lshl_add_u32 {v(d)}, {v(vPOLL)}, {4 if last else 1}, {v(d)}')
            a(f'v_bfe_u32 {v(vPOLL)}, {v(vLANE)}, {sh}, 2'); a(f'v_add_u32 {v(d)}, {v(d)}, {v(vPOLL)}')
            a(f'v_mul_u32_u24 {v(d)}, 1152, {v(d)}')
            if nb == 2:
                a(f'v_lshrrev_b32 {v(vPOLL)}, 3, {v(vLANE)}'); a(f'v_and_b32 {v(vPOLL)}, 2, {v(vPOLL)}')
                a(f'v_xor_b32 {v(vPOLL)}, {v(vPOLL)}, {v(vLANE)}'); a(f'v_and_b32 {v(vPOLL)}, 3, {v(vPOLL)}')
            else:
                a(f'v_and_b32 {v(vPOLL)}, 1, {v(vLANE)}')
            a(f'v_lshl_add_u32 {v(d)}, {v(vPOLL)}, 4, {v(d)}')
        a(f's_mul_i32 {s(sT0)}, {s(sJ)}, {72*1152}')
        if not last:
            a(f's_mul_i32 {s(sT1)}, {s(sTG)}, {4*1152}'); a(f's_add_u32 {s(sT0)}, {s(sT0)}, {s(sT1)}')
        colfix(sT0)
    def chrow(ch):
        if ch in (0, 1):
            a(f's_mul_i32 {s(sT2)}, {s(sC)}, {128*1152}')
            if ch: a(f's_add_u32 {s(sT2)}, {s(sT2)}, {64*1152}')
        elif ch == 5: a(f's_mov_b32 {s(sT2)}, {512*1152}')
        elif ch in (6, 'x'): a(f's_mov_b32 {s(sT2)}, 0')
        else:
            u = ch - 2 if ch < 5 else ch - 7
            a(f's_add_u32 {s(sT2)}, {s(sC)}, {u+1}'); a(f's_and_b32 {s(sT2)}, {s(sT2)}, 3'); a(f's_mul_i32 {s(sT2)}, {s(sT2)}, {128*1152}')
            if ch >= 7: a(f's_add_u32 {s(sT2)}, {s(sT2)}, {64*1152}')
    def w4(setA, ch, tag):
        sr = SWO if ch in (6, 'x') else SW4
        base = (A4CH if setA else B4CH)[ch]; g0 = 0 if setA else 128
        def setup():
            chrow(ch)
            if ch == 'x': a(f's_mov_b32 {s(sT3)}, 0')
            else: a(f's_mul_i32 {s(sT3)}, {s(sTG)}, {2560 if setA else 2048}')
        def fp():
            setup()
            if ch == 'x':
                a(f's_lshl_b32 {s(sT0)}, {s(sTG)}, 4'); a(f's_mov_b64 {s(sM,2)}, 0xffff'); a(f's_lshl_b64 exec, {s(sM,2)}, {s(sT0)}')
            dma(a, sr, vDP, sT2, sT3, base, g0, tag=tag); dma(a, sr, vDP, sT2, sT3, base + 1024, g0 + 64, tag=tag)
            if ch == 'x': setexec(a, -1)
        def fo():
            setup()
            if ch == 'x':
                a(f's_lshl_b32 {s(sT0)}, {s(sTG)}, 3'); a(f's_mov_b64 {s(sM,2)}, 0xff'); a(f's_lshl_b64 exec, {s(sM,2)}, {s(sT0)}')
            else: setexec(a, 0xffffffff)
            dma(a, sr, vDO, sT2, sT3, base + 2048, 0, tag=tag)
            setexec(a, -1)
        return [fp, fo] if setA else [fp]
    def p3late():
        a(f's_mov_b32 {s(sT2)}, {8*64*9216}')
        dma(a, SW3, vDP, sT2, sR5, L3P3L, 192, tag='b1')
    wo = lambda setA, tag: [lambda: woinit(False)] + w4(setA, 6, tag)
    wox = lambda setA, tag: [lambda: woinit(True)] + w4(setA, 'x', tag)
    batch1 = [p3late] + wo(True, 'b1') + wox(True, 'b1') + [w4init] + sum((w4(True, ch, 'b1') for ch in (0, 1, 2, 3, 4, 5, 7)), [])
    batch2 = w4(True, 8, 'b2') + w4(True, 9, 'b2') + w4(False, 0, 'b2') + w4(False, 1, 'b2')
    batch3 = sum((w4(False, ch, 'b3') for ch in (2, 3, 4, 5)), []) + wox(False, 'b3')
    batch4 = wo(False, 'b4') + [w4init] + sum((w4(False, ch, 'b4') for ch in (7, 8, 9)), [])
    def hload(slot0, late):
        for u in range(3):
            a(f's_add_u32 {s(sT4)}, {s(sC)}, {u+1}'); a(f's_and_b32 {s(sT4)}, {s(sT4)}, 3'); a(f's_lshl_b32 {s(sT4)}, {s(sT4)}, 13')
            a(f's_add_u32 {s(sT4)}, {s(sT4)}, {s(sH)}')
            if late: a(f's_add_u32 {s(sT4)}, {s(sT4)}, 4096')
            for n in range(4):
                a(f'buffer_load_dwordx4 {v(S4B[slot0 + 2*u] + 4*n, 4)}, {v(vL16)}, {srd(SWS)}, {s(sT4)} offen offset:{n*1024} sc1')
    def early_loads():
        hload(4, False)
        a(f's_add_u32 {s(sT4)}, {s(sH)}, 32768')
        for n in range(4):
            a(f'buffer_load_dwordx4 {v(S4B[10] + 4*n, 4)}, {v(vL16)}, {srd(SWS)}, {s(sT4)} offen offset:{n*1024} sc1')
        if cfg.no_a:
            for r in range(20): a(f'v_mov_b32 {v(S4B[12] + r)}, 0')
        else:
            a(f's_sub_u32 {s(sT4)}, {s(sE)}, {MB_E}'); a(f's_mul_i32 {s(sT4)}, {s(sT4)}, 10'); a(f's_add_u32 {s(sT4)}, {s(sT4)}, {WS_O + 1024}')
            for n in range(5):
                if n == 0:
                    a(f's_sub_u32 {s(sT0)}, {s(sT4)}, 1024')
                    a(f'buffer_load_dwordx4 {v(S4B[12], 4)}, {v(vL16)}, {srd(SWS)}, {s(sT0)} offen sc1')
                else:
                    a(f'buffer_load_dwordx4 {v(S4B[12] + 4*n, 4)}, {v(vL16)}, {srd(SWS)}, {s(sT4)} offen offset:{(n-1)*1024} sc1')
    def oddfix():
        for n in range(2):
            b = S4B[10 + n]
            a(f'v_swap_b32 {v(b+2)}, {v(b+4)}'); a(f'v_swap_b32 {v(b+3)}, {v(b+5)}')
    def steps4(tiles, acc0, setA, slots, first):
        St = []
        for sl in slots:
            for n, (what, p, eta) in enumerate(tiles):
                ar = Od if what == 'odd' else (Lo, Hi)[eta]
                rd = []
                for h in range(1 if sl == 14 else 2):
                    ch, rb = s4_rb(sl, h)
                    if setA: ad = A4CH[ch] + rb*2560 + (2048 if what == 'odd' else p*1024)
                    else: ad = B4CH[ch] + rb*2048 + (p - 2)*1024
                    rd.append((ar, ad))
                def mf(fr, sl=sl, n=n):
                    k16 = sl == 14
                    return [(lambda i=i: mfma(a, acc0(n, i), fr, S4B[sl] + (2 if k16 else 4)*i, None if sl == first else acc0(n, i), k16)) for i in range(2)]
                St.append((rd, mf))
        return St
    accA4 = lambda n, i: ACC4O + 4*i if n == 0 else ACC4 + 16*((n-1)//2) + 8*i + 4*((n-1) % 2)
    A4a = steps4(TA, accA4, True, range(0, 8), 0)
    A4b = steps4(TA, accA4, True, range(8, 21), 0)
    B4a = steps4([('p', 2, 0), ('p', 2, 1)], lambda n, i: ACC4 + 8*i + 4*n, False, range(21), 0)
    B4b = steps4([('p', 3, 0), ('p', 3, 1)], lambda n, i: ACC4 + 16 + 8*i + 4*n, False, range(21), 0)
    def pstore(acc, unit, t):
        run(pack(a, t, acc, 4))
        a(f's_add_u32 {s(sT4)}, {s(sP)}, {unit*8192}')
        a(f'buffer_store_dwordx4 {v(t,4)}, {v(vL16)}, {srd(SWS)}, {s(sT4)} offen sc1', tag='ps')
    def pflag(stage):
        a.wait_vm_tag('ps')
        a(f's_add_u32 {s(sT4)}, {s(sR3)}, {s(sW)}'); a(f's_lshl_b32 {s(sT4)}, {s(sT4)}, 5'); a(f's_add_u32 {s(sT4)}, {s(sT4)}, {s(sJ)}')
        a(f's_lshl_b32 {s(sT4)}, {s(sT4)}, 2'); a(f's_add_u32 {s(sT4)}, {s(sT4)}, {MB_P + stage*32}')
        flag_write(a, vL16, sT4, 1, vPOLL)
    def E4a():
        for u in range(4): pstore(ACC4 + 8*u, u, vTMP + 4*(u & 1))
        pstore(ACC4O, 8, vTMP)
    def b3b_pre():
        cs_read(CS3, 6, 2)
        for r in range(4): a(f'v_mov_b32 {v(ONE3+r)}, 0x3f803f80')
        ebox(); poll_issue(a, ONE3 + 4, ONE3 + 5, sT5, M1)
    def b3b_post():
        ebox(); poll_check(a, ONE3 + 4, ONE3 + 5, sT5, M1)
        early_loads()
    def late():
        ebox(); poll(a, vPOLL, vTMP, sT5, 0xF00); hload(15, True)

    stamp(a, 7)
    if not Y:
        R.block(A3); barrier(a)
        stamp(a, 8)
        n = R.prefetch(B3a, 4); run(G3a()); barrier(a)
        stamp(a, 9)
        R.block(B3a, n, hooks={20: lambda: eflag(0)})
        n = R.prefetch(B3b, 4); run(gelu_pair(ACCB, 2, CS)); barrier(a)
        stamp(a, 10)
        b3b_pre(); R.block(B3b, n); b3b_post()
        n = R.prefetch(A4a, 4); run(gelu_pair(ACCB, 3, CS3, read=False)); barrier(a)
        stamp(a, 11)
        R.block(A4a, n, hooks={20: lambda: eflag(8)})
        n = R.prefetch(A4b, 5); late(); barrier(a)
        stamp(a, 12)
        R.block(A4b, n, hooks={5: oddfix})
        E4a(); pflag(0); barrier(a)
        stamp(a, 13)
    else:
        n = R.prefetch(A3, 5); barrier(a)
        stamp(a, 8)
        R.block(A3, n); barrier(a)
        stamp(a, 9)
        n = R.prefetch(B3a, 4); interleave(a, G3a(), batch1, start=2)
        R.block(B3a, n); eflag(0); a.wait_vm_tag('b1'); barrier(a)
        stamp(a, 10)
        n = R.prefetch(B3b, 4); interleave(a, gelu_pair(ACCB, 2, CS), batch2, start=1)
        b3b_pre(); R.block(B3b, n); a.wait_vm_tag('b2'); barrier(a)
        stamp(a, 11)
        b3b_post()
        n = R.prefetch(A4a, 4); interleave(a, gelu_pair(ACCB, 3, CS3, read=False), batch3)
        R.block(A4a, n, hooks={20: lambda: eflag(8)}); barrier(a)
        stamp(a, 12)
        n = R.prefetch(A4b, 5); late(); run(batch4)
        R.block(A4b, n, hooks={5: oddfix})
        a.wait_vm_tag('b3', 'b4'); barrier(a)
        stamp(a, 13)
        E4a(); pflag(0)
    R.block(B4a)
    n = R.prefetch(B4b, 5)
    pstore(ACC4, 4, vTMP); pstore(ACC4 + 8, 5, vTMP + 4)
    R.block(B4b, n, hooks={24: lambda: pflag(1)})
    pstore(ACC4 + 16, 6, vTMP); pstore(ACC4 + 24, 7, vTMP + 4)
    stamp(a, 14)
    sU = sR0
    def unit_loads(odd):
        a(f's_lshl_b32 {s(sT0)}, {s(sMI)}, 3'); a(f's_add_u32 {s(sT0)}, {s(sT0)}, {s(sJ)}'); a(f's_lshl_b32 {s(sT0)}, {s(sT0)}, 1')
        if not odd:
            a(f's_and_b32 {s(sT1)}, {s(sU)}, 1'); a(f's_add_u32 {s(sT0)}, {s(sT0)}, {s(sT1)}')
        a(f's_mul_i32 {s(sT0)}, {s(sT0)}, 18432')
        if not odd:
            a(f's_lshr_b32 {s(sT1)}, {s(sU)}, 1'); a(f's_lshl_b32 {s(sT2)}, {s(sC)}, 2'); a(f's_add_u32 {s(sT1)}, {s(sT1)}, {s(sT2)}')
            a(f's_lshl_b32 {s(sT2)}, {s(sT1)}, 10'); a(f's_add_u32 {s(sT2)}, {s(sT2)}, {s(sT0)}'); a(f's_add_u32 {s(sT2)}, {s(sT2)}, {WS_X1}')
            a(f'buffer_load_dwordx4 {v(32,4)}, {v(vL16)}, {srd(SWS)}, {s(sT2)} offen sc1')
            a(f's_lshl_b32 {s(sT1)}, {s(sT1)}, 6'); a(f's_add_u32 {s(sR1)}, {s(sT1)}, {s(sT0)}')
        else:
            a(f's_lshl_b32 {s(sT2)}, {s(sC)}, 9'); a(f's_add_u32 {s(sT2)}, {s(sT2)}, {s(sT0)}'); a(f's_add_u32 {s(sT2)}, {s(sT2)}, {WS_X1 + 16384}')
            a(f'v_lshlrev_b32 {v(41)}, 3, {v(vLANE)}')
            a(f'buffer_load_dwordx2 {v(32,2)}, {v(41)}, {srd(SWS)}, {s(sT2)} offen sc1')
            a(f's_add_u32 {s(sT2)}, {s(sT2)}, 18432')
            a(f'buffer_load_dwordx2 {v(34,2)}, {v(41)}, {srd(SWS)}, {s(sT2)} offen sc1')
            a(f's_lshl_b32 {s(sT1)}, {s(sC)}, 5'); a(f's_add_u32 {s(sT1)}, {s(sT1)}, 1024'); a(f's_add_u32 {s(sR1)}, {s(sT1)}, {s(sT0)}')
        dl = 18432 if odd else 32
        a(f'v_and_b32 {v(41)}, 15, {v(vLANE)}'); a(f'v_mul_u32_u24 {v(40)}, 1152, {v(41)}')
        a(f'v_lshrrev_b32 {v(41)}, 4, {v(vLANE)}'); a(f'v_lshl_add_u32 {v(42)}, {v(41)}, 3, {v(40)}')
        a(f'buffer_load_dwordx2 {v(36,2)}, {v(42)}, {srd(SX)}, {s(sR1)} offen')
        a(f's_add_u32 {s(sT2)}, {s(sR1)}, {dl}')
        a(f'buffer_load_dwordx2 {v(38,2)}, {v(42)}, {srd(SX)}, {s(sT2)} offen')
        a(f'v_lshrrev_b32 {v(42)}, 1, {v(41)}'); a(f'v_lshl_add_u32 {v(40)}, {v(42)}, 4, {v(40)}')
        a(f'v_and_b32 {v(41)}, 1, {v(41)}'); a(f'v_mul_u32_u24 {v(41)}, {dl}, {v(41)}'); a(f'v_add_u32 {v(40)}, {v(40)}, {v(41)}')
    def unit_final(stage_expr):
        a(f's_add_u32 {s(sT0)}, {s(sR3)}, {s(sJ)}')
        a(f's_lshl_b32 {s(sT5)}, {s(sT0)}, 7'); a(f's_add_u32 {s(sT5)}, {s(sT5)}, {MB_P}')
        if stage_expr: a(f's_add_u32 {s(sT5)}, {s(sT5)}, {stage_expr}')
        a(f's_mul_i32 {s(sT4)}, {s(sT0)}, 73728'); a(f's_lshl_b32 {s(sT1)}, {s(sU)}, 13'); a(f's_add_u32 {s(sT4)}, {s(sT4)}, {s(sT1)}')
        a(f's_add_u32 {s(sT4)}, {s(sT4)}, {WS_P}'); a(f's_add_u32 {s(sT3)}, {s(sT4)}, 4096')
        poll(a, vPOLL, vTMP, sT5, 0xFF)
        for n in range(8):
            a(f'buffer_load_dwordx4 {v(4*n,4)}, {v(vL16)}, {srd(SWS)}, {s(sT4 if n < 4 else sT3)} offen offset:{(n & 3)*1024} sc1')
        S_ = 44
        for r in range(4):
            a(f'v_lshlrev_b32 {v(S_+2*r)}, 16, {v(32+r)}'); a(f'v_and_b32 {v(S_+2*r+1)}, 0xffff0000, {v(32+r)}')
        for src in [36] + [4*n for n in range(8)]:
            for r in range(4):
                a(f'v_lshlrev_b32 {v(52+r)}, 16, {v(src+r)}'); a(f'v_and_b32 {v(src+r)}, 0xffff0000, {v(src+r)}')
            for r in range(4):
                a(f'v_add_f32 {v(S_+2*r)}, {v(S_+2*r)}, {v(52+r)}'); a(f'v_add_f32 {v(S_+2*r+1)}, {v(S_+2*r+1)}, {v(src+r)}')
        run(pack(a, 56, S_, 4))
        a(f'v_permlane16_swap_b32 {v(56)}, {v(58)}'); a(f'v_permlane16_swap_b32 {v(57)}, {v(59)}')
        a(f'buffer_store_dwordx4 {v(56,4)}, {v(40)}, {srd(SOUT)}, {s(sR1)} offen')
    if Y:
        a(f's_mov_b32 {s(sU)}, {s(sTG)}')
        unit_loads(False); pflag(2); unit_final(None)
    else:
        pflag(2)
        sk = a.newlabel('noodd')
        a(f's_cmp_lg_u32 {s(sTG)}, 0'); a(f's_cbranch_scc1 {sk}')
        a(f's_mov_b32 {s(sU)}, 8'); unit_loads(True); unit_final(None)
        a.label(sk); a.nop(2)
        a(f's_xor_b32 {s(sU)}, {s(sTG)}, 6')
        a(f's_cmp_lt_u32 {s(sTG)}, 2'); a(f's_cselect_b32 {s(sR2)}, 64, 32')
        unit_loads(False); unit_final(s(sR2))
    stamp(a, 15)
    if cfg.stamps:
        a(f'v_mov_b32 {v(0)}, 0')
        for i in range(24):
            a(f'v_mov_b32 {v(1)}, {s(sSTAMP+i)}'); a(f'v_cmp_eq_u32 vcc, {i}, {v(vLANE)}'); a(f'v_cndmask_b32 {v(0)}, {v(0)}, {v(1)}, vcc')
        a(f's_lshl_b32 {s(sT0)}, s2, 3'); a(f's_add_u32 {s(sT0)}, {s(sT0)}, {s(sW)}'); a(f's_lshl_b32 {s(sT0)}, {s(sT0)}, 7')
        a(f's_add_u32 {s(sT0)}, {s(sT0)}, {WS_STAMP}')
        a(f'v_lshlrev_b32 {v(1)}, 2, {v(vLANE)}'); setexec(a, 0xffffffff)
        a(f'buffer_store_dword {v(0)}, {v(1)}, {srd(SWS)}, {s(sT0)} offen')
    a('s_endpgm')

def softmax_unit(a, P, cexp, EP, EN, OUT, T):
    L = []
    E = lambda t: L.append(lambda: a(t))
    mx, mn, s0, s1, s2, s3 = T, T+1, T+2, T+3, T+4, T+5
    E(f'v_max3_f32 {v(mx)}, {v(P)}, {v(P+1)}, {v(P+2)}'); E(f'v_min3_f32 {v(mn)}, {v(P)}, {v(P+1)}, {v(P+2)}')
    for r in range(3, 17, 2):
        E(f'v_max3_f32 {v(mx)}, {v(mx)}, {v(P+r)}, {v(P+r+1)}'); E(f'v_min3_f32 {v(mn)}, {v(mn)}, {v(P+r)}, {v(P+r+1)}')
    E(f'v_max_f32 {v(mx)}, {v(mx)}, {v(P+17)}'); E(f'v_min_f32 {v(mn)}, {v(mn)}, {v(P+17)}')
    E(f'v_mul_f32 {v(mx)}, {v(mx)}, {v(cexp)}'); E(f'v_mul_f32 {v(mn)}, {v(mn)}, {v(cexp)}')
    for r in range(18): E(f'v_fma_f32 {v(EP+r)}, {v(P+r)}, {v(cexp)}, -{v(mx)}')
    for r in range(18):
        E(f'v_exp_f32 {v(EP+r)}, {v(EP+r)}'); E(f'v_fma_f32 {v(EN+r)}, -{v(P+r)}, {v(cexp)}, {v(mn)}')
    for r in range(18):
        E(f'v_exp_f32 {v(EN+r)}, {v(EN+r)}')
        if r == 0: E(f'v_add_f32 {v(s0)}, {v(EP)}, {v(EP+1)}')
        elif r == 1: E(f'v_add_f32 {v(s1)}, {v(EP+2)}, {v(EP+3)}')
        elif r < 16: E(f'v_add_f32 {v((s0, s1)[r & 1])}, {v((s0, s1)[r & 1])}, {v(EP+r+2)}')
        elif r == 16: E(f'v_add_f32 {v(s0)}, {v(s0)}, {v(s1)}')
    E(f'v_rcp_f32 {v(s0)}, {v(s0)}')
    E(f'v_add_f32 {v(s2)}, {v(EN)}, {v(EN+1)}'); E(f'v_add_f32 {v(s3)}, {v(EN+2)}, {v(EN+3)}')
    for r in range(4, 18): E(f'v_add_f32 {v((s2, s3)[r & 1])}, {v((s2, s3)[r & 1])}, {v(EN+r)}')
    E(f'v_add_f32 {v(s2)}, {v(s2)}, {v(s3)}'); E(f'v_rcp_f32 {v(s2)}, {v(s2)}')
    for r in range(18): E(f'v_mul_f32 {v(EP+r)}, {v(EP+r)}, {v(s0)}')
    L += pack(a, OUT, EP, 9)
    for r in range(18): E(f'v_mul_f32 {v(EN+r)}, {v(EN+r)}, {v(s2)}')
    L += pack(a, OUT + 9, EN, 9)
    return L

def front_A_stub(a, Y):
    a.wait_all(vm=False)
    get_nonce_issue(a, 200); get_nonce_check(a, 200)
    if not Y:
        e2_poll(a); x_loads(a); s3_addr_init(a); barrier(a)
    else:
        run(w3_dma_list(a)); e2_poll(a); a.wait_all(lg=False); barrier(a); x_loads(a); cs_w3(a); s3_addr_init(a)

def front_A(a, Y):
    if cfg.no_a: return front_A_stub(a, Y)
    sMT, sHG = sR0, sR1
    LPHI, LST, LCK, SL0, SLOT = 0, 4096, 5120, 24576, 34816
    LPH, LV, LWQ, LCQ = 6144, 142336, 59392, LSC2
    EVEN = 0x0000FFFF0000FFFF
    dX, dW, aA, aB, t0, t1, t2, vN = 224, 225, 228, 229, 230, 231, 232, 233
    if Y: XR, AF, ACC = 0, 144, 184
    else: BF, AF, CF, ACC, CSA, GR, ONES, aC, PH = 0, 16, 56, 80, 120, 132, 148, 234, 152
    a(f's_lshr_b32 {s(sT0)}, {s(sXC)}, 1'); a(f's_lshl_b32 {s(sT0)}, {s(sT0)}, 2'); a(f's_bfe_u32 {s(sT1)}, {s(sIDX)}, 0x20002')
    a(f's_add_u32 {s(sMT)}, {s(sT0)}, {s(sT1)}')
    a(f's_and_b32 {s(sT0)}, {s(sXC)}, 1'); a(f's_lshl_b32 {s(sT0)}, {s(sT0)}, 2'); a(f's_and_b32 {s(sT1)}, {s(sIDX)}, 3')
    a(f's_add_u32 {s(sHG)}, {s(sT0)}, {s(sT1)}')
    pat_x(a, dX, t0, t1)
    a(f's_lshl_b32 {s(sT0)}, {s(sMT)}, 3'); a(f's_add_u32 {s(sT0)}, {s(sT0)}, {s(sW)}'); a(f's_mul_i32 {s(sT0)}, {s(sT0)}, 18432')
    a(f'v_add_u32 {v(dX)}, {s(sT0)}, {v(dX)}')
    a(f's_lshl_b32 {s(sR2)}, {s(sW)}, 10')
    a(f's_mul_i32 {s(sR3)}, {s(sW)}, 2304')
    a(f's_lshr_b32 {s(sT0)}, {s(sTG)}, 1'); a(f's_lshl_b32 {s(sT0)}, {s(sT0)}, 5')
    a(f's_and_b32 {s(sT1)}, {s(sTG)}, 1'); a(f's_lshl_b32 {s(sT1)}, {s(sT1)}, 2'); a(f's_add_u32 {s(sT0)}, {s(sT0)}, {s(sT1)}')
    a(f's_mul_i32 {s(sT0)}, {s(sT0)}, 3456'); a(f's_mul_i32 {s(sT1)}, {s(sHG)}, 144'); a(f's_add_u32 {s(sT0)}, {s(sT0)}, {s(sT1)}')
    for i in range(3):
        a(f'v_add_u32 {v(t0)}, {48*i}, {v(vLANE)}')
        a(f'v_mul_u32_u24 {v(t1)}, 7282, {v(t0)}'); a(f'v_lshrrev_b32 {v(t1)}, 16, {v(t1)}')
        a(f'v_mul_u32_u24 {v(t2)}, 9, {v(t1)}'); a(f'v_sub_u32 {v(t0)}, {v(t0)}, {v(t2)}')
        a(f'v_and_b32 {v(dW+i)}, 9, {v(t1)}')
        a(f'v_and_b32 {v(t2)}, 2, {v(t1)}'); a(f'v_lshl_add_u32 {v(dW+i)}, {v(t2)}, 3, {v(dW+i)}')
        a(f'v_bfe_u32 {v(t2)}, {v(t1)}, 2, 1'); a(f'v_lshl_add_u32 {v(dW+i)}, {v(t2)}, 1, {v(dW+i)}')
        a(f'v_mul_u32_u24 {v(dW+i)}, 3456, {v(dW+i)}'); a(f'v_lshl_add_u32 {v(dW+i)}, {v(t0)}, 4, {v(dW+i)}')
        a(f'v_add_u32 {v(dW+i)}, {s(sT0)}, {v(dW+i)}')
    def wdma(goff, lds, tag):
        a(f's_mov_b32 {s(sT2)}, {goff}')
        setexec(a, (0xffff << 32) | 0xffffffff)
        for i in range(3): dma(a, SQKV, dW + i, sT2, sR3, lds + 768*i, 0, tag=tag)
        setexec(a, -1)
    def load1(G):
        b = SL0 + (G % 4)*SLOT
        def fx():
            a(f's_mov_b32 {s(sT2)}, {G*128}')
            dma(a, SX, dX, sT2, sR2, b + 18432, 0, tag=('g', G)); dma(a, SX, dX, sT2, sR2, b + 18432 + 8192, 64, tag=('g', G))
        return [fx, lambda: wdma(G*64*3456 + (2304 if Y else 1152), b, ('g', G))]
    def loadq(r):
        if r == 4 and Y: return []
        return [lambda: wdma((r*128 + (64 if Y else 0))*3456, LWQ + r*18432, 'wq')]
    a.wait_all(vm=False)
    for G in range(4): run(load1(G))
    a(f'v_bfe_u32 {v(t0)}, {v(vLANE)}, 2, 1'); a(f'v_bfe_u32 {v(t1)}, {v(vLANE)}, 5, 1'); a(f'v_lshl_add_u32 {v(t0)}, {v(t1)}, 1, {v(t0)}')
    a(f'v_bfe_u32 {v(t1)}, {v(vLANE)}, 3, 2'); a(f'v_lshl_add_u32 {v(t0)}, {v(t1)}, 2, {v(t0)}')
    a(f'v_mul_u32_u24 {v(aA)}, 144, {v(t0)}')
    a(f'v_and_b32 {v(t0)}, 1, {v(vLANE)}'); a(f'v_lshl_add_u32 {v(aA)}, {v(t0)}, 5, {v(aA)}')
    a(f'v_bfe_u32 {v(t0)}, {v(vLANE)}, 1, 1'); a(f'v_mul_u32_u24 {v(t0)}, 72, {v(t0)}'); a(f'v_add_u32 {v(aA)}, {v(aA)}, {v(t0)}')
    pat_xread(a, aB, t0, t1)
    a(f's_lshl_b32 {s(sT0)}, {s(sTG)}, 11'); a(f'v_add_u32 {v(aB)}, {s(sT0)}, {v(aB)}')
    RA, RB = AddrReg(aA), AddrReg(aB)
    if not Y:
        a(f's_lshl_b32 {s(sT0)}, {s(sTG)}, 3'); a(f'v_add_u32 {v(aC)}, {s(sT0)}, {v(aA)}')
        a(f's_and_b32 {s(sT0)}, {s(sTG)}, 1'); a(f's_mul_i32 {s(sT0)}, {s(sT0)}, 9216'); a(f's_add_u32 {s(sT0)}, {s(sT0)}, 32')
        a(f'v_add_u32 {v(aC+1)}, {s(sT0)}, {v(aA)}')
        RC0, RC1 = AddrReg(aC), AddrReg(aC + 1)
        for r in range(4): a(f'v_mov_b32 {v(ONES+r)}, 0x3f803f80')
        a(f's_lshl_b32 {s(sT0)}, {s(sTG)}, 6'); a(f's_mul_i32 {s(sT1)}, {s(sHG)}, 2592')
        for i in range(3):
            a(f'v_add_u32 {v(t0)}, {s(sT0)}, {v(vLANE)}')
            if i: a(f'v_add_u32 {v(t0)}, {256*i}, {v(t0)}')
            a(f'v_lshlrev_b32 {v(t1)}, 2, {v(t0)}')
            a(f'buffer_load_dword {v(PH+i)}, {v(t1)}, {srd(SPHI)}, {s(sT1)} offen')
            ad = PH + 3 + i
            a(f'v_mul_u32_u24 {v(t1)}, 7282, {v(t0)}'); a(f'v_lshrrev_b32 {v(t1)}, 16, {v(t1)}')
            a(f'v_mul_u32_u24 {v(t2)}, 9, {v(t1)}'); a(f'v_sub_u32 {v(ad)}, {v(t0)}, {v(t2)}'); a(f'v_lshlrev_b32 {v(ad)}, 2, {v(ad)}')
            a(f'v_mul_u32_u24 {v(t2)}, 3641, {v(t1)}'); a(f'v_lshrrev_b32 {v(t2)}, 16, {v(t2)}')
            a(f'v_mul_u32_u24 {v(t0)}, 18, {v(t2)}'); a(f'v_sub_u32 {v(t1)}, {v(t1)}, {v(t0)}')
            a(f'v_mul_u32_u24 {v(t0)}, 800, {v(t2)}'); a(f'v_add_u32 {v(ad)}, {v(ad)}, {v(t0)}')
            a(f'v_and_b32 {v(t2)}, 1, {v(t2)}'); a(f'v_lshl_add_u32 {v(t1)}, {v(t2)}, 1, {v(t1)}')
            a(f'v_add_u32 {v(t0)}, 16, {v(t1)}'); a(f'v_subrev_u32 {v(t1)}, 2, {v(t1)}'); a(f'v_min_u32 {v(t1)}, {v(t1)}, {v(t0)}')
            a(f'v_mul_u32_u24 {v(t1)}, 40, {v(t1)}'); a(f'v_add_u32 {v(ad)}, {v(ad)}, {v(t1)}')
        a(f's_lshl_b32 {s(sT0)}, {s(sTG)}, 10'); a(f'v_add_u32 {v(t0)}, {s(sT0)}, {v(vL16)}')
        for r in range(4): a(f'v_mov_b32 {v(GR+r)}, 0')
        a(f'ds_write_b128 {v(t0)}, {v(GR,4)}')
        a.wait_all(vm=False)
    def phiwrite():
        a(f'ds_write_b32 {v(PH+3)}, {v(PH)}'); a(f'ds_write_b32 {v(PH+4)}, {v(PH+1)}')
        a(f's_lshl_b32 {s(sT0)}, {s(sTG)}, 6'); a(f'v_add_u32 {v(t0)}, {s(sT0)}, {v(vLANE)}')
        a(f'v_cmp_gt_u32 vcc, 136, {v(t0)}')
        a(f'v_cndmask_b32 {v(PH+5)}, {v(PH+4)}, {v(PH+5)}, vcc'); a(f'v_cndmask_b32 {v(PH+2)}, {v(PH+1)}, {v(PH+2)}, vcc')
        a(f'ds_write_b32 {v(PH+5)}, {v(PH+2)}')
    def reads1(pos):
        b = SL0 + ((pos // 2) % 4)*SLOT
        xb = b + 18432 + (pos & 1)*8192; br = XR + 8*pos if Y else BF + 8*(pos & 1)
        L = [lambda: dsr(a, 4, br, RB, xb), lambda: dsr(a, 4, br + 4, RB, xb + 1024)]
        wb = b + 2*(pos & 1)*2304
        for i in range(5):
            for h in range(2):
                L.append(lambda i=i, h=h: tr(a, AF + 20*(pos & 1) + 4*i + 2*h, RA, wb + (9216 if Y else 0) + h*2304 + 8*i))
        if not Y:
            for n, (ar, o) in enumerate(((RC0, 0), (RC0, 9216), (RC1, 0))):
                for h in range(2):
                    L.append(lambda n=n, ar=ar, o=o, h=h: tr(a, CF + 12*(pos & 1) + 4*n + 2*h, ar, wb + o + h*2304))
        return L
    def mf1(pos):
        z = pos == 0; A_ = AF + 20*(pos & 1); B_ = XR + 8*pos if Y else BF + 8*(pos & 1)
        M = lambda d, x, y: (lambda: mfma(a, d, x, y, None if z else d))
        L = []
        for i in range(5): L += [M(ACC + 4*i, A_ + 4*i, B_), M(ACC + 20 + 4*i, A_ + 4*i, B_ + 4)]
        if not Y:
            L += [M(CSA + 4*n, CF + 12*(pos & 1) + 4*n, ONES) for n in range(3)]
            L += [M(GR, B_, B_), M(GR+4, ONES, B_), M(GR+8, B_+4, B_+4), M(GR+12, ONES, B_+4)]
        return L
    def refill1(G):
        L = []
        if G + 3 < 9: L = load1(G + 3)
        elif G == 6: L = loadq(0)
        elif G == 7: L = loadq(1) + loadq(2)
        else: L = loadq(3) + loadq(4)
        if G == 4 and not Y: L.append(phiwrite)
        if G == 5: L.append(lambda: get_nonce_issue(a, vN))
        return L
    stamp(a, 0)
    front_loop(a, reads1, mf1, refill1, lambda G: ('g', G))
    stamp(a, 1)
    if Y: ST, CSV, T, PKB = 144, 148, 168, 172
    else: ST, CSV, T, PKB = 0, 4, 24, 32
    a(f'v_and_b32 {v(t2)}, 15, {v(vLANE)}'); a(f'v_lshlrev_b32 {v(t2)}, 3, {v(t2)}')
    a(f's_lshl_b32 {s(sT0)}, {s(sTG)}, 8'); a(f's_add_u32 {s(sT0)}, {s(sT0)}, {LST}'); a(f'v_add_u32 {v(t2)}, {s(sT0)}, {v(t2)}')
    a(f'v_and_b32 {v(t1)}, 48, {v(vLANE)}')
    if not Y:
        for i in range(2):
            diag_select(a, T, GR + 8*i, t0)
            mean_var(a, GR + 8*i + 4, T, ST + 2*i, T + 1)
            a(f'v_add_f32 {v(T+1)}, {hx(f2u(1e-5))}, {v(T+1)}'); a(f'v_rsq_f32 {v(ST+2*i+1)}, {v(T+1)}')
        setexec(a, DIAG)
        a(f'ds_write_b64 {v(t2)}, {v(ST,2)}'); a(f'ds_write_b64 {v(t2)}, {v(ST+2,2)} offset:128')
        setexec(a, -1)
        a(f's_lshl_b32 {s(sT0)}, {s(sTG)}, 6'); a(f'v_add_u32 {v(t0)}, {s(sT0)}, {v(t1)}')
        a(f's_and_b32 {s(sT0)}, {s(sTG)}, 1'); a(f's_mul_i32 {s(sT0)}, {s(sT0)}, 320'); a(f'v_add_u32 {v(T)}, {s(sT0)}, {v(t1)}')
        setexec(a, 0x0001000100010001)
        a(f'ds_write_b128 {v(t0)}, {v(CSA,4)} offset:{LCK}'); a(f'ds_write_b128 {v(t0)}, {v(CSA+4,4)} offset:{LCK+320}')
        a(f'ds_write_b128 {v(T)}, {v(CSA+8,4)} offset:{LCK+256}')
        setexec(a, -1)
    a.wait_all(vm=False); barrier(a)
    a(f'ds_read_b64 {v(ST,2)}, {v(t2)}'); a(f'ds_read_b64 {v(ST+2,2)}, {v(t2)} offset:128')
    for i in range(5): a(f'ds_read_b128 {v(CSV+4*i,4)}, {v(t1)} offset:{LCK + (320 if Y else 0) + 64*i}')
    def phi_addr(d):
        a(f'v_bfe_u32 {v(t0)}, {v(vLANE)}, 4, 2'); a(f'v_and_b32 {v(d)}, 3, {v(vLANE)}')
        a(f'v_cmp_eq_u32 vcc, {v(t0)}, {v(d)}'); a(f'v_cndmask_b32 {v(t0)}, 4, {v(t0)}, vcc'); a(f'v_mul_u32_u24 {v(t0)}, 800, {v(t0)}')
        a(f'v_bfe_u32 {v(d)}, {v(vLANE)}, 2, 2'); a(f'v_mul_u32_u24 {v(d)}, 40, {v(d)}'); a(f'v_add_u32 {v(d)}, {v(d)}, {v(t0)}')
    def phi_frags(F, d):
        for i in range(5):
            for n in range(5): a(f'ds_read_b64_tr_b16 {v(F + 10*i + 2*n, 2)}, {v(d)} offset:{LPHI + n*160 + 8*i}')
    def canon(acc, cs, nm, dst, scale=None):
        s_mask = s(sM, 2)
        a(f's_mov_b32 {s(sM)}, 0xffff'); a(f's_mov_b32 {s(sM+1)}, 0xffff')
        for r in range(20): a(f'v_fmac_f32 {v(acc+r)}, {v(nm)}, {v(cs+r)}')
        for r in range(2): a(f'v_cndmask_b32 {v(acc+18+r)}, {v(acc+18+r)}, {v(acc+r)}, {s_mask}')
        if scale is not None:
            for r in range(2, 20): a(f'v_mul_f32 {v(acc+r)}, {v(acc+r)}, {v(scale)}')
        run(pack(a, dst, acc + 2, 9))
    def feature(F, B_, D):
        for n, (fo, bo, k16) in enumerate(((0, 0, False), (4, 4, False), (8, 8, True))):
            for i in range(5): mfma(a, D + 4*i, F + 10*i + fo, B_ + bo, None if n == 0 else D + 4*i, k16)
    def stage_addr(d32, d8, hstride, base32, base8):
        a(f'v_lshrrev_b32 {v(t0)}, 4, {v(vLANE)}'); a(f'v_mul_u32_u24 {v(t0)}, {hstride}, {v(t0)}')
        a(f's_lshl_b32 {s(sT0)}, {s(sTG)}, 5'); a(f'v_and_or_b32 {v(d8)}, {v(vLANE)}, 15, {s(sT0)}')
        a(f'v_lshl_add_u32 {v(d32)}, {v(d8)}, 5, {v(t0)}'); a(f'v_lshl_add_u32 {v(d8)}, {v(d8)}, 3, {v(t0)}')
        a(f'v_add_u32 {v(d32)}, {base32}, {v(d32)}'); a(f'v_add_u32 {v(d8)}, {base8}, {v(d8)}')
    get_nonce_check(a, vN)
    if not Y:
        F, D, EP, OUT = 120, 172, 52, 32
        phi_addr(t2); phi_frags(F, t2)
        for i in range(2):
            canon(ACC + 20*i, CSV, ST + 2*i, PKB + 10*i); a(f'v_mov_b32 {v(PKB + 10*i + 9)}, 0')
            a(f'v_mul_f32 {v(ST+2*i+1)}, {hx(f2u(LOG2E))}, {v(ST+2*i+1)}')
        for i in range(2): feature(F, PKB + 10*i, D + 20*i)
        stage_addr(t1, t2, 9216, LPH, LPH + 8192)
        for i in range(2):
            O_ = (80, 100)[i]
            run(softmax_unit(a, D + 20*i, ST + 2*i + 1, EP, D + 20*i, O_, T))
            for n in range(4): a(f'ds_write_b128 {v(t1)}, {v(O_+4*n,4)} offset:{i*512 + (n >> 1)*4096 + (n & 1)*16}')
            a(f'ds_write_b64 {v(t2)}, {v(O_+16,2)} offset:{i*128}')
        a.wait_vm_tag('wq'); a.wait_all(vm=False);
        stamp(a, 2)
        barrier(a)
        a(f'v_lshlrev_b32 {v(t0)}, 3, {v(vLANE)}'); a(f'v_and_b32 {v(t1)}, 60, {v(vLANE)}'); a(f'v_lshlrev_b32 {v(t1)}, 1, {v(t1)}')
        a(f's_mul_i32 {s(sT0)}, {s(sTG)}, 9216'); a(f's_add_u32 {s(sT0)}, {s(sT0)}, {LPH}')
        a(f's_mul_i32 {s(sT1)}, {s(sTG)}, 5120'); a(f's_add_u32 {s(sT1)}, {s(sT1)}, {LV}')
        p32, p8, w32, w8 = 24, 25, 26, 27
        a(f'v_add_u32 {v(p32)}, {s(sT0)}, {v(t0)}'); a(f'v_add_u32 {v(p8)}, {s(sT0)}, {v(t1)}')
        a(f'v_add_u32 {v(w32)}, {s(sT1)}, {v(t0)}'); a(f'v_add_u32 {v(w8)}, {s(sT1)}, {v(t1)}')
        KF, KA = 32, 112
        for ks in range(4):
            b = KF + 20*ks
            for h in range(2):
                a(f'ds_read_b64_tr_b16 {v(b+12+2*h,2)}, {v(w32)} offset:{ks*1024 + h*512}')
                a(f'ds_read_b64_tr_b16 {v(b+16+2*h,2)}, {v(w8)} offset:{4096 + ks*256 + h*128}')
                a(f'ds_read_b64_tr_b16 {v(b+2*h,2)}, {v(p32)} offset:{ks*1024 + h*512}')
                a(f'ds_read_b64_tr_b16 {v(b+4+2*h,2)}, {v(p32)} offset:{4096 + ks*1024 + h*512}')
                a(f'ds_read_b64_tr_b16 {v(b+8+2*h,2)}, {v(p8)} offset:{8192 + ks*256 + h*128}')
        a(f'v_lshrrev_b32 {v(t0)}, 4, {v(vLANE)}'); a(f'v_mul_u32_u24 {v(t0)}, 320, {v(t0)}')
        a(f'v_and_b32 {v(t1)}, 15, {v(vLANE)}'); a(f'v_lshl_add_u32 {v(t0)}, {v(t1)}, 4, {v(t0)}')
        a(f's_lshl_b32 {s(sR2)}, {s(sHG)}, 2'); a(f's_add_u32 {s(sR2)}, {s(sR2)}, {s(sTG)}')
        a(f's_lshl_b32 {s(sT0)}, {s(sR2)}, 4'); a(f's_add_u32 {s(sT0)}, {s(sT0)}, {s(sMT)}'); a(f's_mul_i32 {s(sT4)}, {s(sT0)}, 3072')
        a(f's_add_u32 {s(sT4)}, {s(sT4)}, {WS_KVP}')
        for ks in range(4):
            b = KF + 20*ks
            for tau in range(3):
                for dl in range(2):
                    d = KA + 8*tau + 4*dl
                    mfma(a, d, b + 4*tau, b + 12 + 4*dl, None if ks == 0 else d)
        for tau, dl, mk in ((0, 0, -1), (1, 0, -1), (2, 0, 0xFFFF), (2, 1, 0xF), (0, 1, 0x000F000F000F000F), (1, 1, None)):
            if mk is not None: setexec(a, mk)
            a(f'buffer_store_dwordx4 {v(KA + 8*tau + 4*dl, 4)}, {v(t0)}, {srd(SWS)}, {s(sT4)} offen offset:{tau*1280 + dl*256} sc1', tag='kp')
        setexec(a, -1)
        RQ0, RQ1 = RC0, RA
        CQ = 140
        for r in range(4): a(f'v_mov_b32 {v(ONES+r)}, 0x3f803f80')
        def qreads(k):
            b = KF + 8*(k % 4)
            for h in range(2):
                tr(a, b + 2*h, RQ0, LWQ + (2*k + h)*2304); tr(a, b + 4 + 2*h, RQ1, LWQ + (2*k + h)*2304 + 32)
        for k in range(3): qreads(k)
        for k in range(18):
            if k + 3 < 18: qreads(k + 3)
            b = KF + 8*(k % 4)
            mfma(a, CQ, b, ONES, None if k == 0 else CQ); mfma(a, CQ + 4, b + 4, ONES, None if k == 0 else CQ + 4)
        a(f'v_and_b32 {v(t1)}, 48, {v(vLANE)}'); a(f'v_add_u32 {v(t1)}, {LCQ}, {v(t1)}')
        a(f's_lshl_b32 {s(sT0)}, {s(sTG)}, 6'); a(f'v_add_u32 {v(t2)}, {s(sT0)}, {v(t1)}')
        setexec(a, 0x0001000100010001)
        a(f'ds_write_b128 {v(t2)}, {v(CQ,4)}'); a(f'ds_write_b128 {v(t1)}, {v(CQ+4,4)} offset:256')
        setexec(a, -1)
        a(f'v_lshlrev_b32 {v(t0)}, 7, {v(vLANE)}')
        a(f's_lshl_b32 {s(sT0)}, {s(sR2)}, 11'); a(f's_add_u32 {s(sT0)}, {s(sT0)}, {MB_K1}')
        a(f's_lshl_b32 {s(sT1)}, {s(sMT)}, 2'); a(f's_add_u32 {s(sT4)}, {s(sT0)}, {s(sT1)}')
        a(f's_lshl_b32 {s(sT1)}, {s(sMT)}, 7'); a(f's_add_u32 {s(sT5)}, {s(sT0)}, {s(sT1)}')
        a.wait_vm_tag('kp')
        flag_write(a, t0, sT4, 0x7FFF, t1)
        a.wait_all(vm=False)
        stamp(a, 3)
        barrier(a)
        sk = a.newlabel('nored')
        a(f's_cmp_eq_u32 {s(sMT)}, 15'); a(f's_cbranch_scc1 {sk}')
        a(f's_mul_i32 {s(sT0)}, {s(sMT)}, 24'); a(f'v_add_u32 {v(t0)}, {s(sT0)}, {v(vLANE)}')
        a(f'v_lshlrev_b32 {v(40)}, 3, {v(t0)}')
        a(f'v_lshrrev_b32 {v(41)}, 1, {v(t0)}'); a(f'v_mul_u32_u24 {v(42)}, 3277, {v(41)}'); a(f'v_lshrrev_b32 {v(42)}, 16, {v(42)}')
        a(f'v_mul_u32_u24 {v(43)}, 20, {v(42)}'); a(f'v_sub_u32 {v(41)}, {v(41)}, {v(43)}')
        a(f'v_lshlrev_b32 {v(41)}, 4, {v(41)}'); a(f'v_and_b32 {v(43)}, 1, {v(t0)}'); a(f'v_lshl_add_u32 {v(41)}, {v(43)}, 2, {v(41)}')
        a(f'v_and_b32 {v(43)}, 1, {v(42)}'); a(f'v_lshl_add_u32 {v(41)}, {v(43)}, 3, {v(41)}')
        a(f'v_lshrrev_b32 {v(42)}, 1, {v(42)}'); a(f'v_mul_u32_u24 {v(42)}, 320, {v(42)}'); a(f'v_add_u32 {v(41)}, {v(41)}, {v(42)}')
        a(f's_mul_i32 {s(sT4)}, {s(sR2)}, {16*3072}'); a(f's_add_u32 {s(sT4)}, {s(sT4)}, {WS_KVP}')
        poll(a, t1, t2, sT5, 0xFFFF)
        stamp(a, 4)
        setexec(a, 0xFFFFFF)
        for m in range(16):
            if m and m % 2 == 0: a(f's_add_u32 {s(sT4)}, {s(sT4)}, 6144')
            a(f'buffer_load_dwordx2 {v(2*m,2)}, {v(40)}, {srd(SWS)}, {s(sT4)} offen offset:{(m & 1)*3072} sc1')
        for m in range(1, 16):
            a(f'v_add_f32 {v(0)}, {v(0)}, {v(2*m)}'); a(f'v_add_f32 {v(1)}, {v(1)}, {v(2*m+1)}')
        a(f'v_cvt_pk_bf16_f32 {v(0)}, {v(0)}, {v(1)}')
        a(f's_lshl_b32 {s(sT4)}, {s(sR2)}, 11'); a(f's_add_u32 {s(sT4)}, {s(sT4)}, {WS_KVF}')
        a(f'buffer_store_dword {v(0)}, {v(41)}, {srd(SWS)}, {s(sT4)} offen sc1', tag='kf')
        setexec(a, -1)
        a(f'v_lshlrev_b32 {v(t0)}, 8, {v(vLANE)}')
        a(f's_lshl_b32 {s(sT0)}, {s(sHG)}, 12'); a(f's_lshl_b32 {s(sT1)}, {s(sTG)}, 4'); a(f's_add_u32 {s(sT1)}, {s(sT1)}, {s(sMT)}')
        a(f's_lshl_b32 {s(sT1)}, {s(sT1)}, 2'); a(f's_add_u32 {s(sT0)}, {s(sT0)}, {s(sT1)}'); a(f's_add_u32 {s(sT4)}, {s(sT0)}, {MB_K2}')
        a.wait_vm_tag('kf')
        flag_write(a, t0, sT4, 0xFFFF, t1)
        a.label(sk); a.nop(2)
        stamp(a, 5)
        e2_poll(a)
        stamp(a, 6)
        x_loads(a)
        barrier(a)
        cs_w3(a)
        s3_addr_init(a)
    else:
        stage_addr(t1, t2, 5120, LV, LV + 4096)
        KN = 234
        for i in range(2):
            canon(ACC + 20*i, CSV, ST + 2*i, PKB, scale=ST + 2*i + 1); a(f'v_mov_b32 {v(PKB + 9)}, 0x3f80')
            for n in range(2): a(f'ds_write_b128 {v(t1)}, {v(PKB+4*n,4)} offset:{i*512 + n*16}')
            a(f'ds_write_b64 {v(t2)}, {v(PKB+8,2)} offset:{i*128}')
            a(f'v_mov_b32 {v(KN+2*i)}, {v(ST+2*i)}'); a(f'v_mul_f32 {v(KN+2*i+1)}, {hx(f2u(LOG2E))}, {v(ST+2*i+1)}')
        a.wait_vm_tag('wq'); a.wait_all(vm=False)
        stamp(a, 2)
        barrier(a)
        def qr(k):
            return [(lambda i=i, h=h: tr(a, AF + 20*(k & 1) + 4*i + 2*h, RA, LWQ + (2*k + h)*2304 + 8*i)) for i in range(5) for h in range(2)]
        run(qr(0))
        for k in range(18):
            side = qr(k + 1) if k + 1 < 18 else []
            a.wait_all(vm=False)
            for f in mf1(k):
                f()
                if side: side.pop(0)()
        F, D, EP, CQ, PB, TT = 0, 52, 92, 112, 132, 152
        phi_addr(t2); phi_frags(F, t2)
        for r in range(4): a(f'v_mov_b32 {v(160+r)}, {v(KN+r)}')
        KN = 160
        a.wait_all(vm=False)
        stamp(a, 3)
        barrier(a)
        a(f'v_and_b32 {v(t1)}, 48, {v(vLANE)}'); a(f'v_add_u32 {v(t1)}, {LCQ}, {v(t1)}')
        for i in range(5): a(f'ds_read_b128 {v(CQ+4*i,4)}, {v(t1)} offset:{64*i}')
        w3 = w3_dma_list(a)
        run(w3[:5])
        for i in range(2):
            canon(ACC + 20*i, CQ, KN + 2*i, PB + 10*i); a(f'v_mov_b32 {v(PB + 10*i + 9)}, 0')
        for i in range(2): feature(F, PB + 10*i, D + 20*i)
        PQ = 184
        interleave(a, softmax_unit(a, D, KN + 1, EP, D, PQ, TT) + softmax_unit(a, D + 20, KN + 3, EP, D + 20, PQ + 18, TT), w3[5:])
        KA = 0
        for r in range(90): a(f'v_mov_b32 {v(KA+r)}, 0')
        a(f'v_lshrrev_b32 {v(t0)}, 4, {v(vLANE)}'); a(f'v_lshlrev_b32 {v(t0)}, 11, {v(t0)}')
        a(f'v_and_b32 {v(t1)}, 3, {v(vLANE)}'); a(f'v_lshl_add_u32 {v(t0)}, {v(t1)}, 4, {v(t0)}')
        a(f's_lshl_b32 {s(sT0)}, {s(sHG)}, 4'); a(f's_add_u32 {s(sT0)}, {s(sT0)}, {s(sMT)}'); a(f's_lshl_b32 {s(sT0)}, {s(sT0)}, 8')
        a(f's_add_u32 {s(sT5)}, {s(sT0)}, {MB_K2}')
        a(f's_lshl_b32 {s(sT4)}, {s(sHG)}, 13'); a(f's_add_u32 {s(sT4)}, {s(sT4)}, {WS_KVF}')
        a.wait_vm_tag('w3')
        stamp(a, 4)
        barrier(a)
        poll(a, t1, t2, sT5, 0x7FFF7FFF7FFF7FFF)
        stamp(a, 5)
        setexec(a, DIAG)
        for i in range(5):
            for sx in range(4):
                a(f'buffer_load_dwordx4 {v(KA + 18*i + 4*sx, 4)}, {v(t0)}, {srd(SWS)}, {s(sT4)} offen offset:{sx*320 + i*64} sc1')
            a(f'buffer_load_dwordx2 {v(KA + 18*i + 16, 2)}, {v(t0)}, {srd(SWS)}, {s(sT4)} offen offset:{4*320 + i*64} sc1')
        setexec(a, -1)
        OA, OP = 92, 132
        for i in range(5):
            for sx in range(5):
                for ti in range(2):
                    d = OA + 20*ti + 4*i
                    mfma(a, d, KA + 18*i + 4*sx, PQ + 18*ti + 4*sx, None if sx == 0 else d, sx == 4)
        a(f's_lshr_b32 {s(sT0)}, {s(sMT)}, 1'); a(f's_lshl_b32 {s(sT0)}, {s(sT0)}, 3'); a(f's_add_u32 {s(sT0)}, {s(sT0)}, {s(sHG)}')
        a(f's_lshl_b32 {s(sT0)}, {s(sT0)}, 1'); a(f's_and_b32 {s(sT1)}, {s(sMT)}, 1'); a(f's_add_u32 {s(sT0)}, {s(sT0)}, {s(sT1)}')
        a(f's_lshl_b32 {s(sT0)}, {s(sT0)}, 2'); a(f's_add_u32 {s(sT0)}, {s(sT0)}, {s(sTG)}')
        a(f's_mul_i32 {s(sT4)}, {s(sT0)}, 5120'); a(f's_add_u32 {s(sT4)}, {s(sT4)}, {WS_O}'); a(f's_add_u32 {s(sT5)}, {s(sT4)}, 4096')
        a(f's_lshl_b32 {s(sR2)}, {s(sT0)}, 9'); a(f's_add_u32 {s(sR2)}, {s(sR2)}, {MB_E + 16}')
        for ti in range(2):
            dn = OA + 20*ti + 18
            a(f'v_add_f32 {v(dn)}, {hx(f2u(1e-6))}, {v(dn)}'); a(f'v_rcp_f32 {v(dn)}, {v(dn)}')
        for ti in range(2):
            b = OA + 20*ti
            for r in range(18): a(f'v_mul_f32 {v(b+r)}, {v(b+r)}, {v(b+18)}')
            run(pack(a, OP + 4*ti, b, 4)); run(pack(a, OP + 8 + 4*ti, b + 8, 4)); run(pack(a, OP + 16 + 2*ti, b + 16, 1))
            a(f'v_mov_b32 {v(OP + 17 + 2*ti)}, 0')
        for n in range(5):
            a(f'buffer_store_dwordx4 {v(OP+4*n,4)}, {v(vL16)}, {srd(SWS)}, {s(sT4 if n < 4 else sT5)} offen offset:{(n & 3)*1024} sc1', tag='os')
        e2_poll(a)
        a.wait_vm_tag('os')
        a(f'v_lshlrev_b32 {v(t0)}, 7, {v(vLANE)}')
        flag_write(a, t0, sR2, 0xF, t1)
        stamp(a, 6)
        x_loads(a)
        s3_addr_init(a)

def build():
    global OOL
    OOL.clear()
    ref = open('cdna_kernels/' + NAME[:-7] + '.s.ref').read().split('\n')
    head = [l for l in ref if l.startswith(';') and '@launch' not in l]
    out = head + ['; @launch grid=(256,1,1) block=(512,1,1) lds=163840',
                  '.amdgcn_target "amdgcn-amd-amdhsa--gfx950"', '.text', f'.globl {NAME}', '.p2align 8', f'.type {NAME},@function', f'{NAME}:']
    a = Asm()
    a('s_cmp_ge_u32 s2, 256'); a('s_cbranch_scc0 L_go'); a('s_endpgm'); a.label('L_go')
    for b, (off, sz) in KARG.items(): a(f's_load_dwordx2 {s(b,2)}, s[0:1], {off}')
    a(f'v_lshrrev_b32 v1, 6, v0'); a(f'v_and_b32 {v(vLANE)}, 63, v0')
    a(f'v_readfirstlane_b32 {s(sW)}, v1')
    a(f'v_lshlrev_b32 {v(vL16)}, 4, {v(vLANE)}')
    for b, (off, sz) in KARG.items():
        a(f's_mov_b32 {s(b+2)}, {sz}'); a(f's_mov_b32 {s(b+3)}, 0x20000')
    if cfg.stamps:
        for i in range(24): a(f's_mov_b32 {s(sSTAMP+i)}, 0')
        stamp(a, 16)
    a(f's_and_b32 {s(sTG)}, {s(sW)}, 3')
    a(f's_and_b32 {s(sXC)}, s2, 7'); a(f's_lshr_b32 {s(sIDX)}, s2, 3')
    a(f's_and_b32 {s(sT0)}, {s(sXC)}, 1'); a(f's_lshl_b32 {s(sT0)}, {s(sT0)}, 2'); a(f's_lshr_b32 {s(sT1)}, {s(sIDX)}, 3'); a(f's_add_u32 {s(sMI)}, {s(sT0)}, {s(sT1)}')
    a(f's_and_b32 {s(sT0)}, {s(sXC)}, 6'); a(f's_bfe_u32 {s(sT1)}, {s(sIDX)}, 0x10002'); a(f's_add_u32 {s(sJ)}, {s(sT0)}, {s(sT1)}')
    a(f's_and_b32 {s(sC)}, {s(sIDX)}, 3')
    a(f's_cmp_ge_u32 {s(sIDX)}, 16'); a('s_cbranch_scc1 L_A')
    a(f's_cmp_ge_u32 {s(sW)}, 4'); a('s_cbranch_scc1 L_BY')
    streams = [a]
    bo = Asm(); front_B(bo, False); bo('s_branch L_SO'); streams.append(bo)
    by = Asm(); by.label('L_BY'); front_B(by, True); by('s_branch L_SY'); streams.append(by)
    ah = Asm(); ah.label('L_A'); ah(f's_cmp_ge_u32 {s(sW)}, 4'); ah('s_cbranch_scc1 L_AY'); streams.append(ah)
    ao = Asm(); front_A(ao, False); streams.append(ao)
    d = Asm(); x_loads(d)
    so = Asm(); so.label('L_SO'); so.vmq = list(d.vmq); s34(so, False); streams.append(so)
    ay = Asm(); ay.label('L_AY'); front_A(ay, True); streams.append(ay)
    sy = Asm(); sy.label('L_SY'); sy.vmq = list(d.vmq); s34(sy, True); streams.append(sy)
    streams += OOL
    for st in streams: out += st.out
    out += ['.section .rodata,"a"', '.p2align 6', f'.amdhsa_kernel {NAME}', '  .amdhsa_next_free_vgpr 256', '  .amdhsa_next_free_sgpr 102',
            '  .amdhsa_accum_offset 256', '  .amdhsa_group_segment_fixed_size 0', '  .amdhsa_kernarg_size 96', '  .amdhsa_user_sgpr_count 2',
            '  .amdhsa_user_sgpr_kernarg_segment_ptr 1', '  .amdhsa_system_sgpr_workgroup_id_x 1', '.end_amdhsa_kernel']
    for nm, st in (('BO', bo), ('BY', by), ('AO', ao), ('AY', ay), ('SO', so), ('SY', sy)):
        print(nm, len(st.out), st.count, file=sys.stderr)
    return '\n'.join(out) + '\n'

if __name__ == '__main__':
    import argparse
    ap = argparse.ArgumentParser()
    ap.add_argument('-o', default='k.s'); ap.add_argument('--stamps', action='store_true'); ap.add_argument('--no-a', action='store_true')
    args = ap.parse_args()
    cfg.stamps = args.stamps; cfg.no_a = args.no_a
    open(args.o, 'w').write(build())
```

```python
import sys, math, struct
sys.path.insert(0, 'gen')
from asmlib import Asm, v, s

NAME = 'parallel_sum__linear_kernel_hedgehog__mixer_s_mlp__prompt_kernel'
def f2u(x): return struct.unpack('<I', struct.pack('<f', x))[0]
def hx(x): return f'0x{x & 0xffffffff:08x}'
LOG2E = 1.4426950408889634
C0 = -2.0 * math.sqrt(2.0 / math.pi) * LOG2E
C1 = C0 * 0.044715
POLL_LIMIT = 40000

SX, SQKV, SPHI, SWO, SW1, SW2, SW3, SW4, SOUT, SDBG, SWS = 4, 8, 12, 16, 20, 24, 28, 32, 36, 40, 44
KARG = {SX: (0, 2359296), SQKV: (8, 1990656), SPHI: (16, 20736), SWO: (24, 663552), SW1: (40, 663552), SW2: (48, 663552),
        SW3: (56, 5308416), SW4: (64, 5308416), SOUT: (72, 2359296), SDBG: (80, 256), SWS: (88, 268435456)}
sW, sTG, sXC, sIDX, sMI, sJ, sC, sNONCE = 48, 49, 50, 51, 52, 53, 54, 55
sR0, sR1, sR2, sR3, sR4, sR5 = 56, 57, 58, 59, 60, 61
sCNT = 62
sT0, sT1, sT2, sT3, sT4, sT5 = 64, 65, 66, 67, 68, 69
sM = 70
sSTAMP = 72
def srd(b): return s(b, 4)

WS_EPOCH = 0
MB_H  = 0x1000
MB_X  = MB_H + 128 * 128
MB_K1 = MB_X + 1024 * 128
MB_K2 = MB_K1 + 512 * 128
MB_E  = MB_K2 + 128 * 256
MB_P  = MB_E + 2048 * 128
WS_STAMP = MB_P + 256 * 128
WS_ST = 0x100000
WS_KVF = WS_ST + 128 * 2048
WS_KVP = 0x180000
WS_HS = 0x400000
WS_X1 = WS_HS + 128 * 18432
WS_O  = WS_X1 + 128 * 18432
WS_H  = 0xC00000
WS_P  = WS_H + 512 * 36864
WS_END = WS_P + 256 * 73728
assert WS_STAMP + 2048 * 128 <= WS_ST and WS_KVP + 512 * 3072 <= WS_HS and WS_O + 512 * 5120 <= WS_H

vLANE, vL16 = 255, 254
XB, HOWN, ACC3A, ACCB, RING = 0, 144, 168, 192, 208
vALO, vAHI, vAOD = 232, 233, 234
vDP, vDO = 235, 236
vGC = 237
vPOLL = 245
vTMP = 246
L3A, L3P2, L3P3, LCS, LSC2 = 0, 92160, 129024, 161792, 162816
L3P3L = 88064

class Cfg:
    stamps = False
    no_a = False
    wsbase = 0
cfg = Cfg()
OOL = []

class AddrReg:
    def __init__(self, reg, base=0): self.reg = reg; self.base = base
    def off(self, a, addr):
        d = addr - self.base
        if d < 0 or d > 65535 - 16:
            nb = addr & ~0x3ff
            a(f'v_add_u32 {v(self.reg)}, {hx(nb - self.base)}, {v(self.reg)}')
            self.base = nb; d = addr - nb
        return d
    def copy(self): return AddrReg(self.reg, self.base)

def stamp(a, i):
    if not cfg.stamps: return
    a(f'{"s_memtime" if cfg.stamps == "clk" else "s_memrealtime"} {s(sM, 2)}')
    a.wait_all(vm=False)
    a(f's_mov_b32 {s(sSTAMP + i)}, {s(sM)}')

def kargs_ready(a):
    a.wait_all(vm=False)
    if cfg.wsbase:
        a(f's_add_u32 {s(SWS)}, {s(SWS)}, {hx(cfg.wsbase)}'); a(f's_addc_u32 {s(SWS+1)}, {s(SWS+1)}, 0')
        a(f's_mov_b32 {s(SWS+2)}, {268435456 - cfg.wsbase}')
def barrier(a): a('s_barrier')
def mfma(a, d, x, y, c, k16=False):
    n = 2 if k16 else 4
    op = 'v_mfma_f32_16x16x16_bf16' if k16 else 'v_mfma_f32_16x16x32_bf16'
    a(f'{op} {v(d,4)}, {v(x,n)}, {v(y,n)}, {"0" if c is None else v(c,4)}')
def tr(a, d, ar, addr):
    o = ar.off(a, addr); a(f'ds_read_b64_tr_b16 {v(d,2)}, {v(ar.reg)} offset:{o}')
def dsr(a, n, d, ar, addr):
    o = ar.off(a, addr); a(f'ds_read_b{32*n} {v(d,n)}, {v(ar.reg)} offset:{o}')
def setexec(a, mask):
    if mask == -1: a('s_mov_b64 exec, -1'); return
    lo, hi = mask & 0xffffffff, mask >> 32
    if lo == 0xffffffff: a(f's_mov_b32 exec_hi, {hx(hi)}'); return
    if hi == 0 and lo < 0x80000000: a(f's_mov_b64 exec, {hx(lo)}'); return
    a(f's_mov_b32 exec_lo, {hx(lo)}'); a(f's_mov_b32 exec_hi, {hx(hi)}')
def dma(a, sr, vaddr, soff, sm0, ldsaddr, goff=0, flags='', tag=None):
    assert ldsaddr >= goff
    a(f's_add_u32 m0, {s(sm0)}, {hx(ldsaddr - goff)}')
    o = f' offset:{goff}' if goff else ''
    a(f'buffer_load_dwordx4 {v(vaddr)}, {srd(sr)}, {s(soff)} offen{o} {flags} lds'.replace('  ', ' '), tag=tag)

def interleave(a, main, side, start=0, every=None):
    n = len(main); m = len(side)
    if every is None: every = max(1, (n - start) // (m + 1)) if m else 1
    k = 0
    for i, f in enumerate(main):
        f()
        if k < m and i >= start and (i - start) % every == every - 1:
            side[k](); k += 1
    while k < m: side[k](); k += 1

def get_nonce_issue(a, vt):
    a(f'v_mov_b32 {v(vt)}, 0')
    a(f'buffer_load_dword {v(vt)}, {v(vt)}, {srd(SDBG)}, 0 offen sc1')
def get_nonce_check(a, vt):
    a(f'v_readfirstlane_b32 {s(sNONCE)}, {v(vt)}')
    a(f's_cmp_eq_u32 {s(sNONCE)}, 0')
    slow, back = a.newlabel('nslow'), a.newlabel('nback')
    a(f's_cbranch_scc1 {slow}')
    a.label(back)
    o = Asm(); o.label(slow)
    o(f's_mov_b32 {s(sCNT)}, 0')
    lp = o.newlabel('nloop'); o.label(lp)
    o(f'v_mov_b32 {v(vt)}, 0')
    o(f'buffer_load_dword {v(vt)}, {v(vt)}, {srd(SDBG)}, 0 offen sc1')
    o(f's_add_u32 {s(sCNT)}, {s(sCNT)}, 1')
    o(f'v_readfirstlane_b32 {s(sNONCE)}, {v(vt)}')
    o(f's_cmp_ge_u32 {s(sCNT)}, {POLL_LIMIT}'); o(f's_cbranch_scc1 {back}')
    o(f's_cmp_eq_u32 {s(sNONCE)}, 0'); o(f's_cbranch_scc1 {lp}')
    o(f's_branch {back}')
    OOL.append(o)

def flag_write(a, vaddr, soff, mask, vt):
    a(f'v_mov_b32 {v(vt)}, {s(sNONCE)}')
    setexec(a, mask)
    a(f'buffer_atomic_swap {v(vt)}, {v(vaddr)}, {srd(SWS)}, {s(soff)} offen')
    setexec(a, -1)
def poll_issue(a, vt, va, soff, mask):
    a(f'v_lshlrev_b32 {v(va)}, 2, {v(vLANE)}')
    a(f'v_mov_b32 {v(vt)}, 0')
    setexec(a, mask)
    a(f'buffer_atomic_add {v(vt)}, {v(va)}, {srd(SWS)}, {s(soff)} offen sc0')
    setexec(a, -1)
def poll_check(a, vt, va, soff, mask):
    a.wait_regs([vt])
    setexec(a, mask)
    a(f'v_cmp_ne_u32 vcc, {s(sNONCE)}, {v(vt)}')
    slow, back = a.newlabel('pslow'), a.newlabel('pback')
    a.nop(1)
    a(f's_cbranch_vccnz {slow}')
    a.label(back)
    setexec(a, -1)
    o = Asm(); o.label(slow)
    o(f's_mov_b32 {s(sCNT)}, 0')
    o(f'v_lshlrev_b32 {v(va)}, 2, {v(vLANE)}')
    lp = o.newlabel('ploop'); o.label(lp)
    o(f'v_mov_b32 {v(vt)}, 0')
    o(f'buffer_atomic_add {v(vt)}, {v(va)}, {srd(SWS)}, {s(soff)} offen sc0')
    o(f's_add_u32 {s(sCNT)}, {s(sCNT)}, 1')
    o(f'v_cmp_ne_u32 vcc, {s(sNONCE)}, {v(vt)}')
    o(f's_cmp_ge_u32 {s(sCNT)}, {POLL_LIMIT}'); o(f's_cbranch_scc1 {back}')
    o(f's_cbranch_vccnz {lp}')
    o(f's_branch {back}')
    OOL.append(o)
def poll(a, vt, va, soff, mask):
    poll_issue(a, vt, va, soff, mask); poll_check(a, vt, va, soff, mask)

def pat_pair(a, d, t0, t1, pitch, natural):
    a(f'v_lshrrev_b32 {v(t0)}, 2, {v(vLANE)}')
    if natural:
        a(f'v_and_b32 {v(t1)}, 12, {v(t0)}'); a(f'v_add_u32 {v(t0)}, {v(t0)}, {v(t1)}')
    a(f'v_mul_u32_u24 {v(t0)}, {pitch}, {v(t0)}')
    a(f'v_lshrrev_b32 {v(t1)}, 3, {v(vLANE)}'); a(f'v_and_b32 {v(t1)}, 2, {v(t1)}')
    a(f'v_xor_b32 {v(t1)}, {v(t1)}, {v(vLANE)}'); a(f'v_and_b32 {v(t1)}, 3, {v(t1)}')
    a(f'v_lshl_add_u32 {v(d)}, {v(t1)}, 4, {v(t0)}')
def pat_odd(a, d, t0, t1, pitch, natural):
    a(f'v_bfe_u32 {v(t0)}, {v(vLANE)}, 1, 4')
    if natural:
        a(f'v_and_b32 {v(t1)}, 12, {v(t0)}'); a(f'v_add_u32 {v(t0)}, {v(t0)}, {v(t1)}')
    a(f'v_mul_u32_u24 {v(t0)}, {pitch}, {v(t0)}')
    a(f'v_and_b32 {v(t1)}, 1, {v(vLANE)}')
    a(f'v_lshl_add_u32 {v(d)}, {v(t1)}, 4, {v(t0)}')
def pat_x(a, d, t0, t1):
    a(f'v_lshrrev_b32 {v(t0)}, 2, {v(vLANE)}'); a(f'v_mul_u32_u24 {v(t0)}, 1152, {v(t0)}')
    a(f'v_lshrrev_b32 {v(t1)}, 4, {v(vLANE)}'); a(f'v_and_b32 {v(t1)}, 2, {v(t1)}')
    a(f'v_xor_b32 {v(t1)}, {v(t1)}, {v(vLANE)}'); a(f'v_and_b32 {v(t1)}, 3, {v(t1)}')
    a(f'v_lshl_add_u32 {v(d)}, {v(t1)}, 4, {v(t0)}')
def pat_trlo(a, lo, hi, t0):
    a(f'v_lshrrev_b32 {v(t0)}, 2, {v(vLANE)}'); a(f'v_lshlrev_b32 {v(lo)}, 6, {v(t0)}')
    a(f'v_and_b32 {v(t0)}, 3, {v(vLANE)}'); a(f'v_lshl_add_u32 {v(lo)}, {v(t0)}, 3, {v(lo)}')
    a(f'v_and_b32 {v(t0)}, 16, {v(vLANE)}'); a(f'v_lshl_add_u32 {v(lo)}, {v(t0)}, 1, {v(lo)}')
    a(f'v_xor_b32 {v(hi)}, 32, {v(lo)}')
def pat_xread(a, d, t0, t1):
    a(f'v_and_b32 {v(t0)}, 15, {v(vLANE)}'); a(f'v_lshlrev_b32 {v(d)}, 6, {v(t0)}')
    a(f'v_lshrrev_b32 {v(t0)}, 2, {v(vLANE)}'); a(f'v_and_b32 {v(t0)}, 2, {v(t0)}')
    a(f'v_lshrrev_b32 {v(t1)}, 4, {v(vLANE)}'); a(f'v_xor_b32 {v(t0)}, {v(t0)}, {v(t1)}')
    a(f'v_lshl_add_u32 {v(d)}, {v(t0)}, 4, {v(d)}')

def allreduce_g(a, r, t):
    a(f'v_mov_b32 {v(t)}, {v(r)}'); a(f'v_permlane32_swap_b32 {v(r)}, {v(t)}'); a(f'v_add_f32 {v(r)}, {v(r)}, {v(t)}')
    a(f'v_mov_b32 {v(t)}, {v(r)}'); a(f'v_permlane16_swap_b32 {v(r)}, {v(t)}'); a(f'v_add_f32 {v(r)}, {v(r)}, {v(t)}')

def mean_var(a, su, sq, nm, var):
    a(f'v_mul_f32 {v(nm)}, {hx(f2u(-1.0/576))}, {v(su)}')
    a(f'v_mul_f32 {v(var)}, {hx(f2u(1.0/576))}, {v(sq)}')
    a(f'v_fma_f32 {v(var)}, -{v(nm)}, {v(nm)}, {v(var)}')
    a(f'v_max_f32 {v(var)}, 0, {v(var)}')
def gelu_consts(a, rho, c0, c1, ri):
    a(f'v_rcp_f32 {v(ri)}, {v(rho)}')
    a(f'v_mul_f32 {v(c1)}, {v(rho)}, {v(rho)}')
    a(f'v_mul_f32 {v(c0)}, {hx(f2u(C0))}, {v(rho)}')
    a(f'v_mul_f32 {v(c1)}, {hx(f2u(0.044715))}, {v(c1)}')
    a(f'v_mul_f32 {v(c1)}, {v(c1)}, {v(c0)}')

def gelu8(a, items, tmp):
    L = []
    n = len(items)
    E = lambda t: L.append(lambda: a(t))
    for i, (x, cs, k) in enumerate(items): E(f'v_fmac_f32 {v(x)}, {v(k)}, {v(cs)}')
    for i, (x, cs, k) in enumerate(items): E(f'v_mul_f32 {v(tmp+i)}, {v(x)}, {v(x)}')
    for i, (x, cs, k) in enumerate(items): E(f'v_fma_f32 {v(tmp+i)}, {v(tmp+i)}, {v(k+2)}, {v(k+1)}')
    for i, (x, cs, k) in enumerate(items): E(f'v_mul_f32 {v(tmp+i)}, {v(tmp+i)}, {v(x)}')
    for i, (x, cs, k) in enumerate(items): E(f'v_exp_f32 {v(tmp+i)}, {v(tmp+i)}')
    for i, (x, cs, k) in enumerate(items): E(f'v_fma_f32 {v(tmp+i)}, {v(tmp+i)}, {v(k+3)}, {v(k+3)}')
    for i, (x, cs, k) in enumerate(items): E(f'v_rcp_f32 {v(tmp+i)}, {v(tmp+i)}')
    for i, (x, cs, k) in enumerate(items): E(f'v_mul_f32 {v(tmp+i)}, {v(tmp+i)}, {v(x)}')
    return L
def pack(a, dst, src, n):
    return [(lambda i=i: a(f'v_cvt_pk_bf16_f32 {v(dst+i)}, {v(src+2*i)}, {v(src+2*i+1)}')) for i in range(n)]
def run(L):
    for f in L: f()

def diag_select(a, d, g4, t0):
    a(f'v_and_b32 {v(t0)}, 3, {v(vLANE)}')
    a(f'v_mov_b32 {v(d)}, {v(g4)}')
    for r in (1, 2, 3):
        a(f'v_cmp_eq_u32 vcc, {r}, {v(t0)}')
        a(f'v_cndmask_b32 {v(d)}, {v(d)}, {v(g4+r)}, vcc')
DIAG = 0xF0000F0000F0000F

def front_loop(a, reads, mfmas, refill, gtag, first_wait=True):
    if first_wait: a.wait_vm_tag(gtag(0))
    barrier(a)
    run(reads(0))
    for pos in range(18):
        a.wait_all(vm=False)
        side = []
        if pos + 1 < 18:
            if (pos + 1) % 2 == 0:
                G = (pos + 1) // 2
                a.wait_vm_tag(gtag(G)); barrier(a)
                side = reads(pos + 1) + refill(G)
            else:
                side = reads(pos + 1)
        main = mfmas(pos)
        per = -(-len(side) // len(main))
        for f in main:
            f()
            for _ in range(per):
                if side: side.pop(0)()
        run(side)

def w3_dma_list(a):
    L = []
    def init():
        pat_pair(a, vDP, vTMP, vTMP + 1, 9216, False)
        pat_odd(a, vDO, vTMP, vTMP + 1, 9216, False)
        a(f's_mul_i32 {s(sT0)}, {s(sTG)}, {16*9216}')
        a(f's_mul_i32 {s(sT1)}, {s(sJ)}, 1152'); a(f's_add_u32 {s(sT0)}, {s(sT0)}, {s(sT1)}')
        a(f's_lshl_b32 {s(sT1)}, {s(sC)}, 8'); a(f's_add_u32 {s(sT1)}, {s(sT1)}, {s(sT0)}')
        a(f'v_add_u32 {v(vDP)}, {s(sT1)}, {v(vDP)}')
        a(f's_lshl_b32 {s(sT1)}, {s(sC)}, 5'); a(f's_add_u32 {s(sT1)}, {s(sT1)}, {s(sT0)}'); a(f's_add_u32 {s(sT1)}, {s(sT1)}, 1024')
        a(f'v_add_u32 {v(vDO)}, {s(sT1)}, {v(vDO)}')
        a(f's_mul_i32 {s(sR4)}, {s(sTG)}, 2560'); a(f's_lshl_b32 {s(sR5)}, {s(sTG)}, 10')
    L.append(init)
    for h in range(9):
        def fa(h=h):
            a(f's_mov_b32 {s(sT2)}, {h*64*9216}')
            dma(a, SW3, vDP, sT2, sR4, L3A + h*10240, 0, tag='w3')
            dma(a, SW3, vDP, sT2, sR4, L3A + h*10240 + 1024, 64, tag='w3')
        def fo(h=h):
            a(f's_mov_b32 {s(sT2)}, {h*64*9216}')
            setexec(a, 0xffffffff)
            dma(a, SW3, vDO, sT2, sR4, L3A + h*10240 + 2048, 0, tag='w3')
            setexec(a, -1)
        L += [fa, fo]
    for h in range(9):
        def fb(h=h):
            a(f's_mov_b32 {s(sT2)}, {h*64*9216}')
            dma(a, SW3, vDP, sT2, sR5, L3P2 + h*4096, 128, tag='w3')
            if h < 8: dma(a, SW3, vDP, sT2, sR5, L3P3 + h*4096, 192, tag='w3')
        L.append(fb)
    return L

def e2_poll(a):
    a(f's_lshl_b32 {s(sT0)}, {s(sMI)}, 2'); a(f's_lshr_b32 {s(sT1)}, {s(sW)}, 1'); a(f's_add_u32 {s(sT0)}, {s(sT0)}, {s(sT1)}')
    a(f's_lshl_b32 {s(sT0)}, {s(sT0)}, 3'); a(f's_add_u32 {s(sT0)}, {s(sT0)}, {s(sJ)}')
    a(f's_lshl_b32 {s(sT0)}, {s(sT0)}, 2'); a(f's_add_u32 {s(sT0)}, {s(sT0)}, {s(sC)}')
    a(f's_lshl_b32 {s(sT0)}, {s(sT0)}, 7'); a(f's_add_u32 {s(sT3)}, {s(sT0)}, {MB_X}')
    poll(a, vPOLL, vTMP, sT3, 0xF)

STREG = HOWN
def x_loads(a):
    a(f's_lshl_b32 {s(sT0)}, {s(sMI)}, 3'); a(f's_add_u32 {s(sT0)}, {s(sT0)}, {s(sW)}')
    a(f's_mul_i32 {s(sT1)}, {s(sT0)}, {2*18432}'); a(f's_add_u32 {s(sT1)}, {s(sT1)}, {WS_X1}')
    a(f's_add_u32 {s(sT2)}, {s(sT1)}, 18432')
    a(f'v_lshlrev_b32 {v(vTMP)}, 3, {v(vLANE)}')
    for k in range(18):
        if k and k % 4 == 0:
            a(f's_add_u32 {s(sT1)}, {s(sT1)}, 4096'); a(f's_add_u32 {s(sT2)}, {s(sT2)}, 4096')
        for i in range(2):
            r = XB + 8*k + 4*i; so = (sT1, sT2)[i]; o = (k % 4) * 1024
            if k < 16:
                a(f'buffer_load_dwordx4 {v(r,4)}, {v(vL16)}, {srd(SWS)}, {s(so)} offen offset:{o} sc1')
            else:
                a(f'buffer_load_dwordx2 {v(r,2)}, {v(vTMP)}, {srd(SWS)}, {s(so)} offen offset:{o} sc1')
                a(f'buffer_load_dwordx2 {v(r+2,2)}, {v(vTMP)}, {srd(SWS)}, {s(so)} offen offset:{o+512} sc1')
    a(f's_lshl_b32 {s(sT1)}, {s(sT0)}, 12'); a(f's_add_u32 {s(sT1)}, {s(sT1)}, {WS_ST}')
    for n in range(4):
        a(f'buffer_load_dwordx4 {v(STREG+4*n,4)}, {v(vL16)}, {srd(SWS)}, {s(sT1)} offen offset:{n*1024} sc1')

def s3_addr_init(a):
    pat_trlo(a, vALO, vAHI, vTMP + 1)
    a(f'v_lshlrev_b32 {v(vAOD)}, 3, {v(vLANE)}')

def w3frag(k, half, what, p=None):
    rb = 2*k + half
    if what == 'odd': return L3A + rb*2560 + 2048
    if p < 2: return L3A + rb*2560 + p*1024
    if p == 2: return L3P2 + rb*1024
    return L3P3 + rb*1024 if k < 16 else L3P3L + (rb - 32)*1024

def cs_w3(a):
    ones, acc = ACC3A, ACC3A + 4
    lo, hi, od = vTMP + 2, vTMP + 3, vTMP + 4
    pat_trlo(a, lo, hi, vTMP + 1)
    a(f'v_lshlrev_b32 {v(od)}, 3, {v(vLANE)}'); a(f'v_add_u32 {v(od)}, {L3A + 2048}, {v(od)}')
    a(f's_cmp_lt_u32 {s(sTG)}, 2')
    a(f's_cselect_b32 {s(sT0)}, 5, 2'); a(f's_lshl_b32 {s(sT0)}, {s(sT0)}, 9')
    a(f's_lshl_b32 {s(sT1)}, {s(sTG)}, 10')
    a(f's_cmp_eq_u32 {s(sTG)}, 2'); a(f's_cselect_b32 {s(sT1)}, {L3P2}, {s(sT1)}')
    a(f's_cmp_eq_u32 {s(sTG)}, 3'); a(f's_cselect_b32 {s(sT1)}, {L3P3}, {s(sT1)}')
    a(f's_cselect_b32 {s(sT2)}, 0, 0x3f803f80')
    a(f's_cselect_b32 {s(sT3)}, 0, {s(sT0)}')
    a(f'v_add_u32 {v(lo)}, {s(sT1)}, {v(lo)}'); a(f'v_add_u32 {v(hi)}, {s(sT1)}, {v(hi)}')
    for r in range(4):
        a(f'v_mov_b32 {v(ones+r)}, 0x3f803f80'); a(f'v_mov_b32 {v(acc+12+r)}, {s(sT2)}')
    def reads(k):
        b = RING + 12*(k & 1)
        for half in range(2):
            a(f'ds_read_b64_tr_b16 {v(b+2*half,2)}, {v(lo)}')
            a(f'ds_read_b64_tr_b16 {v(b+4+2*half,2)}, {v(hi)}')
            a(f'ds_read_b64_tr_b16 {v(b+8+2*half,2)}, {v(od)}')
            st = sT0 if 2*k + half < 31 else sT3
            a(f'v_add_u32 {v(lo)}, {s(st)}, {v(lo)}'); a(f'v_add_u32 {v(hi)}, {s(st)}, {v(hi)}')
            a(f'v_add_u32 {v(od)}, 2560, {v(od)}')
    reads(0)
    for k in range(18):
        if k + 1 < 18: reads(k + 1)
        b = RING + 12*(k & 1)
        bo = ones if k < 16 else acc + 12
        mfma(a, acc, b, bo, None if k == 0 else acc)
        mfma(a, acc+4, b+4, bo, None if k == 0 else acc+4)
        mfma(a, acc+8, b+8, ones, None if k == 0 else acc+8)
    a(f'v_and_b32 {v(lo)}, 48, {v(vLANE)}')
    a(f's_lshl_b32 {s(sT0)}, {s(sTG)}, 7'); a(f's_add_u32 {s(sT0)}, {s(sT0)}, {LCS}')
    a(f'v_add_u32 {v(hi)}, {LCS + 512}, {v(lo)}'); a(f'v_add_u32 {v(lo)}, {s(sT0)}, {v(lo)}')
    setexec(a, 0x0001000100010001)
    a(f'ds_write_b128 {v(lo)}, {v(acc,4)}'); a(f'ds_write_b128 {v(lo)}, {v(acc+4,4)} offset:64')
    a(f'ds_write_b128 {v(hi)}, {v(acc+8,4)}')
    setexec(a, -1)
    a.wait_all(vm=False)

def front_B(a, Y):
    sTT, sG, sQ, sB0 = sR0, sR1, sR2, sR3
    SLOT = 26624
    BF, AF, ACC, CSA, ODD, ODC, ONES = 0, 16, 40, 56, 64, 68, 72
    XN, STT, K0, T8, PK = 76, 88, 96, 104, 112
    aLo, aHi, aOd, aB0, aB1, aH0, aH1 = 200, 201, 202, 203, 204, 205, 206
    dP, dO, dX, t0, t1, t2, vN = 207, 208, 209, 210, 211, 212, 213
    aS0, aS1, aSO, mk0, mk1 = 214, 215, 216, 217, 218
    a(f's_and_b32 {s(sG)}, {s(sIDX)}, 3')
    a(f's_bfe_u32 {s(sT0)}, {s(sIDX)}, 0x20002'); a(f's_lshl_b32 {s(sTT)}, {s(sXC)}, 2'); a(f's_add_u32 {s(sTT)}, {s(sTT)}, {s(sT0)}')
    def ggroup(i, dst):
        if i == 8: a(f's_mov_b32 {s(dst)}, 8'); return
        a(f's_lshl_b32 {s(dst)}, {s(sG)}, 1'); a(f's_add_u32 {s(dst)}, {s(dst)}, {2+i}'); a(f's_and_b32 {s(dst)}, {s(dst)}, 7')
    def wload(sr, slot, tag):
        L = []
        for p in range(4): L.append(lambda p=p: dma(a, sr, dP, sT2, sR4, slot*SLOT + p*1024, 64*p, tag=tag))
        def fo():
            setexec(a, 0xffffffff); dma(a, sr, dO, sT2, sR4, slot*SLOT + 4096, 0, tag=tag); setexec(a, -1)
        return L + [fo]
    def load1(i):
        if not Y:
            def f0(): ggroup(i, sT2); a(f's_mul_i32 {s(sT2)}, {s(sT2)}, {64*1152}')
            return [f0] + wload(SW1, i % 6, ('g', i))
        def fx():
            ggroup(i, sT2); a(f's_lshl_b32 {s(sT2)}, {s(sT2)}, 7')
            dma(a, SX, dX, sT2, sR4, (i % 6)*SLOT + 18432, 0, tag=('g', i))
            dma(a, SX, dX, sT2, sR4, (i % 6)*SLOT + 18432 + 4096, 64, tag=('g', i))
        return [fx]
    def w2init():
        pat_pair(a, dP, t0, t1, 1152, False); pat_odd(a, dO, t0, t1, 1152, False)
        a(f's_mul_i32 {s(sT0)}, {s(sTG)}, {16*1152}')
        a(f's_lshl_b32 {s(sT1)}, {s(sG)}, 8'); a(f's_add_u32 {s(sT1)}, {s(sT1)}, {s(sT0)}'); a(f'v_add_u32 {v(dP)}, {s(sT1)}, {v(dP)}')
        a(f's_lshl_b32 {s(sT1)}, {s(sG)}, 5'); a(f's_add_u32 {s(sT1)}, {s(sT1)}, {s(sT0)}'); a(f's_add_u32 {s(sT1)}, {s(sT1)}, 1024')
        a(f'v_add_u32 {v(dO)}, {s(sT1)}, {v(dO)}')
    def load2(i):
        slot = (i + 3) % 6
        if not Y:
            return [lambda: a(f's_mov_b32 {s(sT2)}, {i*64*1152}')] + wload(SW2, slot, ('h', i))
        def fx():
            a(f's_add_u32 {s(sT2)}, {s(sR5)}, {i*2048}')
            dma(a, SWS, vL16, sT2, sR4, slot*SLOT + 18432, 0, 'sc1', tag=('h', i))
            dma(a, SWS, vL16, sT2, sR4, slot*SLOT + 18432 + 4096, 1024, 'sc1', tag=('h', i))
        return [fx]
    if not Y:
        pat_pair(a, dP, t0, t1, 1152, True); pat_odd(a, dO, t0, t1, 1152, True)
        a(f's_lshr_b32 {s(sT0)}, {s(sTG)}, 1'); a(f's_lshl_b32 {s(sT0)}, {s(sT0)}, 5')
        a(f's_and_b32 {s(sT1)}, {s(sTG)}, 1'); a(f's_lshl_b32 {s(sT1)}, {s(sT1)}, 2'); a(f's_add_u32 {s(sT0)}, {s(sT0)}, {s(sT1)}')
        a(f's_mul_i32 {s(sT0)}, {s(sT0)}, 1152')
        a(f's_mul_i32 {s(sT1)}, {s(sG)}, 288'); a(f's_add_u32 {s(sT0)}, {s(sT0)}, {s(sT1)}')
        a(f's_bitcmp1_b32 {s(sG)}, 0')
        a(f's_cselect_b32 {s(sT1)}, 32, 0'); a(f's_cselect_b32 {s(sT3)}, 0, 256')
        a(f's_add_u32 {s(sT1)}, {s(sT1)}, {s(sT0)}'); a(f's_add_u32 {s(sT3)}, {s(sT3)}, {s(sT0)}')
        a(f'v_add_u32 {v(dP)}, {s(sT1)}, {v(dP)}'); a(f'v_add_u32 {v(dO)}, {s(sT3)}, {v(dO)}')
        a(f's_mul_i32 {s(sR4)}, {s(sTG)}, 4608')
    else:
        pat_x(a, dX, t0, t1)
        a(f's_lshl_b32 {s(sT0)}, {s(sTT)}, 2'); a(f's_add_u32 {s(sT0)}, {s(sT0)}, {s(sTG)}')
        a(f's_mul_i32 {s(sT0)}, {s(sT0)}, 18432')
        a(f'v_add_u32 {v(dX)}, {s(sT0)}, {v(dX)}')
        a(f's_add_u32 {s(sR5)}, {s(sT0)}, {WS_HS}')
        a(f's_lshl_b32 {s(sR4)}, {s(sTG)}, 10')
    kargs_ready(a)
    if Y: nonce_issue(a, 219, 220)
    for i in range(6): run(load1(i))
    if Y: nonce_make(a, 219, 220)
    a(f's_and_b32 {s(sQ)}, {s(sW)}, 1')
    if Y: a(f's_add_u32 {s(sQ)}, {s(sQ)}, 2')
    pat_trlo(a, aLo, aHi, t0)
    a(f's_lshl_b32 {s(sT0)}, {s(sQ)}, 10')
    a(f'v_add_u32 {v(aLo)}, {s(sT0)}, {v(aLo)}'); a(f'v_add_u32 {v(aHi)}, {s(sT0)}, {v(aHi)}')
    a(f'v_lshlrev_b32 {v(aOd)}, 3, {v(vLANE)}')
    pat_xread(a, aB0, t0, t1)
    a(f's_lshl_b32 {s(sT0)}, {s(sTG)}, 10'); a(f'v_add_u32 {v(aB0)}, {s(sT0)}, {v(aB0)}')
    a(f'v_xor_b32 {v(aB1)}, 1024, {v(aB0)}')
    for r in range(4): a(f'v_mov_b32 {v(ONES+r)}, 0x3f803f80')
    RLo, RHi, ROd, RB0, RB1 = (AddrReg(x) for x in (aLo, aHi, aOd, aB0, aB1))
    def areads(pos, slot):
        L = []; b = AF + 12*(pos & 1)
        for half in range(2):
            base = slot*SLOT + (2*(pos & 1) + half)*4608
            L.append(lambda base=base, half=half: tr(a, b + 2*half, RLo, base))
            L.append(lambda base=base, half=half: tr(a, b + 4 + 2*half, RHi, base))
            if not Y: L.append(lambda base=base, half=half: tr(a, b + 8 + 2*half, ROd, base + 4096))
        return L
    def reads1(pos):
        slot = (pos // 2) % 6; xb = slot*SLOT + 18432 + (pos & 1)*4096; b = BF + 8*(pos & 1)
        return [lambda: dsr(a, 4, b, RB0, xb), lambda: dsr(a, 4, b + 4, RB1, xb)] + areads(pos, slot)
    def mf1(pos):
        A_ = AF + 12*(pos & 1); B_ = BF + 8*(pos & 1); z = pos == 0
        M = lambda d, x, y: (lambda: mfma(a, d, x, y, None if z else d))
        L = [M(ACC, A_, B_), M(ACC+4, A_+4, B_), M(ACC+8, A_, B_+4), M(ACC+12, A_+4, B_+4), M(CSA, A_, ONES), M(CSA+4, A_+4, ONES)]
        if not Y: L += [M(ODD, A_+8, B_), M(ODC, A_+8, ONES)]
        else: L += [M(ODD, B_, B_), M(ODC, ONES, B_)]
        return L
    def refill1(G):
        L = []
        if G + 5 < 9: L = load1(G + 5)
        elif not Y:
            if G + 5 == 9: L.append(w2init)
            L += load2(G + 5 - 9)
        if G == 5: L.append(lambda: get_nonce_issue(a, vN))
        return L
    stamp(a, 0)
    front_loop(a, reads1, mf1, refill1, lambda G: ('g', G))
    stamp(a, 1)
    a(f'v_and_b32 {v(t0)}, 15, {v(vLANE)}'); a(f'v_lshlrev_b32 {v(t2)}, 6, {v(t0)}')
    a(f'v_and_b32 {v(t0)}, 8, {v(vLANE)}'); a(f'v_lshl_add_u32 {v(t2)}, {v(t0)}, 2, {v(t2)}')
    a(f'v_lshrrev_b32 {v(t0)}, 4, {v(vLANE)}'); a(f'v_lshl_add_u32 {v(t2)}, {v(t0)}, 3, {v(t2)}')
    a(f's_lshl_b32 {s(sT0)}, {s(sTG)}, 10'); a(f'v_add_u32 {v(t2)}, {s(sT0)}, {v(t2)}')
    a(f's_and_b32 {s(sT0)}, {s(sQ)}, 1'); a(f's_lshl_b32 {s(sT0)}, {s(sT0)}, 12')
    a(f's_add_u32 {s(sT0)}, {s(sT0)}, {((7 if Y else 6) % 6)*SLOT + 18432}')
    a(f'v_add_u32 {v(t0)}, {s(sT0)}, {v(t2)}')
    a(f'ds_read_b64 {v(XN,2)}, {v(t0)}'); a(f'v_xor_b32 {v(t1)}, 32, {v(t0)}'); a(f'ds_read_b64 {v(XN+2,2)}, {v(t1)}')
    a(f'v_xor_b32 {v(t0)}, 1024, {v(t0)}'); a(f'ds_read_b64 {v(XN+4,2)}, {v(t0)}')
    a(f'v_xor_b32 {v(t1)}, 1024, {v(t1)}'); a(f'ds_read_b64 {v(XN+6,2)}, {v(t1)}')
    if not Y:
        a(f's_lshr_b32 {s(sT0)}, {s(sG)}, 1'); a(f's_lshl_b32 {s(sT0)}, {s(sT0)}, 12'); a(f's_add_u32 {s(sT0)}, {s(sT0)}, {2*SLOT + 18432}')
        a(f's_and_b32 {s(sT1)}, {s(sG)}, 1'); a(f's_lshl_b32 {s(sT1)}, {s(sT1)}, 5')
        a(f'v_xor_b32 {v(t2)}, {s(sT1)}, {v(t2)}'); a(f'v_add_u32 {v(t2)}, {s(sT0)}, {v(t2)}')
        a(f'ds_read_b64 {v(XN+8,2)}, {v(t2)}')
    a(f'v_and_b32 {v(t2)}, 15, {v(vLANE)}'); a(f'v_lshlrev_b32 {v(t2)}, 4, {v(t2)}')
    a(f's_lshl_b32 {s(sT0)}, {s(sTG)}, 8'); a(f's_add_u32 {s(sT0)}, {s(sT0)}, {LSC2}'); a(f'v_add_u32 {v(t2)}, {s(sT0)}, {v(t2)}')
    if Y:
        diag_select(a, T8, ODD, t0)
        mean_var(a, ODC, T8, STT, T8+1)
        a(f'v_add_f32 {v(T8+2)}, {hx(f2u(1e-5))}, {v(T8+1)}'); a(f'v_rsq_f32 {v(STT+2)}, {v(T8+2)}')
        a(f'v_mul_f32 {v(T8+1)}, {v(T8+1)}, {v(STT+2)}'); a(f'v_mov_b32 {v(T8+3)}, {hx(f2u(1e-5))}')
        a(f'v_fmac_f32 {v(T8+3)}, {v(T8+1)}, {v(STT+2)}'); a(f'v_rsq_f32 {v(T8+3)}, {v(T8+3)}')
        a(f'v_mul_f32 {v(STT+1)}, {v(T8+3)}, {v(STT+2)}'); a(f'v_mov_b32 {v(STT+3)}, 0')
        setexec(a, DIAG); a(f'ds_write_b128 {v(t2)}, {v(STT,4)}'); setexec(a, -1)
    a(f's_lshr_b32 {s(sT0)}, {s(sG)}, 1'); a(f's_add_u32 {s(sT0)}, {s(sT0)}, 1')
    a(f's_sub_u32 {s(sT1)}, 0, {s(sT0)}'); a(f's_bitcmp1_b32 {s(sG)}, 0'); a(f's_cselect_b32 {s(sT0)}, {s(sT1)}, {s(sT0)}')
    a(f's_lshl_b32 {s(sT1)}, {s(sTT)}, 6'); a(f's_add_u32 {s(sT0)}, {s(sT0)}, {s(sT1)}')
    for i, (ad, mk) in enumerate(((aS0, mk0), (aS1, mk1))):
        a(f's_xor_b32 {s(sT1)}, {s(sTG)}, {i}'); a(f's_lshl_b32 {s(sT1)}, {s(sT1)}, 4'); a(f's_add_u32 {s(sT1)}, {s(sT1)}, {s(sT0)}')
        a(f'v_and_b32 {v(t0)}, 15, {v(vLANE)}'); a(f'v_add_u32 {v(t0)}, {s(sT1)}, {v(t0)}')
        a(f'v_cmp_gt_u32 vcc, 2048, {v(t0)}'); a(f'v_cndmask_b32 {v(mk)}, 0, -1, vcc')
        a(f'v_bfe_u32 {v(t1)}, {v(t0)}, 4, 7'); a(f'v_mul_u32_u24 {v(ad)}, 18432, {v(t1)}')
        a(f'v_and_b32 {v(t0)}, 15, {v(t0)}'); a(f'v_and_or_b32 {v(t0)}, {v(vLANE)}, 48, {v(t0)}')
        if i == 0 and not Y: a(f'v_lshl_add_u32 {v(aSO)}, {v(t0)}, 3, {v(ad)}')
        a(f'v_lshl_add_u32 {v(ad)}, {v(t0)}, 4, {v(ad)}')
    a.wait_all(vm=False); barrier(a)
    a(f'ds_read_b128 {v(STT,4)}, {v(t2)}'); a(f'v_xor_b32 {v(t2)}, 256, {v(t2)}'); a(f'ds_read_b128 {v(STT+4,4)}, {v(t2)}')
    late = load2(5) if not Y else []
    a(f's_mul_i32 {s(sT0)}, {s(sG)}, 9'); a(f's_add_u32 {s(sT0)}, {s(sT0)}, 1'); a(f's_lshr_b32 {s(sT0)}, {s(sT0)}, 1')
    a(f's_add_u32 {s(sT0)}, {s(sT0)}, {s(sQ)}'); a(f's_lshl_b32 {s(sT0)}, {s(sT0)}, 10'); a(f's_add_u32 {s(sT4)}, {s(sT0)}, {WS_HS}')
    a(f's_cmp_lt_u32 {s(sG)}, 2'); a(f's_cselect_b32 {s(sT0)}, 0, {9*1024}'); a(f's_add_u32 {s(sT0)}, {s(sT0)}, {WS_HS + 4*1024}')
    a(f's_and_b32 {s(sT1)}, {s(sG)}, 1'); a(f's_lshl_b32 {s(sT1)}, {s(sT1)}, 9'); a(f's_add_u32 {s(sT5)}, {s(sT0)}, {s(sT1)}')
    for i in range(2):
        a(f'v_mov_b32 {v(K0+4*i)}, {v(STT+4*i)}')
        gelu_consts(a, STT+4*i+1, K0+4*i+1, K0+4*i+2, K0+4*i+3)
    for i, (ad, mk) in enumerate(((aS0, mk0), (aS1, mk1))):
        run(gelu8(a, [(ACC+8*i+r, CSA+r, K0+4*i) for r in range(8)], T8))
        run(pack(a, PK+4*i, T8, 4))
        for r in range(4): a(f'v_and_b32 {v(PK+4*i+r)}, {v(PK+4*i+r)}, {v(mk)}')
        a(f'buffer_store_dwordx4 {v(PK+4*i,4)}, {v(ad)}, {srd(SWS)}, {s(sT4)} offen sc1', tag='st')
    if not Y:
        run(gelu8(a, [(ODD+r, ODC+r, K0) for r in range(4)], T8))
        run(pack(a, PK+8, T8, 2))
        for r in range(2): a(f'v_and_b32 {v(PK+8+r)}, {v(PK+8+r)}, {v(mk0)}')
        a(f'buffer_store_dwordx2 {v(PK+8,2)}, {v(aSO)}, {srd(SWS)}, {s(sT5)} offen sc1', tag='st')
    run(late)
    get_nonce_check(a, vN)
    for i in range(2):
        a(f'v_mul_f32 {v(STT+4*i)}, {v(STT+4*i)}, {v(STT+4*i+2)}')
    def xn_init(dst, src, i, n):
        for r in range(n):
            a(f'v_lshlrev_b32 {v(dst+2*r)}, 16, {v(src+r)}'); a(f'v_and_b32 {v(dst+2*r+1)}, 0xffff0000, {v(src+r)}')
        for r in range(2*n): a(f'v_fma_f32 {v(dst+r)}, {v(dst+r)}, {v(STT+4*i+2)}, {v(STT+4*i)}')
    xn_init(ACC, XN, 0, 4); xn_init(ACC+8, XN+4, 1, 4)
    if not Y: xn_init(ODD, XN+8, 0, 2)
    a(f's_lshl_b32 {s(sT0)}, {s(sTG)}, 10')
    a(f'v_add_u32 {v(aB0)}, {s(sT0)}, {v(vL16)}'); a(f'v_xor_b32 {v(aB1)}, 1024, {v(aB0)}')
    a(f'v_lshlrev_b32 {v(aH0)}, 3, {v(vLANE)}'); a(f'v_add_u32 {v(aH0)}, {s(sT0)}, {v(aH0)}'); a(f'v_xor_b32 {v(aH1)}, 1024, {v(aH0)}')
    RB0, RB1, RH0, RH1 = (AddrReg(x) for x in (aB0, aB1, aH0, aH1))
    if Y:
        a(f's_bitcmp1_b32 {s(sG)}, 0'); a(f's_cselect_b32 {s(sT0)}, 31, 1'); a(f's_cselect_b32 {s(sT1)}, 24, 16')
        a(f's_add_u32 {s(sT0)}, {s(sT0)}, {s(sTT)}'); a(f's_and_b32 {s(sT0)}, {s(sT0)}, 31'); a(f's_lshl_b32 {s(sT0)}, {s(sT0)}, 9')
        a(f's_add_u32 {s(sT0)}, {s(sT0)}, {s(sT1)}'); a(f's_and_b32 {s(sT1)}, {s(sG)}, 2'); a(f's_lshl_b32 {s(sT1)}, {s(sT1)}, 1')
        a(f's_add_u32 {s(sT0)}, {s(sT0)}, {s(sT1)}')
        a(f's_lshl_b32 {s(sT1)}, {s(sTT)}, 9'); a(f's_lshl_b32 {s(sT3)}, {s(sG)}, 2'); a(f's_add_u32 {s(sT1)}, {s(sT1)}, {s(sT3)}')
        a(f'v_mov_b32 {v(t0)}, {s(sT0)}'); a(f'v_mov_b32 {v(t1)}, {s(sT1)}')
        a(f'v_cmp_gt_u32 vcc, 4, {v(vLANE)}'); a(f'v_cndmask_b32 {v(t0)}, {v(t0)}, {v(t1)}, vcc')
        a(f'v_and_b32 {v(t1)}, 3, {v(vLANE)}'); a(f'v_lshl_add_u32 {v(t0)}, {v(t1)}, 7, {v(t0)}')
    a.wait_vm_tag('st');
    stamp(a, 2)
    barrier(a)
    if Y:
        sk = a.newlabel('noflag')
        a(f's_mov_b32 {s(sT3)}, {MB_H}')
        a(f's_cmp_lg_u32 {s(sTG)}, 0'); a(f's_cbranch_scc1 {sk}')
        flag_write(a, t0, sT3, 0xFF, t1); a.vmq.pop()
        a.label(sk)
        a(f's_lshl_b32 {s(sT0)}, {s(sTT)}, 2'); a(f's_add_u32 {s(sT0)}, {s(sT0)}, {s(sG)}'); a(f's_lshl_b32 {s(sT0)}, {s(sT0)}, 7')
        a(f's_add_u32 {s(sT3)}, {s(sT0)}, {MB_H}')
        poll(a, t1, t2, sT3, 0xFF)
        stamp(a, 3)
        for i in range(6): run(load2(i))
    def reads2(pos):
        slot = (pos // 2 + 3) % 6; xb = slot*SLOT + 18432 + (pos & 1)*4096; b = BF + 8*(pos & 1)
        if pos in (4, 13):
            L = [lambda: dsr(a, 2, b, RH0, xb), lambda: dsr(a, 2, b+2, RH0, xb+512), lambda: dsr(a, 2, b+4, RH1, xb), lambda: dsr(a, 2, b+6, RH1, xb+512)]
        else:
            L = [lambda: dsr(a, 4, b, RB0, xb), lambda: dsr(a, 4, b + 4, RB1, xb)]
        return L + areads(pos, slot)
    def mf2(pos):
        A_ = AF + 12*(pos & 1); B_ = BF + 8*(pos & 1)
        M = lambda d, x, y: (lambda: mfma(a, d, x, y, d))
        L = [M(ACC, A_, B_), M(ACC+4, A_+4, B_), M(ACC+8, A_, B_+4), M(ACC+12, A_+4, B_+4)]
        if not Y: L += [M(ODD, A_+8, B_)]
        return L
    front_loop(a, reads2, mf2, lambda G: load2(G + 5) if G + 5 < 9 else [], lambda G: ('h', G))
    stamp(a, 4)
    a(f's_lshl_b32 {s(sT0)}, {s(sTT)}, 2'); a(f's_add_u32 {s(sT0)}, {s(sT0)}, {s(sTG)}')
    a(f's_lshl_b32 {s(sT1)}, {s(sG)}, 2'); a(f's_add_u32 {s(sT1)}, {s(sT1)}, {s(sQ)}'); a(f's_lshl_b32 {s(sT1)}, {s(sT1)}, 10')
    a(f's_add_u32 {s(sT1)}, {s(sT1)}, {WS_X1}')
    for i in range(2):
        run(pack(a, PK+4*i, ACC+8*i, 4))
        a(f's_xor_b32 {s(sT2)}, {s(sT0)}, {i}'); a(f's_mul_i32 {s(sT2)}, {s(sT2)}, 18432'); a(f's_add_u32 {s(sT2)}, {s(sT2)}, {s(sT1)}')
        a(f'buffer_store_dwordx4 {v(PK+4*i,4)}, {v(vL16)}, {srd(SWS)}, {s(sT2)} offen sc1', tag='st')
    if not Y:
        run(pack(a, PK+8, ODD, 2))
        a(f's_mul_i32 {s(sT2)}, {s(sT0)}, 18432'); a(f's_lshl_b32 {s(sT3)}, {s(sG)}, 9'); a(f's_add_u32 {s(sT2)}, {s(sT2)}, {s(sT3)}')
        a(f's_add_u32 {s(sT2)}, {s(sT2)}, {WS_X1 + 16*1024}')
        a(f'v_lshlrev_b32 {v(t0)}, 3, {v(vLANE)}')
        a(f'buffer_store_dwordx2 {v(PK+8,2)}, {v(t0)}, {srd(SWS)}, {s(sT2)} offen sc1', tag='st')
    for i in range(2):
        rs = [ACC+8*i+r for r in range(8)] + ([ODD+r for r in range(4)] if (i == 0 and not Y) else [])
        su, sq = T8 + i, T8 + 2 + i
        a(f'v_add_f32 {v(su)}, {v(rs[0])}, {v(rs[1])}'); a(f'v_mul_f32 {v(sq)}, {v(rs[0])}, {v(rs[0])}')
        a(f'v_fmac_f32 {v(sq)}, {v(rs[1])}, {v(rs[1])}')
        for r in rs[2:]:
            a(f'v_add_f32 {v(su)}, {v(su)}, {v(r)}'); a(f'v_fmac_f32 {v(sq)}, {v(r)}, {v(r)}')
    a(f'v_permlane32_swap_b32 {v(T8)}, {v(T8+1)}'); a(f'v_permlane32_swap_b32 {v(T8+2)}, {v(T8+3)}')
    a(f'v_add_f32 {v(T8)}, {v(T8)}, {v(T8+1)}'); a(f'v_add_f32 {v(T8+2)}, {v(T8+2)}, {v(T8+3)}')
    a(f'v_lshrrev_b32 {v(t0)}, 5, {v(vLANE)}'); a(f'v_xor_b32 {v(t0)}, {s(sT0)}, {v(t0)}'); a(f'v_lshlrev_b32 {v(t0)}, 11, {v(t0)}')
    a(f'v_permlane16_swap_b32 {v(T8)}, {v(T8+2)}')
    a(f'v_and_b32 {v(t1)}, 16, {v(vLANE)}'); a(f'v_lshl_add_u32 {v(t0)}, {v(t1)}, 6, {v(t0)}')
    a(f'v_and_b32 {v(t1)}, 15, {v(vLANE)}'); a(f'v_lshl_add_u32 {v(t0)}, {v(t1)}, 4, {v(t0)}')
    a(f'v_add_f32 {v(T8)}, {v(T8)}, {v(T8+2)}')
    a(f's_lshl_b32 {s(sT1)}, {s(sG)}, 8'); a(f's_lshl_b32 {s(sT2)}, {s(sQ)}, 2'); a(f's_add_u32 {s(sT1)}, {s(sT1)}, {s(sT2)}')
    a(f's_add_u32 {s(sT1)}, {s(sT1)}, {WS_ST}')
    a(f'buffer_store_dword {v(T8)}, {v(t0)}, {srd(SWS)}, {s(sT1)} offen sc1', tag='st')
    w3 = w3_dma_list(a) if Y else []
    if Y: w3.pop(0)()
    a(f'v_lshlrev_b32 {v(t0)}, 7, {v(vLANE)}')
    a(f's_lshl_b32 {s(sT3)}, {s(sTT)}, 12'); a(f's_lshl_b32 {s(sT1)}, {s(sG)}, 2'); a(f's_add_u32 {s(sT3)}, {s(sT3)}, {s(sT1)}')
    a(f's_add_u32 {s(sT3)}, {s(sT3)}, {MB_X}')
    a.wait_vm_tag('st')
    stamp(a, 5)
    barrier(a)
    if not Y:
        sk = a.newlabel('noflag')
        a(f's_cmp_lg_u32 {s(sTG)}, 0'); a(f's_cbranch_scc1 {sk}')
        flag_write(a, t0, sT3, 0xFFFFFFFF, t1); a.vmq.pop()
        a.label(sk)
        e2_poll(a)
        stamp(a, 6)
        x_loads(a)
        s3_addr_init(a)
        barrier(a)
    else:
        run(w3)
        e2_poll(a)
        a.wait_all(lg=False)
        stamp(a, 6)
        barrier(a)
        x_loads(a)
        cs_w3(a)
        s3_addr_init(a)

def nonce_issue(a, vz, ve):
    a(f'v_mov_b32 {v(vz)}, 0')
    a(f'buffer_load_dword {v(ve)}, {v(vz)}, {srd(SWS)}, 0 offen sc1')
def nonce_make(a, vz, ve):
    sk = a.newlabel('nononce')
    a(f's_or_b32 {s(sT0)}, s2, {s(sTG)}'); a(f's_cmp_lg_u32 {s(sT0)}, 0'); a(f's_cbranch_scc1 {sk}')
    o = a.fork()
    o(f'v_readfirstlane_b32 {s(sT0)}, {v(ve)}')
    o(f's_mul_i32 {s(sT0)}, {s(sT0)}, 1664525'); o(f's_add_u32 {s(sT0)}, {s(sT0)}, 1013904223')
    o(f's_cmp_eq_u32 {s(sT0)}, 0'); o(f's_cselect_b32 {s(sT0)}, 1013904223, {s(sT0)}')
    o(f'v_mov_b32 {v(ve)}, {s(sT0)}')
    setexec(o, 1)
    o(f'buffer_store_dword {v(ve)}, {v(vz)}, {srd(SDBG)}, 0 offen sc1')
    o(f'buffer_store_dword {v(ve)}, {v(vz)}, {srd(SWS)}, 0 offen sc1')
    setexec(o, -1)
    a.out += o.out
    a.label(sk)
    a.nop(2)

class Ring:
    def __init__(self, a, nslot=6):
        self.a = a; self.n = nslot
    def prefetch(self, steps, count):
        for i in range(count): self._read(steps, i)
        return count
    def _rd(self, steps, i):
        r = RING + 4*(i % self.n)
        return [(lambda h=h, ar=ar, ad=ad: tr(self.a, r + 2*h, ar, ad)) for h, (ar, ad) in enumerate(steps[i][0])]
    def _read(self, steps, i): run(self._rd(steps, i))
    def block(self, steps, done=0, hooks=None, pd=5):
        hooks = hooks or {}
        nxt = done
        while nxt < min(pd, len(steps)): self._read(steps, nxt); nxt += 1
        for i, (_, mf) in enumerate(steps):
            if i in hooks: hooks[i]()
            rd = []
            if nxt < len(steps) and nxt <= i + pd: rd = self._rd(steps, nxt); nxt += 1
            ms = mf(RING + 4*(i % self.n))
            for m in ms:
                m()
                if rd: rd.pop(0)()
            run(rd)

S4B = []
for p in range(4): S4B.append(HOWN + 8*p)
for n in range(6): S4B.append(XB + 8*n)
for n in range(2): S4B.append(XB + 48 + 8*n)
for n in range(2): S4B.append(XB + 64 + 8*n)
S4B.append(XB + 80)
for n in range(6): S4B.append(XB + 84 + 8*n)
ACC4O, ACC4 = XB + 132, 176
A4CH = {0: 0, 1: 10240, 2: 20480, 3: 30720, 4: 40960, 5: 51200, 6: 61440, 7: 71680, 'x': 81920, 8: 92160, 9: 102400}
B4CH = {0: 112640, 1: 120832, 2: 129024, 3: 137216, 4: 145408, 5: 153600, 'x': 84480, 6: 1024, 7: 9216, 8: 17408, 9: 25600}
def s4_rb(slot, half):
    if slot == 14: return 'x', 0
    sl = slot if slot < 14 else slot - 1
    return sl // 2, 2*(sl % 2) + half

def s34(a, Y):
    R = Ring(a)
    Lo, Hi, Od = AddrReg(vALO), AddrReg(vAHI), AddrReg(vAOD)
    sH, sE, sP = sR0, sR1, sR2
    CS = RING + 16
    a(f's_lshl_b32 {s(sT0)}, {s(sMI)}, 3'); a(f's_add_u32 {s(sT0)}, {s(sT0)}, {s(sJ)}')
    a(f's_lshl_b32 {s(sT1)}, {s(sT0)}, 3'); a(f's_add_u32 {s(sT1)}, {s(sT1)}, {s(sW)}')
    a(f's_mul_i32 {s(sH)}, {s(sT1)}, 36864'); a(f's_add_u32 {s(sH)}, {s(sH)}, {WS_H}')
    a(f's_lshl_b32 {s(sE)}, {s(sT1)}, 9'); a(f's_add_u32 {s(sE)}, {s(sE)}, {MB_E}')
    a(f's_lshl_b32 {s(sT0)}, {s(sMI)}, 2'); a(f's_add_u32 {s(sT0)}, {s(sT0)}, {s(sC)}')
    a(f's_lshl_b32 {s(sR3)}, {s(sT0)}, 3')
    a(f's_add_u32 {s(sT0)}, {s(sR3)}, {s(sW)}'); a(f's_mul_i32 {s(sP)}, {s(sT0)}, 73728')
    a(f's_lshl_b32 {s(sT1)}, {s(sJ)}, 10'); a(f's_add_u32 {s(sP)}, {s(sP)}, {s(sT1)}'); a(f's_add_u32 {s(sP)}, {s(sP)}, {WS_P}')

    def steps3(tiles, acc0, extra=None):
        St = []
        for k in range(18):
            for n, (what, p, eta) in enumerate(tiles):
                ar = Od if what == 'odd' else (Lo, Hi)[eta]
                def mf(fr, k=k, n=n, what=what, eta=eta):
                    L = []
                    for i in range(2):
                        d = acc0(n, i)
                        L.append(lambda d=d, i=i: mfma(a, d, fr, XB + 8*k + 4*i, None if k == 0 else d))
                    if extra and k >= 16: L.append(lambda: mfma(a, extra[0] + 4*eta, fr, extra[1], extra[0] + 4*eta))
                    return L
                St.append(([(ar, w3frag(k, h, what, p)) for h in range(2)], mf))
        return St
    TA = [('odd', None, 0), ('p', 0, 0), ('p', 0, 1), ('p', 1, 0), ('p', 1, 1)]
    accA3 = lambda n, i: ACC3A + 4*i if n == 0 else ACC3A + 8 + 16*((n-1)//2) + 8*i + 4*((n-1) % 2)
    accB3 = lambda n, i: ACCB + 8*i + 4*n
    A3 = steps3(TA, accA3)
    B3a = steps3([('p', 2, 0), ('p', 2, 1)], accB3)
    CS3, ONE3 = 176, 184
    B3b = steps3([('p', 3, 0), ('p', 3, 1)], accB3, extra=(CS3, ONE3))

    def cs_read(dst, tile, n):
        a(f'v_and_b32 {v(vPOLL)}, 48, {v(vLANE)}'); a(f'v_add_u32 {v(vPOLL)}, {LCS}, {v(vPOLL)}')
        for u in range(n): a(f'ds_read_b128 {v(dst+4*u,4)}, {v(vPOLL)} offset:{(tile+u)*64}')
    def hstore(src, kslot_expr_imm, odd=False):
        if odd:
            a(f's_lshl_b32 {s(sT4)}, {s(sC)}, 10'); a(f's_add_u32 {s(sT4)}, {s(sT4)}, 32768')
        else:
            a(f's_lshl_b32 {s(sT4)}, {s(sC)}, 13'); a(f's_add_u32 {s(sT4)}, {s(sT4)}, {kslot_expr_imm}')
        a(f's_add_u32 {s(sT4)}, {s(sT4)}, {s(sH)}')
        a(f'buffer_store_dwordx4 {v(src,4)}, {v(vL16)}, {srd(SWS)}, {s(sT4)} offen sc1', tag='hs')
    def gelu_pair(acc, p, cs, read=True):
        L = []
        if read: L.append(lambda: cs_read(cs, 2*p, 2))
        for i in range(2):
            L += gelu8(a, [(acc + 8*i + r, cs + r, vGC + 4*i) for r in range(8)], vTMP)
            L += pack(a, HOWN + 8*p + 4*i, vTMP, 4)
            L.append(lambda i=i: hstore(HOWN + 8*p + 4*i, p*2048 + i*1024))
        return L
    def stats():
        for n in range(4):
            r = STREG + 4*n
            a(f'v_add_f32 {v(r)}, {v(r)}, {v(r+1)}'); a(f'v_add_f32 {v(r+2)}, {v(r+2)}, {v(r+3)}'); a(f'v_add_f32 {v(r)}, {v(r)}, {v(r+2)}')
        for n in range(4): allreduce_g(a, STREG + 4*n, STREG + 4*n + 1)
        for i in range(2):
            mean_var(a, STREG + 8*i, STREG + 8*i + 4, vGC + 4*i, STREG + 8*i + 1)
            a(f'v_add_f32 {v(STREG+8*i+1)}, {hx(f2u(1e-5))}, {v(STREG+8*i+1)}'); a(f'v_rsq_f32 {v(STREG+8*i+2)}, {v(STREG+8*i+1)}')
            gelu_consts(a, STREG+8*i+2, vGC+4*i+1, vGC+4*i+2, vGC+4*i+3)
    def G3a():
        L = [stats, lambda: cs_read(CS, 8, 1)]
        L += gelu8(a, [(ACC3A + r, CS + (r & 3), vGC + 4*(r >> 2)) for r in range(8)], vTMP)
        L += pack(a, HOWN + 16, vTMP, 4)
        L.append(lambda: hstore(HOWN + 16, 0, odd=True))
        L += gelu_pair(ACC3A + 8, 0, CS) + gelu_pair(ACC3A + 24, 1, CS)
        return L
    def eflag(word):
        a.wait_vm_tag('hs')
        a(f'v_lshlrev_b32 {v(vTMP)}, 7, {v(vLANE)}')
        a(f's_lshl_b32 {s(sT4)}, {s(sC)}, 2'); a(f's_add_u32 {s(sT4)}, {s(sT4)}, {word*4}'); a(f's_add_u32 {s(sT4)}, {s(sT4)}, {s(sE)}')
        flag_write(a, vTMP, sT4, 0xF, vTMP + 1)
    def ebox():
        a(f's_lshl_b32 {s(sT5)}, {s(sC)}, 7'); a(f's_add_u32 {s(sT5)}, {s(sT5)}, {s(sE)}')
    M1 = 0x0F if cfg.no_a else 0x1F
    def w4init():
        pat_pair(a, vDP, vPOLL, vDO, 1152, False)
        a(f'v_bfe_u32 {v(vPOLL)}, {v(vLANE)}, 1, 4'); a(f'v_mul_u32_u24 {v(vPOLL)}, 1152, {v(vPOLL)}')
        a(f'v_and_b32 {v(vDO)}, 1, {v(vLANE)}'); a(f'v_lshl_add_u32 {v(vDO)}, {v(vDO)}, 4, {v(vPOLL)}')
        a(f's_mul_i32 {s(sT0)}, {s(sTG)}, {16*1152}'); a(f's_mul_i32 {s(sT1)}, {s(sJ)}, {576*1152}'); a(f's_add_u32 {s(sT0)}, {s(sT0)}, {s(sT1)}')
        colfix(sT0)
    def colfix(sb):
        a(f's_lshl_b32 {s(sT1)}, {s(sC)}, 8'); a(f's_add_u32 {s(sT1)}, {s(sT1)}, {s(sb)}'); a(f'v_add_u32 {v(vDP)}, {s(sT1)}, {v(vDP)}')
        a(f's_lshl_b32 {s(sT1)}, {s(sC)}, 5'); a(f's_add_u32 {s(sT1)}, {s(sT1)}, {s(sb)}'); a(f's_add_u32 {s(sT1)}, {s(sT1)}, 1024')
        a(f'v_add_u32 {v(vDO)}, {s(sT1)}, {v(vDO)}')
    def woinit(last):
        for d, sh, nb in ((vDP, 2, 2), (vDO, 1, 1)):
            a(f'v_bfe_u32 {v(vPOLL)}, {v(vLANE)}, {sh + 2}, 2')
            a(f'v_mul_u32_u24 {v(d)}, 18, {v(vPOLL)}')
            a(f'v_and_b32 {v(vPOLL)}, 1, {v(vPOLL)}')
            if not last: a(f'v_xor_b32 {v(vPOLL)}, 1, {v(vPOLL)}')
            a(f'v_lshl_add_u32 {v(d)}, {v(vPOLL)}, {4 if last else 1}, {v(d)}')
            a(f'v_bfe_u32 {v(vPOLL)}, {v(vLANE)}, {sh}, 2'); a(f'v_add_u32 {v(d)}, {v(d)}, {v(vPOLL)}')
            a(f'v_mul_u32_u24 {v(d)}, 1152, {v(d)}')
            if nb == 2:
                a(f'v_lshrrev_b32 {v(vPOLL)}, 3, {v(vLANE)}'); a(f'v_and_b32 {v(vPOLL)}, 2, {v(vPOLL)}')
                a(f'v_xor_b32 {v(vPOLL)}, {v(vPOLL)}, {v(vLANE)}'); a(f'v_and_b32 {v(vPOLL)}, 3, {v(vPOLL)}')
            else:
                a(f'v_and_b32 {v(vPOLL)}, 1, {v(vLANE)}')
            a(f'v_lshl_add_u32 {v(d)}, {v(vPOLL)}, 4, {v(d)}')
        a(f's_mul_i32 {s(sT0)}, {s(sJ)}, {72*1152}')
        if not last:
            a(f's_mul_i32 {s(sT1)}, {s(sTG)}, {4*1152}'); a(f's_add_u32 {s(sT0)}, {s(sT0)}, {s(sT1)}')
        colfix(sT0)
    def chrow(ch):
        if ch in (0, 1):
            a(f's_mul_i32 {s(sT2)}, {s(sC)}, {128*1152}')
            if ch: a(f's_add_u32 {s(sT2)}, {s(sT2)}, {64*1152}')
        elif ch == 5: a(f's_mov_b32 {s(sT2)}, {512*1152}')
        elif ch in (6, 'x'): a(f's_mov_b32 {s(sT2)}, 0')
        else:
            u = ch - 2 if ch < 5 else ch - 7
            a(f's_add_u32 {s(sT2)}, {s(sC)}, {u+1}'); a(f's_and_b32 {s(sT2)}, {s(sT2)}, 3'); a(f's_mul_i32 {s(sT2)}, {s(sT2)}, {128*1152}')
            if ch >= 7: a(f's_add_u32 {s(sT2)}, {s(sT2)}, {64*1152}')
    def w4(setA, ch, tag):
        sr = SWO if ch in (6, 'x') else SW4
        base = (A4CH if setA else B4CH)[ch]; g0 = 0 if setA else 128
        def setup():
            chrow(ch)
            if ch == 'x': a(f's_mov_b32 {s(sT3)}, 0')
            else: a(f's_mul_i32 {s(sT3)}, {s(sTG)}, {2560 if setA else 2048}')
        def fp():
            setup()
            if ch == 'x':
                a(f's_lshl_b32 {s(sT0)}, {s(sTG)}, 4'); a(f's_mov_b64 {s(sM,2)}, 0xffff'); a(f's_lshl_b64 exec, {s(sM,2)}, {s(sT0)}')
            dma(a, sr, vDP, sT2, sT3, base, g0, tag=tag); dma(a, sr, vDP, sT2, sT3, base + 1024, g0 + 64, tag=tag)
            if ch == 'x': setexec(a, -1)
        def fo():
            setup()
            if ch == 'x':
                a(f's_lshl_b32 {s(sT0)}, {s(sTG)}, 3'); a(f's_mov_b64 {s(sM,2)}, 0xff'); a(f's_lshl_b64 exec, {s(sM,2)}, {s(sT0)}')
            else: setexec(a, 0xffffffff)
            dma(a, sr, vDO, sT2, sT3, base + 2048, 0, tag=tag)
            setexec(a, -1)
        return [fp, fo] if setA else [fp]
    def p3late():
        a(f's_mov_b32 {s(sT2)}, {8*64*9216}')
        dma(a, SW3, vDP, sT2, sR5, L3P3L, 192, tag='b1')
    wo = lambda setA, tag: [lambda: woinit(False)] + w4(setA, 6, tag)
    wox = lambda setA, tag: [lambda: woinit(True)] + w4(setA, 'x', tag)
    batch1 = [p3late] + wo(True, 'b1') + wox(True, 'b1') + [w4init] + sum((w4(True, ch, 'b1') for ch in (0, 1, 2, 3, 4, 5, 7)), [])
    batch2 = w4(True, 8, 'b2') + w4(True, 9, 'b2') + w4(False, 0, 'b2') + w4(False, 1, 'b2')
    batch3 = sum((w4(False, ch, 'b3') for ch in (2, 3, 4, 5)), []) + wox(False, 'b3')
    batch4 = wo(False, 'b4') + [w4init] + sum((w4(False, ch, 'b4') for ch in (7, 8, 9)), [])
    def hload(slot0, late):
        for u in range(3):
            a(f's_add_u32 {s(sT4)}, {s(sC)}, {u+1}'); a(f's_and_b32 {s(sT4)}, {s(sT4)}, 3'); a(f's_lshl_b32 {s(sT4)}, {s(sT4)}, 13')
            a(f's_add_u32 {s(sT4)}, {s(sT4)}, {s(sH)}')
            if late: a(f's_add_u32 {s(sT4)}, {s(sT4)}, 4096')
            for n in range(4):
                a(f'buffer_load_dwordx4 {v(S4B[slot0 + 2*u] + 4*n, 4)}, {v(vL16)}, {srd(SWS)}, {s(sT4)} offen offset:{n*1024} sc1')
    def early_loads():
        hload(4, False)
        a(f's_add_u32 {s(sT4)}, {s(sH)}, 32768')
        for n in range(4):
            a(f'buffer_load_dwordx4 {v(S4B[10] + 4*n, 4)}, {v(vL16)}, {srd(SWS)}, {s(sT4)} offen offset:{n*1024} sc1')
        if cfg.no_a:
            for r in range(20): a(f'v_mov_b32 {v(S4B[12] + r)}, 0')
        else:
            a(f's_sub_u32 {s(sT4)}, {s(sE)}, {MB_E}'); a(f's_mul_i32 {s(sT4)}, {s(sT4)}, 10'); a(f's_add_u32 {s(sT4)}, {s(sT4)}, {WS_O + 1024}')
            for n in range(5):
                if n == 0:
                    a(f's_sub_u32 {s(sT0)}, {s(sT4)}, 1024')
                    a(f'buffer_load_dwordx4 {v(S4B[12], 4)}, {v(vL16)}, {srd(SWS)}, {s(sT0)} offen sc1')
                else:
                    a(f'buffer_load_dwordx4 {v(S4B[12] + 4*n, 4)}, {v(vL16)}, {srd(SWS)}, {s(sT4)} offen offset:{(n-1)*1024} sc1')
    def oddfix():
        for n in range(2):
            b = S4B[10 + n]
            a(f'v_swap_b32 {v(b+2)}, {v(b+4)}'); a(f'v_swap_b32 {v(b+3)}, {v(b+5)}')
    def steps4(tiles, acc0, setA, slots, first):
        St = []
        for sl in slots:
            for n, (what, p, eta) in enumerate(tiles):
                ar = Od if what == 'odd' else (Lo, Hi)[eta]
                rd = []
                for h in range(1 if sl == 14 else 2):
                    ch, rb = s4_rb(sl, h)
                    if setA: ad = A4CH[ch] + rb*2560 + (2048 if what == 'odd' else p*1024)
                    else: ad = B4CH[ch] + rb*2048 + (p - 2)*1024
                    rd.append((ar, ad))
                def mf(fr, sl=sl, n=n):
                    k16 = sl == 14
                    return [(lambda i=i: mfma(a, acc0(n, i), fr, S4B[sl] + (2 if k16 else 4)*i, None if sl == first else acc0(n, i), k16)) for i in range(2)]
                St.append((rd, mf))
        return St
    accA4 = lambda n, i: ACC4O + 4*i if n == 0 else ACC4 + 16*((n-1)//2) + 8*i + 4*((n-1) % 2)
    A4a = steps4(TA, accA4, True, range(0, 8), 0)
    A4b = steps4(TA, accA4, True, range(8, 21), 0)
    B4a = steps4([('p', 2, 0), ('p', 2, 1)], lambda n, i: ACC4 + 8*i + 4*n, False, range(21), 0)
    B4b = steps4([('p', 3, 0), ('p', 3, 1)], lambda n, i: ACC4 + 16 + 8*i + 4*n, False, range(21), 0)
    def pstore(acc, unit, t):
        run(pack(a, t, acc, 4))
        a(f's_add_u32 {s(sT4)}, {s(sP)}, {unit*8192}')
        a(f'buffer_store_dwordx4 {v(t,4)}, {v(vL16)}, {srd(SWS)}, {s(sT4)} offen sc1', tag='ps')
    def pflag(stage):
        a.wait_vm_tag('ps')
        a(f's_add_u32 {s(sT4)}, {s(sR3)}, {s(sW)}'); a(f's_lshl_b32 {s(sT4)}, {s(sT4)}, 5'); a(f's_add_u32 {s(sT4)}, {s(sT4)}, {s(sJ)}')
        a(f's_lshl_b32 {s(sT4)}, {s(sT4)}, 2'); a(f's_add_u32 {s(sT4)}, {s(sT4)}, {MB_P + stage*32}')
        flag_write(a, vL16, sT4, 1, vPOLL)
    def E4a():
        for u in range(4): pstore(ACC4 + 8*u, u, vTMP + 4*(u & 1))
        pstore(ACC4O, 8, vTMP)
    def b3b_pre():
        cs_read(CS3, 6, 2)
        for r in range(4): a(f'v_mov_b32 {v(ONE3+r)}, 0x3f803f80')
        ebox(); poll_issue(a, ONE3 + 4, ONE3 + 5, sT5, M1)
    def b3b_post():
        ebox(); poll_check(a, ONE3 + 4, ONE3 + 5, sT5, M1)
        early_loads()
    def late():
        ebox(); poll(a, vPOLL, vTMP, sT5, 0xF00); hload(15, True)

    stamp(a, 7)
    if not Y:
        R.block(A3); barrier(a)
        stamp(a, 8)
        n = R.prefetch(B3a, 4); run(G3a()); barrier(a)
        stamp(a, 9)
        R.block(B3a, n, hooks={20: lambda: eflag(0)})
        n = R.prefetch(B3b, 4); run(gelu_pair(ACCB, 2, CS)); barrier(a)
        stamp(a, 10)
        b3b_pre(); R.block(B3b, n); b3b_post()
        n = R.prefetch(A4a, 4); run(gelu_pair(ACCB, 3, CS3, read=False)); barrier(a)
        stamp(a, 11)
        R.block(A4a, n, hooks={20: lambda: eflag(8)})
        n = R.prefetch(A4b, 5); late(); barrier(a)
        stamp(a, 12)
        R.block(A4b, n, hooks={5: oddfix})
        E4a(); pflag(0); barrier(a)
        stamp(a, 13)
    else:
        n = R.prefetch(A3, 5); barrier(a)
        stamp(a, 8)
        R.block(A3, n); barrier(a)
        stamp(a, 9)
        n = R.prefetch(B3a, 4); interleave(a, G3a(), batch1, start=2)
        R.block(B3a, n); eflag(0); a.wait_vm_tag('b1'); barrier(a)
        stamp(a, 10)
        n = R.prefetch(B3b, 4); interleave(a, gelu_pair(ACCB, 2, CS), batch2, start=1)
        b3b_pre(); R.block(B3b, n); a.wait_vm_tag('b2'); barrier(a)
        stamp(a, 11)
        b3b_post()
        n = R.prefetch(A4a, 4); interleave(a, gelu_pair(ACCB, 3, CS3, read=False), batch3)
        R.block(A4a, n, hooks={20: lambda: eflag(8)}); barrier(a)
        stamp(a, 12)
        n = R.prefetch(A4b, 5); late(); run(batch4)
        R.block(A4b, n, hooks={5: oddfix})
        a.wait_vm_tag('b3', 'b4'); barrier(a)
        stamp(a, 13)
        E4a(); pflag(0)
    R.block(B4a)
    n = R.prefetch(B4b, 5)
    pstore(ACC4, 4, vTMP); pstore(ACC4 + 8, 5, vTMP + 4)
    R.block(B4b, n, hooks={24: lambda: pflag(1)})
    pstore(ACC4 + 16, 6, vTMP); pstore(ACC4 + 24, 7, vTMP + 4)
    stamp(a, 14)
    sU = sR0
    def unit_loads(odd):
        a(f's_lshl_b32 {s(sT0)}, {s(sMI)}, 3'); a(f's_add_u32 {s(sT0)}, {s(sT0)}, {s(sJ)}'); a(f's_lshl_b32 {s(sT0)}, {s(sT0)}, 1')
        if not odd:
            a(f's_and_b32 {s(sT1)}, {s(sU)}, 1'); a(f's_add_u32 {s(sT0)}, {s(sT0)}, {s(sT1)}')
        a(f's_mul_i32 {s(sT0)}, {s(sT0)}, 18432')
        if not odd:
            a(f's_lshr_b32 {s(sT1)}, {s(sU)}, 1'); a(f's_lshl_b32 {s(sT2)}, {s(sC)}, 2'); a(f's_add_u32 {s(sT1)}, {s(sT1)}, {s(sT2)}')
            a(f's_lshl_b32 {s(sT2)}, {s(sT1)}, 10'); a(f's_add_u32 {s(sT2)}, {s(sT2)}, {s(sT0)}'); a(f's_add_u32 {s(sT2)}, {s(sT2)}, {WS_X1}')
            a(f'buffer_load_dwordx4 {v(32,4)}, {v(vL16)}, {srd(SWS)}, {s(sT2)} offen sc1')
            a(f's_lshl_b32 {s(sT1)}, {s(sT1)}, 6'); a(f's_add_u32 {s(sR1)}, {s(sT1)}, {s(sT0)}')
        else:
            a(f's_lshl_b32 {s(sT2)}, {s(sC)}, 9'); a(f's_add_u32 {s(sT2)}, {s(sT2)}, {s(sT0)}'); a(f's_add_u32 {s(sT2)}, {s(sT2)}, {WS_X1 + 16384}')
            a(f'v_lshlrev_b32 {v(41)}, 3, {v(vLANE)}')
            a(f'buffer_load_dwordx2 {v(32,2)}, {v(41)}, {srd(SWS)}, {s(sT2)} offen sc1')
            a(f's_add_u32 {s(sT2)}, {s(sT2)}, 18432')
            a(f'buffer_load_dwordx2 {v(34,2)}, {v(41)}, {srd(SWS)}, {s(sT2)} offen sc1')
            a(f's_lshl_b32 {s(sT1)}, {s(sC)}, 5'); a(f's_add_u32 {s(sT1)}, {s(sT1)}, 1024'); a(f's_add_u32 {s(sR1)}, {s(sT1)}, {s(sT0)}')
        dl = 18432 if odd else 32
        a(f'v_and_b32 {v(41)}, 15, {v(vLANE)}'); a(f'v_mul_u32_u24 {v(40)}, 1152, {v(41)}')
        a(f'v_lshrrev_b32 {v(41)}, 4, {v(vLANE)}'); a(f'v_lshl_add_u32 {v(42)}, {v(41)}, 3, {v(40)}')
        a(f'buffer_load_dwordx2 {v(36,2)}, {v(42)}, {srd(SX)}, {s(sR1)} offen')
        a(f's_add_u32 {s(sT2)}, {s(sR1)}, {dl}')
        a(f'buffer_load_dwordx2 {v(38,2)}, {v(42)}, {srd(SX)}, {s(sT2)} offen')
        a(f'v_lshrrev_b32 {v(42)}, 1, {v(41)}'); a(f'v_lshl_add_u32 {v(40)}, {v(42)}, 4, {v(40)}')
        a(f'v_and_b32 {v(41)}, 1, {v(41)}'); a(f'v_mul_u32_u24 {v(41)}, {dl}, {v(41)}'); a(f'v_add_u32 {v(40)}, {v(40)}, {v(41)}')
    def unit_final(stage_expr):
        a(f's_add_u32 {s(sT0)}, {s(sR3)}, {s(sJ)}')
        a(f's_lshl_b32 {s(sT5)}, {s(sT0)}, 7'); a(f's_add_u32 {s(sT5)}, {s(sT5)}, {MB_P}')
        if stage_expr: a(f's_add_u32 {s(sT5)}, {s(sT5)}, {stage_expr}')
        a(f's_mul_i32 {s(sT4)}, {s(sT0)}, 73728'); a(f's_lshl_b32 {s(sT1)}, {s(sU)}, 13'); a(f's_add_u32 {s(sT4)}, {s(sT4)}, {s(sT1)}')
        a(f's_add_u32 {s(sT4)}, {s(sT4)}, {WS_P}'); a(f's_add_u32 {s(sT3)}, {s(sT4)}, 4096')
        poll(a, vPOLL, vTMP, sT5, 0xFF)
        for n in range(8):
            a(f'buffer_load_dwordx4 {v(4*n,4)}, {v(vL16)}, {srd(SWS)}, {s(sT4 if n < 4 else sT3)} offen offset:{(n & 3)*1024} sc1')
        S_ = 44
        for r in range(4):
            a(f'v_lshlrev_b32 {v(S_+2*r)}, 16, {v(32+r)}'); a(f'v_and_b32 {v(S_+2*r+1)}, 0xffff0000, {v(32+r)}')
        for src in [36] + [4*n for n in range(8)]:
            for r in range(4):
                a(f'v_lshlrev_b32 {v(52+r)}, 16, {v(src+r)}'); a(f'v_and_b32 {v(src+r)}, 0xffff0000, {v(src+r)}')
            for r in range(4):
                a(f'v_add_f32 {v(S_+2*r)}, {v(S_+2*r)}, {v(52+r)}'); a(f'v_add_f32 {v(S_+2*r+1)}, {v(S_+2*r+1)}, {v(src+r)}')
        run(pack(a, 56, S_, 4))
        a(f'v_permlane16_swap_b32 {v(56)}, {v(58)}'); a(f'v_permlane16_swap_b32 {v(57)}, {v(59)}')
        a(f'buffer_store_dwordx4 {v(56,4)}, {v(40)}, {srd(SOUT)}, {s(sR1)} offen')
    if Y:
        a(f's_mov_b32 {s(sU)}, {s(sTG)}')
        unit_loads(False); pflag(2); unit_final(None)
    else:
        pflag(2)
        sk = a.newlabel('noodd')
        a(f's_cmp_lg_u32 {s(sTG)}, 0'); a(f's_cbranch_scc1 {sk}')
        a(f's_mov_b32 {s(sU)}, 8'); unit_loads(True); unit_final(None)
        a.label(sk); a.nop(2)
        a(f's_xor_b32 {s(sU)}, {s(sTG)}, 6')
        a(f's_cmp_lt_u32 {s(sTG)}, 2'); a(f's_cselect_b32 {s(sR2)}, 64, 32')
        unit_loads(False); unit_final(s(sR2))
    stamp(a, 15)
    if cfg.stamps:
        a(f'v_mov_b32 {v(0)}, 0')
        for i in range(24):
            a(f'v_mov_b32 {v(1)}, {s(sSTAMP+i)}'); a(f'v_cmp_eq_u32 vcc, {i}, {v(vLANE)}'); a(f'v_cndmask_b32 {v(0)}, {v(0)}, {v(1)}, vcc')
        a(f's_lshl_b32 {s(sT0)}, s2, 3'); a(f's_add_u32 {s(sT0)}, {s(sT0)}, {s(sW)}'); a(f's_lshl_b32 {s(sT0)}, {s(sT0)}, 7')
        a(f's_add_u32 {s(sT0)}, {s(sT0)}, {WS_STAMP}')
        a(f'v_lshlrev_b32 {v(1)}, 2, {v(vLANE)}'); setexec(a, 0xffffffff)
        a(f'buffer_store_dword {v(0)}, {v(1)}, {srd(SWS)}, {s(sT0)} offen')
    a('s_endpgm')

def softmax_unit(a, P, cexp, EP, EN, OUT, T):
    L = []
    E = lambda t: L.append(lambda: a(t))
    mx, mn, s0, s1, s2, s3 = T, T+1, T+2, T+3, T+4, T+5
    E(f'v_max3_f32 {v(mx)}, {v(P)}, {v(P+1)}, {v(P+2)}'); E(f'v_min3_f32 {v(mn)}, {v(P)}, {v(P+1)}, {v(P+2)}')
    for r in range(3, 17, 2):
        E(f'v_max3_f32 {v(mx)}, {v(mx)}, {v(P+r)}, {v(P+r+1)}'); E(f'v_min3_f32 {v(mn)}, {v(mn)}, {v(P+r)}, {v(P+r+1)}')
    E(f'v_max_f32 {v(mx)}, {v(mx)}, {v(P+17)}'); E(f'v_min_f32 {v(mn)}, {v(mn)}, {v(P+17)}')
    E(f'v_mul_f32 {v(mx)}, {v(mx)}, {v(cexp)}'); E(f'v_mul_f32 {v(mn)}, {v(mn)}, {v(cexp)}')
    for r in range(18): E(f'v_fma_f32 {v(EP+r)}, {v(P+r)}, {v(cexp)}, -{v(mx)}')
    for r in range(18):
        E(f'v_exp_f32 {v(EP+r)}, {v(EP+r)}'); E(f'v_fma_f32 {v(EN+r)}, -{v(P+r)}, {v(cexp)}, {v(mn)}')
    for r in range(18):
        E(f'v_exp_f32 {v(EN+r)}, {v(EN+r)}')
        if r == 0: E(f'v_add_f32 {v(s0)}, {v(EP)}, {v(EP+1)}')
        elif r == 1: E(f'v_add_f32 {v(s1)}, {v(EP+2)}, {v(EP+3)}')
        elif r < 16: E(f'v_add_f32 {v((s0, s1)[r & 1])}, {v((s0, s1)[r & 1])}, {v(EP+r+2)}')
        elif r == 16: E(f'v_add_f32 {v(s0)}, {v(s0)}, {v(s1)}')
    E(f'v_rcp_f32 {v(s0)}, {v(s0)}')
    E(f'v_add_f32 {v(s2)}, {v(EN)}, {v(EN+1)}'); E(f'v_add_f32 {v(s3)}, {v(EN+2)}, {v(EN+3)}')
    for r in range(4, 18): E(f'v_add_f32 {v((s2, s3)[r & 1])}, {v((s2, s3)[r & 1])}, {v(EN+r)}')
    E(f'v_add_f32 {v(s2)}, {v(s2)}, {v(s3)}'); E(f'v_rcp_f32 {v(s2)}, {v(s2)}')
    for r in range(18): E(f'v_mul_f32 {v(EP+r)}, {v(EP+r)}, {v(s0)}')
    L += pack(a, OUT, EP, 9)
    for r in range(18): E(f'v_mul_f32 {v(EN+r)}, {v(EN+r)}, {v(s2)}')
    L += pack(a, OUT + 9, EN, 9)
    return L

def front_A_stub(a, Y):
    kargs_ready(a)
    get_nonce_issue(a, 200); get_nonce_check(a, 200)
    if not Y:
        e2_poll(a); x_loads(a); s3_addr_init(a); barrier(a)
    else:
        run(w3_dma_list(a)); e2_poll(a); a.wait_all(lg=False); barrier(a); x_loads(a); cs_w3(a); s3_addr_init(a)

def front_A(a, Y):
    if cfg.no_a: return front_A_stub(a, Y)
    sMT, sHG = sR0, sR1
    LPHI, LST, LCK, SL0, SLOT = 0, 4096, 5120, 24576, 34816
    LPH, LV, LWQ, LCQ = 6144, 142336, 59392, LSC2
    EVEN = 0x0000FFFF0000FFFF
    dX, dW, aA, aB, t0, t1, t2, vN = 224, 225, 228, 229, 230, 231, 232, 233
    if Y: XR, AF, ACC = 0, 144, 184
    else: BF, AF, CF, ACC, CSA, GR, ONES, aC, PH = 0, 16, 56, 80, 120, 132, 148, 234, 152
    a(f's_lshr_b32 {s(sT0)}, {s(sXC)}, 1'); a(f's_lshl_b32 {s(sT0)}, {s(sT0)}, 2'); a(f's_bfe_u32 {s(sT1)}, {s(sIDX)}, 0x20002')
    a(f's_add_u32 {s(sMT)}, {s(sT0)}, {s(sT1)}')
    a(f's_and_b32 {s(sT0)}, {s(sXC)}, 1'); a(f's_lshl_b32 {s(sT0)}, {s(sT0)}, 2'); a(f's_and_b32 {s(sT1)}, {s(sIDX)}, 3')
    a(f's_add_u32 {s(sHG)}, {s(sT0)}, {s(sT1)}')
    pat_x(a, dX, t0, t1)
    a(f's_lshl_b32 {s(sT0)}, {s(sMT)}, 3'); a(f's_add_u32 {s(sT0)}, {s(sT0)}, {s(sW)}'); a(f's_mul_i32 {s(sT0)}, {s(sT0)}, 18432')
    a(f'v_add_u32 {v(dX)}, {s(sT0)}, {v(dX)}')
    a(f's_lshl_b32 {s(sR2)}, {s(sW)}, 10')
    a(f's_mul_i32 {s(sR3)}, {s(sW)}, 2304')
    a(f's_lshr_b32 {s(sT0)}, {s(sTG)}, 1'); a(f's_lshl_b32 {s(sT0)}, {s(sT0)}, 5')
    a(f's_and_b32 {s(sT1)}, {s(sTG)}, 1'); a(f's_lshl_b32 {s(sT1)}, {s(sT1)}, 2'); a(f's_add_u32 {s(sT0)}, {s(sT0)}, {s(sT1)}')
    a(f's_mul_i32 {s(sT0)}, {s(sT0)}, 3456'); a(f's_mul_i32 {s(sT1)}, {s(sHG)}, 144'); a(f's_add_u32 {s(sT0)}, {s(sT0)}, {s(sT1)}')
    for i in range(3):
        a(f'v_add_u32 {v(t0)}, {48*i}, {v(vLANE)}')
        a(f'v_mul_u32_u24 {v(t1)}, 7282, {v(t0)}'); a(f'v_lshrrev_b32 {v(t1)}, 16, {v(t1)}')
        a(f'v_mul_u32_u24 {v(t2)}, 9, {v(t1)}'); a(f'v_sub_u32 {v(t0)}, {v(t0)}, {v(t2)}')
        a(f'v_and_b32 {v(dW+i)}, 9, {v(t1)}')
        a(f'v_and_b32 {v(t2)}, 2, {v(t1)}'); a(f'v_lshl_add_u32 {v(dW+i)}, {v(t2)}, 3, {v(dW+i)}')
        a(f'v_bfe_u32 {v(t2)}, {v(t1)}, 2, 1'); a(f'v_lshl_add_u32 {v(dW+i)}, {v(t2)}, 1, {v(dW+i)}')
        a(f'v_mul_u32_u24 {v(dW+i)}, 3456, {v(dW+i)}'); a(f'v_lshl_add_u32 {v(dW+i)}, {v(t0)}, 4, {v(dW+i)}')
        a(f'v_add_u32 {v(dW+i)}, {s(sT0)}, {v(dW+i)}')
    def wdma(goff, lds, tag):
        a(f's_mov_b32 {s(sT2)}, {goff}')
        setexec(a, (0xffff << 32) | 0xffffffff)
        for i in range(3): dma(a, SQKV, dW + i, sT2, sR3, lds + 768*i, 0, tag=tag)
        setexec(a, -1)
    def load1(G):
        b = SL0 + (G % 4)*SLOT
        def fx():
            a(f's_mov_b32 {s(sT2)}, {G*128}')
            dma(a, SX, dX, sT2, sR2, b + 18432, 0, tag=('g', G)); dma(a, SX, dX, sT2, sR2, b + 18432 + 8192, 64, tag=('g', G))
        return [fx, lambda: wdma(G*64*3456 + (2304 if Y else 1152), b, ('g', G))]
    def loadq(r):
        if r == 4 and Y: return []
        return [lambda: wdma((r*128 + (64 if Y else 0))*3456, LWQ + r*18432, 'wq')]
    kargs_ready(a)
    for G in range(4): run(load1(G))
    a(f'v_bfe_u32 {v(t0)}, {v(vLANE)}, 2, 1'); a(f'v_bfe_u32 {v(t1)}, {v(vLANE)}, 5, 1'); a(f'v_lshl_add_u32 {v(t0)}, {v(t1)}, 1, {v(t0)}')
    a(f'v_bfe_u32 {v(t1)}, {v(vLANE)}, 3, 2'); a(f'v_lshl_add_u32 {v(t0)}, {v(t1)}, 2, {v(t0)}')
    a(f'v_mul_u32_u24 {v(aA)}, 144, {v(t0)}')
    a(f'v_and_b32 {v(t0)}, 1, {v(vLANE)}'); a(f'v_lshl_add_u32 {v(aA)}, {v(t0)}, 5, {v(aA)}')
    a(f'v_bfe_u32 {v(t0)}, {v(vLANE)}, 1, 1'); a(f'v_mul_u32_u24 {v(t0)}, 72, {v(t0)}'); a(f'v_add_u32 {v(aA)}, {v(aA)}, {v(t0)}')
    pat_xread(a, aB, t0, t1)
    a(f's_lshl_b32 {s(sT0)}, {s(sTG)}, 11'); a(f'v_add_u32 {v(aB)}, {s(sT0)}, {v(aB)}')
    RA, RB = AddrReg(aA), AddrReg(aB)
    if not Y:
        a(f's_lshl_b32 {s(sT0)}, {s(sTG)}, 3'); a(f'v_add_u32 {v(aC)}, {s(sT0)}, {v(aA)}')
        a(f's_and_b32 {s(sT0)}, {s(sTG)}, 1'); a(f's_mul_i32 {s(sT0)}, {s(sT0)}, 9216'); a(f's_add_u32 {s(sT0)}, {s(sT0)}, 32')
        a(f'v_add_u32 {v(aC+1)}, {s(sT0)}, {v(aA)}')
        RC0, RC1 = AddrReg(aC), AddrReg(aC + 1)
        for r in range(4): a(f'v_mov_b32 {v(ONES+r)}, 0x3f803f80')
        a(f's_lshl_b32 {s(sT0)}, {s(sTG)}, 6'); a(f's_mul_i32 {s(sT1)}, {s(sHG)}, 2592')
        for i in range(3):
            a(f'v_add_u32 {v(t0)}, {s(sT0)}, {v(vLANE)}')
            if i: a(f'v_add_u32 {v(t0)}, {256*i}, {v(t0)}')
            a(f'v_lshlrev_b32 {v(t1)}, 2, {v(t0)}')
            a(f'buffer_load_dword {v(PH+i)}, {v(t1)}, {srd(SPHI)}, {s(sT1)} offen')
            ad = PH + 3 + i
            a(f'v_mul_u32_u24 {v(t1)}, 7282, {v(t0)}'); a(f'v_lshrrev_b32 {v(t1)}, 16, {v(t1)}')
            a(f'v_mul_u32_u24 {v(t2)}, 9, {v(t1)}'); a(f'v_sub_u32 {v(ad)}, {v(t0)}, {v(t2)}'); a(f'v_lshlrev_b32 {v(ad)}, 2, {v(ad)}')
            a(f'v_mul_u32_u24 {v(t2)}, 3641, {v(t1)}'); a(f'v_lshrrev_b32 {v(t2)}, 16, {v(t2)}')
            a(f'v_mul_u32_u24 {v(t0)}, 18, {v(t2)}'); a(f'v_sub_u32 {v(t1)}, {v(t1)}, {v(t0)}')
            a(f'v_mul_u32_u24 {v(t0)}, 800, {v(t2)}'); a(f'v_add_u32 {v(ad)}, {v(ad)}, {v(t0)}')
            a(f'v_and_b32 {v(t2)}, 1, {v(t2)}'); a(f'v_lshl_add_u32 {v(t1)}, {v(t2)}, 1, {v(t1)}')
            a(f'v_add_u32 {v(t0)}, 16, {v(t1)}'); a(f'v_subrev_u32 {v(t1)}, 2, {v(t1)}'); a(f'v_min_u32 {v(t1)}, {v(t1)}, {v(t0)}')
            a(f'v_mul_u32_u24 {v(t1)}, 40, {v(t1)}'); a(f'v_add_u32 {v(ad)}, {v(ad)}, {v(t1)}')
        a(f's_lshl_b32 {s(sT0)}, {s(sTG)}, 10'); a(f'v_add_u32 {v(t0)}, {s(sT0)}, {v(vL16)}')
        for r in range(4): a(f'v_mov_b32 {v(GR+r)}, 0')
        a(f'ds_write_b128 {v(t0)}, {v(GR,4)}')
        a.wait_all(vm=False)
    def phiwrite():
        a(f'ds_write_b32 {v(PH+3)}, {v(PH)}'); a(f'ds_write_b32 {v(PH+4)}, {v(PH+1)}')
        a(f's_lshl_b32 {s(sT0)}, {s(sTG)}, 6'); a(f'v_add_u32 {v(t0)}, {s(sT0)}, {v(vLANE)}')
        a(f'v_cmp_gt_u32 vcc, 136, {v(t0)}')
        a(f'v_cndmask_b32 {v(PH+5)}, {v(PH+4)}, {v(PH+5)}, vcc'); a(f'v_cndmask_b32 {v(PH+2)}, {v(PH+1)}, {v(PH+2)}, vcc')
        a(f'ds_write_b32 {v(PH+5)}, {v(PH+2)}')
    def reads1(pos):
        b = SL0 + ((pos // 2) % 4)*SLOT
        xb = b + 18432 + (pos & 1)*8192; br = XR + 8*pos if Y else BF + 8*(pos & 1)
        L = [lambda: dsr(a, 4, br, RB, xb), lambda: dsr(a, 4, br + 4, RB, xb + 1024)]
        wb = b + 2*(pos & 1)*2304
        for i in range(5):
            for h in range(2):
                L.append(lambda i=i, h=h: tr(a, AF + 20*(pos & 1) + 4*i + 2*h, RA, wb + (9216 if Y else 0) + h*2304 + 8*i))
        if not Y:
            for n, (ar, o) in enumerate(((RC0, 0), (RC0, 9216), (RC1, 0))):
                for h in range(2):
                    L.append(lambda n=n, ar=ar, o=o, h=h: tr(a, CF + 12*(pos & 1) + 4*n + 2*h, ar, wb + o + h*2304))
        return L
    def mf1(pos):
        z = pos == 0; A_ = AF + 20*(pos & 1); B_ = XR + 8*pos if Y else BF + 8*(pos & 1)
        M = lambda d, x, y: (lambda: mfma(a, d, x, y, None if z else d))
        L = []
        for i in range(5): L += [M(ACC + 4*i, A_ + 4*i, B_), M(ACC + 20 + 4*i, A_ + 4*i, B_ + 4)]
        if not Y:
            L += [M(CSA + 4*n, CF + 12*(pos & 1) + 4*n, ONES) for n in range(3)]
            L += [M(GR, B_, B_), M(GR+4, ONES, B_), M(GR+8, B_+4, B_+4), M(GR+12, ONES, B_+4)]
        return L
    def refill1(G):
        L = []
        if G + 3 < 9: L = load1(G + 3)
        elif G == 6: L = loadq(0)
        elif G == 7: L = loadq(1) + loadq(2)
        else: L = loadq(3) + loadq(4)
        if G == 4 and not Y: L.append(phiwrite)
        if G == 5: L.append(lambda: get_nonce_issue(a, vN))
        return L
    stamp(a, 0)
    front_loop(a, reads1, mf1, refill1, lambda G: ('g', G))
    stamp(a, 1)
    if Y: ST, CSV, T, PKB = 144, 148, 168, 172
    else: ST, CSV, T, PKB = 0, 4, 24, 32
    a(f'v_and_b32 {v(t2)}, 15, {v(vLANE)}'); a(f'v_lshlrev_b32 {v(t2)}, 3, {v(t2)}')
    a(f's_lshl_b32 {s(sT0)}, {s(sTG)}, 8'); a(f's_add_u32 {s(sT0)}, {s(sT0)}, {LST}'); a(f'v_add_u32 {v(t2)}, {s(sT0)}, {v(t2)}')
    a(f'v_and_b32 {v(t1)}, 48, {v(vLANE)}')
    if not Y:
        for i in range(2):
            diag_select(a, T, GR + 8*i, t0)
            mean_var(a, GR + 8*i + 4, T, ST + 2*i, T + 1)
            a(f'v_add_f32 {v(T+1)}, {hx(f2u(1e-5))}, {v(T+1)}'); a(f'v_rsq_f32 {v(ST+2*i+1)}, {v(T+1)}')
        setexec(a, DIAG)
        a(f'ds_write_b64 {v(t2)}, {v(ST,2)}'); a(f'ds_write_b64 {v(t2)}, {v(ST+2,2)} offset:128')
        setexec(a, -1)
        a(f's_lshl_b32 {s(sT0)}, {s(sTG)}, 6'); a(f'v_add_u32 {v(t0)}, {s(sT0)}, {v(t1)}')
        a(f's_and_b32 {s(sT0)}, {s(sTG)}, 1'); a(f's_mul_i32 {s(sT0)}, {s(sT0)}, 320'); a(f'v_add_u32 {v(T)}, {s(sT0)}, {v(t1)}')
        setexec(a, 0x0001000100010001)
        a(f'ds_write_b128 {v(t0)}, {v(CSA,4)} offset:{LCK}'); a(f'ds_write_b128 {v(t0)}, {v(CSA+4,4)} offset:{LCK+320}')
        a(f'ds_write_b128 {v(T)}, {v(CSA+8,4)} offset:{LCK+256}')
        setexec(a, -1)
    a.wait_all(vm=False); barrier(a)
    a(f'ds_read_b64 {v(ST,2)}, {v(t2)}'); a(f'ds_read_b64 {v(ST+2,2)}, {v(t2)} offset:128')
    for i in range(5): a(f'ds_read_b128 {v(CSV+4*i,4)}, {v(t1)} offset:{LCK + (320 if Y else 0) + 64*i}')
    def phi_addr(d):
        a(f'v_bfe_u32 {v(t0)}, {v(vLANE)}, 4, 2'); a(f'v_and_b32 {v(d)}, 3, {v(vLANE)}')
        a(f'v_cmp_eq_u32 vcc, {v(t0)}, {v(d)}'); a(f'v_cndmask_b32 {v(t0)}, 4, {v(t0)}, vcc'); a(f'v_mul_u32_u24 {v(t0)}, 800, {v(t0)}')
        a(f'v_bfe_u32 {v(d)}, {v(vLANE)}, 2, 2'); a(f'v_mul_u32_u24 {v(d)}, 40, {v(d)}'); a(f'v_add_u32 {v(d)}, {v(d)}, {v(t0)}')
    def phi_frags(F, d):
        for i in range(5):
            for n in range(5): a(f'ds_read_b64_tr_b16 {v(F + 10*i + 2*n, 2)}, {v(d)} offset:{LPHI + n*160 + 8*i}')
    def canon(acc, cs, nm, dst, scale=None):
        s_mask = s(sM, 2)
        a(f's_mov_b32 {s(sM)}, 0xffff'); a(f's_mov_b32 {s(sM+1)}, 0xffff')
        for r in range(20): a(f'v_fmac_f32 {v(acc+r)}, {v(nm)}, {v(cs+r)}')
        for r in range(2): a(f'v_cndmask_b32 {v(acc+18+r)}, {v(acc+18+r)}, {v(acc+r)}, {s_mask}')
        if scale is not None:
            for r in range(2, 20): a(f'v_mul_f32 {v(acc+r)}, {v(acc+r)}, {v(scale)}')
        run(pack(a, dst, acc + 2, 9))
    def feature(F, B_, D):
        for n, (fo, bo, k16) in enumerate(((0, 0, False), (4, 4, False), (8, 8, True))):
            for i in range(5): mfma(a, D + 4*i, F + 10*i + fo, B_ + bo, None if n == 0 else D + 4*i, k16)
    def stage_addr(d32, d8, hstride, base32, base8):
        a(f'v_lshrrev_b32 {v(t0)}, 4, {v(vLANE)}'); a(f'v_mul_u32_u24 {v(t0)}, {hstride}, {v(t0)}')
        a(f's_lshl_b32 {s(sT0)}, {s(sTG)}, 5'); a(f'v_and_or_b32 {v(d8)}, {v(vLANE)}, 15, {s(sT0)}')
        a(f'v_lshl_add_u32 {v(d32)}, {v(d8)}, 5, {v(t0)}'); a(f'v_lshl_add_u32 {v(d8)}, {v(d8)}, 3, {v(t0)}')
        a(f'v_add_u32 {v(d32)}, {base32}, {v(d32)}'); a(f'v_add_u32 {v(d8)}, {base8}, {v(d8)}')
    get_nonce_check(a, vN)
    if not Y:
        F, D, EP, OUT = 120, 172, 52, 32
        phi_addr(t2); phi_frags(F, t2)
        for i in range(2):
            canon(ACC + 20*i, CSV, ST + 2*i, PKB + 10*i); a(f'v_mov_b32 {v(PKB + 10*i + 9)}, 0')
            a(f'v_mul_f32 {v(ST+2*i+1)}, {hx(f2u(LOG2E))}, {v(ST+2*i+1)}')
        for i in range(2): feature(F, PKB + 10*i, D + 20*i)
        stage_addr(t1, t2, 9216, LPH, LPH + 8192)
        for i in range(2):
            O_ = (80, 100)[i]
            run(softmax_unit(a, D + 20*i, ST + 2*i + 1, EP, D + 20*i, O_, T))
            for n in range(4): a(f'ds_write_b128 {v(t1)}, {v(O_+4*n,4)} offset:{i*512 + (n >> 1)*4096 + (n & 1)*16}')
            a(f'ds_write_b64 {v(t2)}, {v(O_+16,2)} offset:{i*128}')
        a.wait_vm_tag('wq'); a.wait_all(vm=False);
        stamp(a, 2)
        barrier(a)
        a(f'v_lshlrev_b32 {v(t0)}, 3, {v(vLANE)}'); a(f'v_and_b32 {v(t1)}, 60, {v(vLANE)}'); a(f'v_lshlrev_b32 {v(t1)}, 1, {v(t1)}')
        a(f's_mul_i32 {s(sT0)}, {s(sTG)}, 9216'); a(f's_add_u32 {s(sT0)}, {s(sT0)}, {LPH}')
        a(f's_mul_i32 {s(sT1)}, {s(sTG)}, 5120'); a(f's_add_u32 {s(sT1)}, {s(sT1)}, {LV}')
        p32, p8, w32, w8 = 24, 25, 26, 27
        a(f'v_add_u32 {v(p32)}, {s(sT0)}, {v(t0)}'); a(f'v_add_u32 {v(p8)}, {s(sT0)}, {v(t1)}')
        a(f'v_add_u32 {v(w32)}, {s(sT1)}, {v(t0)}'); a(f'v_add_u32 {v(w8)}, {s(sT1)}, {v(t1)}')
        KF, KA = 32, 112
        for ks in range(4):
            b = KF + 20*ks
            for h in range(2):
                a(f'ds_read_b64_tr_b16 {v(b+12+2*h,2)}, {v(w32)} offset:{ks*1024 + h*512}')
                a(f'ds_read_b64_tr_b16 {v(b+16+2*h,2)}, {v(w8)} offset:{4096 + ks*256 + h*128}')
                a(f'ds_read_b64_tr_b16 {v(b+2*h,2)}, {v(p32)} offset:{ks*1024 + h*512}')
                a(f'ds_read_b64_tr_b16 {v(b+4+2*h,2)}, {v(p32)} offset:{4096 + ks*1024 + h*512}')
                a(f'ds_read_b64_tr_b16 {v(b+8+2*h,2)}, {v(p8)} offset:{8192 + ks*256 + h*128}')
        a(f'v_lshrrev_b32 {v(t0)}, 4, {v(vLANE)}'); a(f'v_mul_u32_u24 {v(t0)}, 320, {v(t0)}')
        a(f'v_and_b32 {v(t1)}, 15, {v(vLANE)}'); a(f'v_lshl_add_u32 {v(t0)}, {v(t1)}, 4, {v(t0)}')
        a(f's_lshl_b32 {s(sR2)}, {s(sHG)}, 2'); a(f's_add_u32 {s(sR2)}, {s(sR2)}, {s(sTG)}')
        a(f's_lshl_b32 {s(sT0)}, {s(sR2)}, 4'); a(f's_add_u32 {s(sT0)}, {s(sT0)}, {s(sMT)}'); a(f's_mul_i32 {s(sT4)}, {s(sT0)}, 3072')
        a(f's_add_u32 {s(sT4)}, {s(sT4)}, {WS_KVP}')
        for ks in range(4):
            b = KF + 20*ks
            for tau in range(3):
                for dl in range(2):
                    d = KA + 8*tau + 4*dl
                    mfma(a, d, b + 4*tau, b + 12 + 4*dl, None if ks == 0 else d)
        for tau, dl, mk in ((0, 0, -1), (1, 0, -1), (2, 0, 0xFFFF), (2, 1, 0xF), (0, 1, 0x000F000F000F000F), (1, 1, None)):
            if mk is not None: setexec(a, mk)
            a(f'buffer_store_dwordx4 {v(KA + 8*tau + 4*dl, 4)}, {v(t0)}, {srd(SWS)}, {s(sT4)} offen offset:{tau*1280 + dl*256} sc1', tag='kp')
        setexec(a, -1)
        RQ0, RQ1 = RC0, RA
        CQ = 140
        for r in range(4): a(f'v_mov_b32 {v(ONES+r)}, 0x3f803f80')
        def qreads(k):
            b = KF + 8*(k % 4)
            for h in range(2):
                tr(a, b + 2*h, RQ0, LWQ + (2*k + h)*2304); tr(a, b + 4 + 2*h, RQ1, LWQ + (2*k + h)*2304 + 32)
        for k in range(3): qreads(k)
        for k in range(18):
            if k + 3 < 18: qreads(k + 3)
            b = KF + 8*(k % 4)
            mfma(a, CQ, b, ONES, None if k == 0 else CQ); mfma(a, CQ + 4, b + 4, ONES, None if k == 0 else CQ + 4)
        a(f'v_and_b32 {v(t1)}, 48, {v(vLANE)}'); a(f'v_add_u32 {v(t1)}, {LCQ}, {v(t1)}')
        a(f's_lshl_b32 {s(sT0)}, {s(sTG)}, 6'); a(f'v_add_u32 {v(t2)}, {s(sT0)}, {v(t1)}')
        setexec(a, 0x0001000100010001)
        a(f'ds_write_b128 {v(t2)}, {v(CQ,4)}'); a(f'ds_write_b128 {v(t1)}, {v(CQ+4,4)} offset:256')
        setexec(a, -1)
        a(f'v_lshlrev_b32 {v(t0)}, 7, {v(vLANE)}')
        a(f's_lshl_b32 {s(sT0)}, {s(sR2)}, 11'); a(f's_add_u32 {s(sT0)}, {s(sT0)}, {MB_K1}')
        a(f's_lshl_b32 {s(sT1)}, {s(sMT)}, 2'); a(f's_add_u32 {s(sT4)}, {s(sT0)}, {s(sT1)}')
        a(f's_lshl_b32 {s(sT1)}, {s(sMT)}, 7'); a(f's_add_u32 {s(sT5)}, {s(sT0)}, {s(sT1)}')
        a.wait_vm_tag('kp')
        flag_write(a, t0, sT4, 0x7FFF, t1)
        a.wait_all(vm=False)
        stamp(a, 3)
        barrier(a)
        sk = a.newlabel('nored')
        a(f's_cmp_eq_u32 {s(sMT)}, 15'); a(f's_cbranch_scc1 {sk}')
        a(f's_mul_i32 {s(sT0)}, {s(sMT)}, 24'); a(f'v_add_u32 {v(t0)}, {s(sT0)}, {v(vLANE)}')
        a(f'v_lshlrev_b32 {v(40)}, 3, {v(t0)}')
        a(f'v_lshrrev_b32 {v(41)}, 1, {v(t0)}'); a(f'v_mul_u32_u24 {v(42)}, 3277, {v(41)}'); a(f'v_lshrrev_b32 {v(42)}, 16, {v(42)}')
        a(f'v_mul_u32_u24 {v(43)}, 20, {v(42)}'); a(f'v_sub_u32 {v(41)}, {v(41)}, {v(43)}')
        a(f'v_lshlrev_b32 {v(41)}, 4, {v(41)}'); a(f'v_and_b32 {v(43)}, 1, {v(t0)}'); a(f'v_lshl_add_u32 {v(41)}, {v(43)}, 2, {v(41)}')
        a(f'v_and_b32 {v(43)}, 1, {v(42)}'); a(f'v_lshl_add_u32 {v(41)}, {v(43)}, 3, {v(41)}')
        a(f'v_lshrrev_b32 {v(42)}, 1, {v(42)}'); a(f'v_mul_u32_u24 {v(42)}, 320, {v(42)}'); a(f'v_add_u32 {v(41)}, {v(41)}, {v(42)}')
        a(f's_mul_i32 {s(sT4)}, {s(sR2)}, {16*3072}'); a(f's_add_u32 {s(sT4)}, {s(sT4)}, {WS_KVP}')
        poll(a, t1, t2, sT5, 0xFFFF)
        stamp(a, 4)
        setexec(a, 0xFFFFFF)
        for m in range(16):
            if m and m % 2 == 0: a(f's_add_u32 {s(sT4)}, {s(sT4)}, 6144')
            a(f'buffer_load_dwordx2 {v(2*m,2)}, {v(40)}, {srd(SWS)}, {s(sT4)} offen offset:{(m & 1)*3072} sc1')
        for m in range(1, 16):
            a(f'v_add_f32 {v(0)}, {v(0)}, {v(2*m)}'); a(f'v_add_f32 {v(1)}, {v(1)}, {v(2*m+1)}')
        a(f'v_cvt_pk_bf16_f32 {v(0)}, {v(0)}, {v(1)}')
        a(f's_lshl_b32 {s(sT4)}, {s(sR2)}, 11'); a(f's_add_u32 {s(sT4)}, {s(sT4)}, {WS_KVF}')
        a(f'buffer_store_dword {v(0)}, {v(41)}, {srd(SWS)}, {s(sT4)} offen sc1', tag='kf')
        setexec(a, -1)
        a(f'v_lshlrev_b32 {v(t0)}, 8, {v(vLANE)}')
        a(f's_lshl_b32 {s(sT0)}, {s(sHG)}, 12'); a(f's_lshl_b32 {s(sT1)}, {s(sTG)}, 4'); a(f's_add_u32 {s(sT1)}, {s(sT1)}, {s(sMT)}')
        a(f's_lshl_b32 {s(sT1)}, {s(sT1)}, 2'); a(f's_add_u32 {s(sT0)}, {s(sT0)}, {s(sT1)}'); a(f's_add_u32 {s(sT4)}, {s(sT0)}, {MB_K2}')
        a.wait_vm_tag('kf')
        flag_write(a, t0, sT4, 0xFFFF, t1)
        a.label(sk); a.nop(2)
        stamp(a, 5)
        e2_poll(a)
        stamp(a, 6)
        x_loads(a)
        barrier(a)
        cs_w3(a)
        s3_addr_init(a)
    else:
        stage_addr(t1, t2, 5120, LV, LV + 4096)
        KN = 234
        for i in range(2):
            canon(ACC + 20*i, CSV, ST + 2*i, PKB, scale=ST + 2*i + 1); a(f'v_mov_b32 {v(PKB + 9)}, 0x3f80')
            for n in range(2): a(f'ds_write_b128 {v(t1)}, {v(PKB+4*n,4)} offset:{i*512 + n*16}')
            a(f'ds_write_b64 {v(t2)}, {v(PKB+8,2)} offset:{i*128}')
            a(f'v_mov_b32 {v(KN+2*i)}, {v(ST+2*i)}'); a(f'v_mul_f32 {v(KN+2*i+1)}, {hx(f2u(LOG2E))}, {v(ST+2*i+1)}')
        a.wait_vm_tag('wq'); a.wait_all(vm=False)
        stamp(a, 2)
        barrier(a)
        def qr(k):
            return [(lambda i=i, h=h: tr(a, AF + 20*(k & 1) + 4*i + 2*h, RA, LWQ + (2*k + h)*2304 + 8*i)) for i in range(5) for h in range(2)]
        run(qr(0))
        for k in range(18):
            side = qr(k + 1) if k + 1 < 18 else []
            a.wait_all(vm=False)
            for f in mf1(k):
                f()
                if side: side.pop(0)()
        F, D, EP, CQ, PB, TT = 0, 52, 92, 112, 132, 152
        phi_addr(t2); phi_frags(F, t2)
        for r in range(4): a(f'v_mov_b32 {v(160+r)}, {v(KN+r)}')
        KN = 160
        a.wait_all(vm=False)
        stamp(a, 3)
        barrier(a)
        a(f'v_and_b32 {v(t1)}, 48, {v(vLANE)}'); a(f'v_add_u32 {v(t1)}, {LCQ}, {v(t1)}')
        for i in range(5): a(f'ds_read_b128 {v(CQ+4*i,4)}, {v(t1)} offset:{64*i}')
        w3 = w3_dma_list(a)
        run(w3[:5])
        for i in range(2):
            canon(ACC + 20*i, CQ, KN + 2*i, PB + 10*i); a(f'v_mov_b32 {v(PB + 10*i + 9)}, 0')
        for i in range(2): feature(F, PB + 10*i, D + 20*i)
        PQ = 184
        interleave(a, softmax_unit(a, D, KN + 1, EP, D, PQ, TT) + softmax_unit(a, D + 20, KN + 3, EP, D + 20, PQ + 18, TT), w3[5:])
        KA = 0
        for r in range(90): a(f'v_mov_b32 {v(KA+r)}, 0')
        a(f'v_lshrrev_b32 {v(t0)}, 4, {v(vLANE)}'); a(f'v_lshlrev_b32 {v(t0)}, 11, {v(t0)}')
        a(f'v_and_b32 {v(t1)}, 3, {v(vLANE)}'); a(f'v_lshl_add_u32 {v(t0)}, {v(t1)}, 4, {v(t0)}')
        a(f's_lshl_b32 {s(sT0)}, {s(sHG)}, 4'); a(f's_add_u32 {s(sT0)}, {s(sT0)}, {s(sMT)}'); a(f's_lshl_b32 {s(sT0)}, {s(sT0)}, 8')
        a(f's_add_u32 {s(sT5)}, {s(sT0)}, {MB_K2}')
        a(f's_lshl_b32 {s(sT4)}, {s(sHG)}, 13'); a(f's_add_u32 {s(sT4)}, {s(sT4)}, {WS_KVF}')
        a.wait_vm_tag('w3')
        stamp(a, 4)
        barrier(a)
        poll(a, t1, t2, sT5, 0x7FFF7FFF7FFF7FFF)
        stamp(a, 5)
        setexec(a, DIAG)
        for i in range(5):
            for sx in range(4):
                a(f'buffer_load_dwordx4 {v(KA + 18*i + 4*sx, 4)}, {v(t0)}, {srd(SWS)}, {s(sT4)} offen offset:{sx*320 + i*64} sc1')
            a(f'buffer_load_dwordx2 {v(KA + 18*i + 16, 2)}, {v(t0)}, {srd(SWS)}, {s(sT4)} offen offset:{4*320 + i*64} sc1')
        setexec(a, -1)
        OA, OP = 92, 132
        for i in range(5):
            for sx in range(5):
                for ti in range(2):
                    d = OA + 20*ti + 4*i
                    mfma(a, d, KA + 18*i + 4*sx, PQ + 18*ti + 4*sx, None if sx == 0 else d, sx == 4)
        a(f's_lshr_b32 {s(sT0)}, {s(sMT)}, 1'); a(f's_lshl_b32 {s(sT0)}, {s(sT0)}, 3'); a(f's_add_u32 {s(sT0)}, {s(sT0)}, {s(sHG)}')
        a(f's_lshl_b32 {s(sT0)}, {s(sT0)}, 1'); a(f's_and_b32 {s(sT1)}, {s(sMT)}, 1'); a(f's_add_u32 {s(sT0)}, {s(sT0)}, {s(sT1)}')
        a(f's_lshl_b32 {s(sT0)}, {s(sT0)}, 2'); a(f's_add_u32 {s(sT0)}, {s(sT0)}, {s(sTG)}')
        a(f's_mul_i32 {s(sT4)}, {s(sT0)}, 5120'); a(f's_add_u32 {s(sT4)}, {s(sT4)}, {WS_O}'); a(f's_add_u32 {s(sT5)}, {s(sT4)}, 4096')
        a(f's_lshl_b32 {s(sR2)}, {s(sT0)}, 9'); a(f's_add_u32 {s(sR2)}, {s(sR2)}, {MB_E + 16}')
        for ti in range(2):
            dn = OA + 20*ti + 18
            a(f'v_add_f32 {v(dn)}, {hx(f2u(1e-6))}, {v(dn)}'); a(f'v_rcp_f32 {v(dn)}, {v(dn)}')
        for ti in range(2):
            b = OA + 20*ti
            for r in range(18): a(f'v_mul_f32 {v(b+r)}, {v(b+r)}, {v(b+18)}')
            run(pack(a, OP + 4*ti, b, 4)); run(pack(a, OP + 8 + 4*ti, b + 8, 4)); run(pack(a, OP + 16 + 2*ti, b + 16, 1))
            a(f'v_mov_b32 {v(OP + 17 + 2*ti)}, 0')
        for n in range(5):
            a(f'buffer_store_dwordx4 {v(OP+4*n,4)}, {v(vL16)}, {srd(SWS)}, {s(sT4 if n < 4 else sT5)} offen offset:{(n & 3)*1024} sc1', tag='os')
        e2_poll(a)
        a.wait_vm_tag('os')
        a(f'v_lshlrev_b32 {v(t0)}, 7, {v(vLANE)}')
        flag_write(a, t0, sR2, 0xF, t1)
        stamp(a, 6)
        x_loads(a)
        s3_addr_init(a)

def build():
    global OOL
    OOL.clear()
    ref = open('cdna_kernels/' + NAME[:-7] + '.s.ref').read().split('\n')
    head = [l for l in ref if l.startswith(';') and '@launch' not in l]
    out = head + ['; @launch grid=(256,1,1) block=(512,1,1) lds=163840',
                  '.amdgcn_target "amdgcn-amd-amdhsa--gfx950"', '.text', f'.globl {NAME}', '.p2align 8', f'.type {NAME},@function', f'{NAME}:']
    a = Asm()
    a('s_cmp_ge_u32 s2, 256'); a('s_cbranch_scc0 L_go'); a('s_endpgm'); a.label('L_go')
    for b, (off, sz) in KARG.items(): a(f's_load_dwordx2 {s(b,2)}, s[0:1], {off}')
    a(f'v_lshrrev_b32 v1, 6, v0'); a(f'v_and_b32 {v(vLANE)}, 63, v0')
    a(f'v_readfirstlane_b32 {s(sW)}, v1')
    a(f'v_lshlrev_b32 {v(vL16)}, 4, {v(vLANE)}')
    for b, (off, sz) in KARG.items():
        a(f's_mov_b32 {s(b+2)}, {sz}'); a(f's_mov_b32 {s(b+3)}, 0x20000')
    if cfg.stamps:
        for i in range(24): a(f's_mov_b32 {s(sSTAMP+i)}, 0')
        stamp(a, 16)
    a(f's_and_b32 {s(sTG)}, {s(sW)}, 3')
    a(f's_and_b32 {s(sXC)}, s2, 7'); a(f's_lshr_b32 {s(sIDX)}, s2, 3')
    a(f's_and_b32 {s(sT0)}, {s(sXC)}, 1'); a(f's_lshl_b32 {s(sT0)}, {s(sT0)}, 2'); a(f's_lshr_b32 {s(sT1)}, {s(sIDX)}, 3'); a(f's_add_u32 {s(sMI)}, {s(sT0)}, {s(sT1)}')
    a(f's_and_b32 {s(sT0)}, {s(sXC)}, 6'); a(f's_bfe_u32 {s(sT1)}, {s(sIDX)}, 0x10002'); a(f's_add_u32 {s(sJ)}, {s(sT0)}, {s(sT1)}')
    a(f's_and_b32 {s(sC)}, {s(sIDX)}, 3')
    a(f's_cmp_ge_u32 {s(sIDX)}, 16'); a('s_cbranch_scc1 L_A')
    a(f's_cmp_ge_u32 {s(sW)}, 4'); a('s_cbranch_scc1 L_BY')
    streams = [a]
    bo = Asm(); front_B(bo, False); bo('s_branch L_SO'); streams.append(bo)
    by = Asm(); by.label('L_BY'); front_B(by, True); by('s_branch L_SY'); streams.append(by)
    ah = Asm(); ah.label('L_A'); ah(f's_cmp_ge_u32 {s(sW)}, 4'); ah('s_cbranch_scc1 L_AY'); streams.append(ah)
    ao = Asm(); front_A(ao, False); streams.append(ao)
    d = Asm(); x_loads(d)
    so = Asm(); so.label('L_SO'); so.vmq = list(d.vmq); s34(so, False); streams.append(so)
    ay = Asm(); ay.label('L_AY'); front_A(ay, True); streams.append(ay)
    sy = Asm(); sy.label('L_SY'); sy.vmq = list(d.vmq); s34(sy, True); streams.append(sy)
    streams += OOL
    for st in streams: out += st.out
    out += ['.section .rodata,"a"', '.p2align 6', f'.amdhsa_kernel {NAME}', '  .amdhsa_next_free_vgpr 256', '  .amdhsa_next_free_sgpr 102',
            '  .amdhsa_accum_offset 256', '  .amdhsa_group_segment_fixed_size 0', '  .amdhsa_kernarg_size 96', '  .amdhsa_user_sgpr_count 2',
            '  .amdhsa_user_sgpr_kernarg_segment_ptr 1', '  .amdhsa_system_sgpr_workgroup_id_x 1', '.end_amdhsa_kernel']
    for nm, st in (('BO', bo), ('BY', by), ('AO', ao), ('AY', ay), ('SO', so), ('SY', sy)):
        print(nm, len(st.out), st.count, file=sys.stderr)
    return '\n'.join(out) + '\n'

if __name__ == '__main__':
    import argparse
    ap = argparse.ArgumentParser()
    ap.add_argument('-o', default='k.s'); ap.add_argument('--stamps', default=''); ap.add_argument('--no-a', action='store_true'); ap.add_argument('--wsbase', type=int, default=0)
    args = ap.parse_args()
    cfg.stamps = args.stamps; cfg.no_a = args.no_a; cfg.wsbase = args.wsbase << 20
    open(args.o, 'w').write(build())
```

```python
import sys, math, struct
sys.path.insert(0, 'gen')
from asmlib import Asm, v, s

NAME = 'parallel_sum__linear_kernel_hedgehog__mixer_s_mlp__prompt_kernel'
def f2u(x): return struct.unpack('<I', struct.pack('<f', x))[0]
def hx(x): return f'0x{x & 0xffffffff:08x}'
LOG2E = 1.4426950408889634
C0 = -2.0 * math.sqrt(2.0 / math.pi) * LOG2E
C1 = C0 * 0.044715
POLL_LIMIT = 40000

SX, SQKV, SPHI, SWO, SW1, SW2, SW3, SW4, SOUT, SDBG, SWS = 4, 8, 12, 16, 20, 24, 28, 32, 36, 40, 44
KARG = {SX: (0, 2359296), SQKV: (8, 1990656), SPHI: (16, 20736), SWO: (24, 663552), SW1: (40, 663552), SW2: (48, 663552),
        SW3: (56, 5308416), SW4: (64, 5308416), SOUT: (72, 2359296), SDBG: (80, 256), SWS: (88, 268435456)}
sW, sTG, sXC, sIDX, sMI, sJ, sC, sNONCE = 48, 49, 50, 51, 52, 53, 54, 55
sR0, sR1, sR2, sR3, sR4, sR5 = 56, 57, 58, 59, 60, 61
sCNT = 62
sT0, sT1, sT2, sT3, sT4, sT5 = 64, 65, 66, 67, 68, 69
sM = 70
sSTAMP = 72
def srd(b): return s(b, 4)

WS_EPOCH = 0
MB_H  = 0x1000
MB_X  = MB_H + 128 * 128
MB_K1 = MB_X + 1024 * 128
MB_K2 = MB_K1 + 512 * 128
MB_E  = MB_K2 + 128 * 256
MB_P  = MB_E + 2048 * 128
WS_STAMP = MB_P + 256 * 128
WS_ST = 0x100000
WS_KVF = WS_ST + 128 * 2048
WS_KVP = 0x180000
WS_HS = 0x400000
WS_X1 = WS_HS + 128 * 18432
WS_O  = WS_X1 + 128 * 18432
WS_H  = 0xC00000
WS_P  = WS_H + 512 * 36864
WS_END = WS_P + 256 * 73728
assert WS_STAMP + 2048 * 128 <= WS_ST and WS_KVP + 512 * 3072 <= WS_HS and WS_O + 512 * 5120 <= WS_H

vLANE, vL16 = 255, 254
XB, HOWN, ACC3A, ACCB, RING = 0, 144, 168, 192, 208
vALO, vAHI, vAOD = 232, 233, 234
vDP, vDO = 235, 236
vGC = 237
vPOLL = 245
vTMP = 246
L3A, L3P2, L3P3, LCS, LSC2 = 0, 92160, 129024, 161792, 162816
L3P3L = 88064

class Cfg:
    stamps = False
    no_a = False
    wsbase = 0
    probe = ''
cfg = Cfg()
OOL = []

class AddrReg:
    def __init__(self, reg, base=0): self.reg = reg; self.base = base
    def off(self, a, addr):
        d = addr - self.base
        if d < 0 or d > 65535 - 16:
            nb = addr & ~0x3ff
            a(f'v_add_u32 {v(self.reg)}, {hx(nb - self.base)}, {v(self.reg)}')
            self.base = nb; d = addr - nb
        return d
    def copy(self): return AddrReg(self.reg, self.base)

def stamp(a, i):
    if not cfg.stamps: return
    a(f'{"s_memtime" if cfg.stamps == "clk" else "s_memrealtime"} {s(sM, 2)}')
    a.wait_all(vm=False)
    a(f's_mov_b32 {s(sSTAMP + i)}, {s(sM)}')

def kargs_ready(a):
    a.wait_all(vm=False)
    if cfg.wsbase:
        a(f's_add_u32 {s(SWS)}, {s(SWS)}, {hx(cfg.wsbase)}'); a(f's_addc_u32 {s(SWS+1)}, {s(SWS+1)}, 0')
        a(f's_mov_b32 {s(SWS+2)}, {268435456 - cfg.wsbase}')
    if cfg.probe:
        a(f's_lshl_b32 {s(sT4)}, s2, 3'); a(f's_add_u32 {s(sT4)}, {s(sT4)}, {s(sW)}'); a(f's_lshl_b32 {s(sT4)}, {s(sT4)}, 14')
        a(f's_add_u32 {s(sT4)}, {s(sT4)}, {128 << 20}')
        for i in range(16):
            if cfg.probe == 'rd': a(f'buffer_load_dwordx4 {v(4*i,4)}, {v(vL16)}, {srd(SWS)}, {s(sT4)} offen')
            else: a(f'buffer_store_dwordx4 {v(4*i,4)}, {v(vL16)}, {srd(SWS)}, {s(sT4)} offen sc1')
            a(f's_add_u32 {s(sT4)}, {s(sT4)}, 1024')
        a.wait_all(lg=False)
def barrier(a): a('s_barrier')
def mfma(a, d, x, y, c, k16=False):
    n = 2 if k16 else 4
    op = 'v_mfma_f32_16x16x16_bf16' if k16 else 'v_mfma_f32_16x16x32_bf16'
    a(f'{op} {v(d,4)}, {v(x,n)}, {v(y,n)}, {"0" if c is None else v(c,4)}')
def tr(a, d, ar, addr):
    o = ar.off(a, addr); a(f'ds_read_b64_tr_b16 {v(d,2)}, {v(ar.reg)} offset:{o}')
def dsr(a, n, d, ar, addr):
    o = ar.off(a, addr); a(f'ds_read_b{32*n} {v(d,n)}, {v(ar.reg)} offset:{o}')
def setexec(a, mask):
    if mask == -1: a('s_mov_b64 exec, -1'); return
    lo, hi = mask & 0xffffffff, mask >> 32
    if lo == 0xffffffff: a(f's_mov_b32 exec_hi, {hx(hi)}'); return
    if hi == 0 and lo < 0x80000000: a(f's_mov_b64 exec, {hx(lo)}'); return
    a(f's_mov_b32 exec_lo, {hx(lo)}'); a(f's_mov_b32 exec_hi, {hx(hi)}')
def dma(a, sr, vaddr, soff, sm0, ldsaddr, goff=0, flags='', tag=None):
    assert ldsaddr >= goff
    a(f's_add_u32 m0, {s(sm0)}, {hx(ldsaddr - goff)}')
    o = f' offset:{goff}' if goff else ''
    a(f'buffer_load_dwordx4 {v(vaddr)}, {srd(sr)}, {s(soff)} offen{o} {flags} lds'.replace('  ', ' '), tag=tag)

def interleave(a, main, side, start=0, every=None):
    n = len(main); m = len(side)
    if every is None: every = max(1, (n - start) // (m + 1)) if m else 1
    k = 0
    for i, f in enumerate(main):
        f()
        if k < m and i >= start and (i - start) % every == every - 1:
            side[k](); k += 1
    while k < m: side[k](); k += 1

def get_nonce_issue(a, vt):
    a(f'v_mov_b32 {v(vt)}, 0')
    a(f'buffer_load_dword {v(vt)}, {v(vt)}, {srd(SDBG)}, 0 offen sc1')
def get_nonce_check(a, vt):
    a(f'v_readfirstlane_b32 {s(sNONCE)}, {v(vt)}')
    a(f's_cmp_eq_u32 {s(sNONCE)}, 0')
    slow, back = a.newlabel('nslow'), a.newlabel('nback')
    a(f's_cbranch_scc1 {slow}')
    a.label(back)
    o = Asm(); o.label(slow)
    o(f's_mov_b32 {s(sCNT)}, 0')
    lp = o.newlabel('nloop'); o.label(lp)
    o(f'v_mov_b32 {v(vt)}, 0')
    o(f'buffer_load_dword {v(vt)}, {v(vt)}, {srd(SDBG)}, 0 offen sc1')
    o(f's_add_u32 {s(sCNT)}, {s(sCNT)}, 1')
    o(f'v_readfirstlane_b32 {s(sNONCE)}, {v(vt)}')
    o(f's_cmp_ge_u32 {s(sCNT)}, {POLL_LIMIT}'); o(f's_cbranch_scc1 {back}')
    o(f's_cmp_eq_u32 {s(sNONCE)}, 0'); o(f's_cbranch_scc1 {lp}')
    o(f's_branch {back}')
    OOL.append(o)

def flag_write(a, vaddr, soff, mask, vt):
    a(f'v_mov_b32 {v(vt)}, {s(sNONCE)}')
    setexec(a, mask)
    a(f'buffer_atomic_swap {v(vt)}, {v(vaddr)}, {srd(SWS)}, {s(soff)} offen')
    setexec(a, -1)
def poll_issue(a, vt, va, soff, mask):
    a(f'v_lshlrev_b32 {v(va)}, 2, {v(vLANE)}')
    a(f'v_mov_b32 {v(vt)}, 0')
    setexec(a, mask)
    a(f'buffer_atomic_add {v(vt)}, {v(va)}, {srd(SWS)}, {s(soff)} offen sc0')
    setexec(a, -1)
def poll_check(a, vt, va, soff, mask):
    a.wait_regs([vt])
    setexec(a, mask)
    a(f'v_cmp_ne_u32 vcc, {s(sNONCE)}, {v(vt)}')
    slow, back = a.newlabel('pslow'), a.newlabel('pback')
    a.nop(1)
    a(f's_cbranch_vccnz {slow}')
    a.label(back)
    setexec(a, -1)
    o = Asm(); o.label(slow)
    o(f's_mov_b32 {s(sCNT)}, 0')
    o(f'v_lshlrev_b32 {v(va)}, 2, {v(vLANE)}')
    lp = o.newlabel('ploop'); o.label(lp)
    o(f'v_mov_b32 {v(vt)}, 0')
    o(f'buffer_atomic_add {v(vt)}, {v(va)}, {srd(SWS)}, {s(soff)} offen sc0')
    o(f's_add_u32 {s(sCNT)}, {s(sCNT)}, 1')
    o(f'v_cmp_ne_u32 vcc, {s(sNONCE)}, {v(vt)}')
    o(f's_cmp_ge_u32 {s(sCNT)}, {POLL_LIMIT}'); o(f's_cbranch_scc1 {back}')
    o(f's_cbranch_vccnz {lp}')
    o(f's_branch {back}')
    OOL.append(o)
def poll(a, vt, va, soff, mask):
    poll_issue(a, vt, va, soff, mask); poll_check(a, vt, va, soff, mask)

def pat_pair(a, d, t0, t1, pitch, natural):
    a(f'v_lshrrev_b32 {v(t0)}, 2, {v(vLANE)}')
    if natural:
        a(f'v_and_b32 {v(t1)}, 12, {v(t0)}'); a(f'v_add_u32 {v(t0)}, {v(t0)}, {v(t1)}')
    a(f'v_mul_u32_u24 {v(t0)}, {pitch}, {v(t0)}')
    a(f'v_lshrrev_b32 {v(t1)}, 3, {v(vLANE)}'); a(f'v_and_b32 {v(t1)}, 2, {v(t1)}')
    a(f'v_xor_b32 {v(t1)}, {v(t1)}, {v(vLANE)}'); a(f'v_and_b32 {v(t1)}, 3, {v(t1)}')
    a(f'v_lshl_add_u32 {v(d)}, {v(t1)}, 4, {v(t0)}')
def pat_odd(a, d, t0, t1, pitch, natural):
    a(f'v_bfe_u32 {v(t0)}, {v(vLANE)}, 1, 4')
    if natural:
        a(f'v_and_b32 {v(t1)}, 12, {v(t0)}'); a(f'v_add_u32 {v(t0)}, {v(t0)}, {v(t1)}')
    a(f'v_mul_u32_u24 {v(t0)}, {pitch}, {v(t0)}')
    a(f'v_and_b32 {v(t1)}, 1, {v(vLANE)}')
    a(f'v_lshl_add_u32 {v(d)}, {v(t1)}, 4, {v(t0)}')
def pat_x(a, d, t0, t1):
    a(f'v_lshrrev_b32 {v(t0)}, 2, {v(vLANE)}'); a(f'v_mul_u32_u24 {v(t0)}, 1152, {v(t0)}')
    a(f'v_lshrrev_b32 {v(t1)}, 4, {v(vLANE)}'); a(f'v_and_b32 {v(t1)}, 2, {v(t1)}')
    a(f'v_xor_b32 {v(t1)}, {v(t1)}, {v(vLANE)}'); a(f'v_and_b32 {v(t1)}, 3, {v(t1)}')
    a(f'v_lshl_add_u32 {v(d)}, {v(t1)}, 4, {v(t0)}')
def pat_trlo(a, lo, hi, t0):
    a(f'v_lshrrev_b32 {v(t0)}, 2, {v(vLANE)}'); a(f'v_lshlrev_b32 {v(lo)}, 6, {v(t0)}')
    a(f'v_and_b32 {v(t0)}, 3, {v(vLANE)}'); a(f'v_lshl_add_u32 {v(lo)}, {v(t0)}, 3, {v(lo)}')
    a(f'v_and_b32 {v(t0)}, 16, {v(vLANE)}'); a(f'v_lshl_add_u32 {v(lo)}, {v(t0)}, 1, {v(lo)}')
    a(f'v_xor_b32 {v(hi)}, 32, {v(lo)}')
def pat_xread(a, d, t0, t1):
    a(f'v_and_b32 {v(t0)}, 15, {v(vLANE)}'); a(f'v_lshlrev_b32 {v(d)}, 6, {v(t0)}')
    a(f'v_lshrrev_b32 {v(t0)}, 2, {v(vLANE)}'); a(f'v_and_b32 {v(t0)}, 2, {v(t0)}')
    a(f'v_lshrrev_b32 {v(t1)}, 4, {v(vLANE)}'); a(f'v_xor_b32 {v(t0)}, {v(t0)}, {v(t1)}')
    a(f'v_lshl_add_u32 {v(d)}, {v(t0)}, 4, {v(d)}')

def allreduce_g(a, r, t):
    a(f'v_mov_b32 {v(t)}, {v(r)}'); a(f'v_permlane32_swap_b32 {v(r)}, {v(t)}'); a(f'v_add_f32 {v(r)}, {v(r)}, {v(t)}')
    a(f'v_mov_b32 {v(t)}, {v(r)}'); a(f'v_permlane16_swap_b32 {v(r)}, {v(t)}'); a(f'v_add_f32 {v(r)}, {v(r)}, {v(t)}')

def mean_var(a, su, sq, nm, var):
    a(f'v_mul_f32 {v(nm)}, {hx(f2u(-1.0/576))}, {v(su)}')
    a(f'v_mul_f32 {v(var)}, {hx(f2u(1.0/576))}, {v(sq)}')
    a(f'v_fma_f32 {v(var)}, -{v(nm)}, {v(nm)}, {v(var)}')
    a(f'v_max_f32 {v(var)}, 0, {v(var)}')
def gelu_consts(a, rho, c0, c1, ri):
    a(f'v_rcp_f32 {v(ri)}, {v(rho)}')
    a(f'v_mul_f32 {v(c1)}, {v(rho)}, {v(rho)}')
    a(f'v_mul_f32 {v(c0)}, {hx(f2u(C0))}, {v(rho)}')
    a(f'v_mul_f32 {v(c1)}, {hx(f2u(0.044715))}, {v(c1)}')
    a(f'v_mul_f32 {v(c1)}, {v(c1)}, {v(c0)}')

def gelu8(a, items, tmp):
    L = []
    n = len(items)
    E = lambda t: L.append(lambda: a(t))
    for i, (x, cs, k) in enumerate(items): E(f'v_fmac_f32 {v(x)}, {v(k)}, {v(cs)}')
    for i, (x, cs, k) in enumerate(items): E(f'v_mul_f32 {v(tmp+i)}, {v(x)}, {v(x)}')
    for i, (x, cs, k) in enumerate(items): E(f'v_fma_f32 {v(tmp+i)}, {v(tmp+i)}, {v(k+2)}, {v(k+1)}')
    for i, (x, cs, k) in enumerate(items): E(f'v_mul_f32 {v(tmp+i)}, {v(tmp+i)}, {v(x)}')
    for i, (x, cs, k) in enumerate(items): E(f'v_exp_f32 {v(tmp+i)}, {v(tmp+i)}')
    for i, (x, cs, k) in enumerate(items): E(f'v_fma_f32 {v(tmp+i)}, {v(tmp+i)}, {v(k+3)}, {v(k+3)}')
    for i, (x, cs, k) in enumerate(items): E(f'v_rcp_f32 {v(tmp+i)}, {v(tmp+i)}')
    for i, (x, cs, k) in enumerate(items): E(f'v_mul_f32 {v(tmp+i)}, {v(tmp+i)}, {v(x)}')
    return L
def pack(a, dst, src, n):
    return [(lambda i=i: a(f'v_cvt_pk_bf16_f32 {v(dst+i)}, {v(src+2*i)}, {v(src+2*i+1)}')) for i in range(n)]
def run(L):
    for f in L: f()

def diag_select(a, d, g4, t0):
    a(f'v_and_b32 {v(t0)}, 3, {v(vLANE)}')
    a(f'v_mov_b32 {v(d)}, {v(g4)}')
    for r in (1, 2, 3):
        a(f'v_cmp_eq_u32 vcc, {r}, {v(t0)}')
        a(f'v_cndmask_b32 {v(d)}, {v(d)}, {v(g4+r)}, vcc')
DIAG = 0xF0000F0000F0000F

def front_loop(a, reads, mfmas, refill, gtag, first_wait=True):
    if first_wait: a.wait_vm_tag(gtag(0))
    barrier(a)
    run(reads(0))
    for pos in range(18):
        a.wait_all(vm=False)
        side = []
        if pos + 1 < 18:
            if (pos + 1) % 2 == 0:
                G = (pos + 1) // 2
                a.wait_vm_tag(gtag(G)); barrier(a)
                side = reads(pos + 1) + refill(G)
            else:
                side = reads(pos + 1)
        main = mfmas(pos)
        per = -(-len(side) // len(main))
        for f in main:
            f()
            for _ in range(per):
                if side: side.pop(0)()
        run(side)

def w3_dma_list(a):
    L = []
    def init():
        pat_pair(a, vDP, vTMP, vTMP + 1, 9216, False)
        pat_odd(a, vDO, vTMP, vTMP + 1, 9216, False)
        a(f's_mul_i32 {s(sT0)}, {s(sTG)}, {16*9216}')
        a(f's_mul_i32 {s(sT1)}, {s(sJ)}, 1152'); a(f's_add_u32 {s(sT0)}, {s(sT0)}, {s(sT1)}')
        a(f's_lshl_b32 {s(sT1)}, {s(sC)}, 8'); a(f's_add_u32 {s(sT1)}, {s(sT1)}, {s(sT0)}')
        a(f'v_add_u32 {v(vDP)}, {s(sT1)}, {v(vDP)}')
        a(f's_lshl_b32 {s(sT1)}, {s(sC)}, 5'); a(f's_add_u32 {s(sT1)}, {s(sT1)}, {s(sT0)}'); a(f's_add_u32 {s(sT1)}, {s(sT1)}, 1024')
        a(f'v_add_u32 {v(vDO)}, {s(sT1)}, {v(vDO)}')
        a(f's_mul_i32 {s(sR4)}, {s(sTG)}, 2560'); a(f's_lshl_b32 {s(sR5)}, {s(sTG)}, 10')
    L.append(init)
    for h in range(9):
        def fa(h=h):
            a(f's_mov_b32 {s(sT2)}, {h*64*9216}')
            dma(a, SW3, vDP, sT2, sR4, L3A + h*10240, 0, tag='w3')
            dma(a, SW3, vDP, sT2, sR4, L3A + h*10240 + 1024, 64, tag='w3')
        def fo(h=h):
            a(f's_mov_b32 {s(sT2)}, {h*64*9216}')
            setexec(a, 0xffffffff)
            dma(a, SW3, vDO, sT2, sR4, L3A + h*10240 + 2048, 0, tag='w3')
            setexec(a, -1)
        L += [fa, fo]
    for h in range(9):
        def fb(h=h):
            a(f's_mov_b32 {s(sT2)}, {h*64*9216}')
            dma(a, SW3, vDP, sT2, sR5, L3P2 + h*4096, 128, tag='w3')
            if h < 8: dma(a, SW3, vDP, sT2, sR5, L3P3 + h*4096, 192, tag='w3')
        L.append(fb)
    return L

def e2_poll(a):
    a(f's_lshl_b32 {s(sT0)}, {s(sMI)}, 2'); a(f's_lshr_b32 {s(sT1)}, {s(sW)}, 1'); a(f's_add_u32 {s(sT0)}, {s(sT0)}, {s(sT1)}')
    a(f's_lshl_b32 {s(sT0)}, {s(sT0)}, 3'); a(f's_add_u32 {s(sT0)}, {s(sT0)}, {s(sJ)}')
    a(f's_lshl_b32 {s(sT0)}, {s(sT0)}, 2'); a(f's_add_u32 {s(sT0)}, {s(sT0)}, {s(sC)}')
    a(f's_lshl_b32 {s(sT0)}, {s(sT0)}, 7'); a(f's_add_u32 {s(sT3)}, {s(sT0)}, {MB_X}')
    poll(a, vPOLL, vTMP, sT3, 0xF)

STREG = HOWN
def x_loads(a):
    a(f's_lshl_b32 {s(sT0)}, {s(sMI)}, 3'); a(f's_add_u32 {s(sT0)}, {s(sT0)}, {s(sW)}')
    a(f's_mul_i32 {s(sT1)}, {s(sT0)}, {2*18432}'); a(f's_add_u32 {s(sT1)}, {s(sT1)}, {WS_X1}')
    a(f's_add_u32 {s(sT2)}, {s(sT1)}, 18432')
    a(f'v_lshlrev_b32 {v(vTMP)}, 3, {v(vLANE)}')
    for k in range(18):
        if k and k % 4 == 0:
            a(f's_add_u32 {s(sT1)}, {s(sT1)}, 4096'); a(f's_add_u32 {s(sT2)}, {s(sT2)}, 4096')
        for i in range(2):
            r = XB + 8*k + 4*i; so = (sT1, sT2)[i]; o = (k % 4) * 1024
            if k < 16:
                a(f'buffer_load_dwordx4 {v(r,4)}, {v(vL16)}, {srd(SWS)}, {s(so)} offen offset:{o} sc1')
            else:
                a(f'buffer_load_dwordx2 {v(r,2)}, {v(vTMP)}, {srd(SWS)}, {s(so)} offen offset:{o} sc1')
                a(f'buffer_load_dwordx2 {v(r+2,2)}, {v(vTMP)}, {srd(SWS)}, {s(so)} offen offset:{o+512} sc1')
    a(f's_lshl_b32 {s(sT1)}, {s(sT0)}, 12'); a(f's_add_u32 {s(sT1)}, {s(sT1)}, {WS_ST}')
    for n in range(4):
        a(f'buffer_load_dwordx4 {v(STREG+4*n,4)}, {v(vL16)}, {srd(SWS)}, {s(sT1)} offen offset:{n*1024} sc1')

def s3_addr_init(a):
    pat_trlo(a, vALO, vAHI, vTMP + 1)
    a(f'v_lshlrev_b32 {v(vAOD)}, 3, {v(vLANE)}')

def w3frag(k, half, what, p=None):
    rb = 2*k + half
    if what == 'odd': return L3A + rb*2560 + 2048
    if p < 2: return L3A + rb*2560 + p*1024
    if p == 2: return L3P2 + rb*1024
    return L3P3 + rb*1024 if k < 16 else L3P3L + (rb - 32)*1024

def cs_w3(a):
    ones, acc = ACC3A, ACC3A + 4
    lo, hi, od = vTMP + 2, vTMP + 3, vTMP + 4
    pat_trlo(a, lo, hi, vTMP + 1)
    a(f'v_lshlrev_b32 {v(od)}, 3, {v(vLANE)}'); a(f'v_add_u32 {v(od)}, {L3A + 2048}, {v(od)}')
    a(f's_cmp_lt_u32 {s(sTG)}, 2')
    a(f's_cselect_b32 {s(sT0)}, 5, 2'); a(f's_lshl_b32 {s(sT0)}, {s(sT0)}, 9')
    a(f's_lshl_b32 {s(sT1)}, {s(sTG)}, 10')
    a(f's_cmp_eq_u32 {s(sTG)}, 2'); a(f's_cselect_b32 {s(sT1)}, {L3P2}, {s(sT1)}')
    a(f's_cmp_eq_u32 {s(sTG)}, 3'); a(f's_cselect_b32 {s(sT1)}, {L3P3}, {s(sT1)}')
    a(f's_cselect_b32 {s(sT2)}, 0, 0x3f803f80')
    a(f's_cselect_b32 {s(sT3)}, 0, {s(sT0)}')
    a(f'v_add_u32 {v(lo)}, {s(sT1)}, {v(lo)}'); a(f'v_add_u32 {v(hi)}, {s(sT1)}, {v(hi)}')
    for r in range(4):
        a(f'v_mov_b32 {v(ones+r)}, 0x3f803f80'); a(f'v_mov_b32 {v(acc+12+r)}, {s(sT2)}')
    def reads(k):
        b = RING + 12*(k & 1)
        for half in range(2):
            a(f'ds_read_b64_tr_b16 {v(b+2*half,2)}, {v(lo)}')
            a(f'ds_read_b64_tr_b16 {v(b+4+2*half,2)}, {v(hi)}')
            a(f'ds_read_b64_tr_b16 {v(b+8+2*half,2)}, {v(od)}')
            st = sT0 if 2*k + half < 31 else sT3
            a(f'v_add_u32 {v(lo)}, {s(st)}, {v(lo)}'); a(f'v_add_u32 {v(hi)}, {s(st)}, {v(hi)}')
            a(f'v_add_u32 {v(od)}, 2560, {v(od)}')
    reads(0)
    for k in range(18):
        if k + 1 < 18: reads(k + 1)
        b = RING + 12*(k & 1)
        bo = ones if k < 16 else acc + 12
        mfma(a, acc, b, bo, None if k == 0 else acc)
        mfma(a, acc+4, b+4, bo, None if k == 0 else acc+4)
        mfma(a, acc+8, b+8, ones, None if k == 0 else acc+8)
    a(f'v_and_b32 {v(lo)}, 48, {v(vLANE)}')
    a(f's_lshl_b32 {s(sT0)}, {s(sTG)}, 7'); a(f's_add_u32 {s(sT0)}, {s(sT0)}, {LCS}')
    a(f'v_add_u32 {v(hi)}, {LCS + 512}, {v(lo)}'); a(f'v_add_u32 {v(lo)}, {s(sT0)}, {v(lo)}')
    setexec(a, 0x0001000100010001)
    a(f'ds_write_b128 {v(lo)}, {v(acc,4)}'); a(f'ds_write_b128 {v(lo)}, {v(acc+4,4)} offset:64')
    a(f'ds_write_b128 {v(hi)}, {v(acc+8,4)}')
    setexec(a, -1)
    a.wait_all(vm=False)

def front_B(a, Y):
    sTT, sG, sQ, sB0 = sR0, sR1, sR2, sR3
    SLOT = 26624
    BF, AF, ACC, CSA, ODD, ODC, ONES = 0, 16, 40, 56, 64, 68, 72
    XN, STT, K0, T8, PK = 76, 88, 96, 104, 112
    aLo, aHi, aOd, aB0, aB1, aH0, aH1 = 200, 201, 202, 203, 204, 205, 206
    dP, dO, dX, t0, t1, t2, vN = 207, 208, 209, 210, 211, 212, 213
    aS0, aS1, aSO, mk0, mk1 = 214, 215, 216, 217, 218
    a(f's_and_b32 {s(sG)}, {s(sIDX)}, 3')
    a(f's_bfe_u32 {s(sT0)}, {s(sIDX)}, 0x20002'); a(f's_lshl_b32 {s(sTT)}, {s(sXC)}, 2'); a(f's_add_u32 {s(sTT)}, {s(sTT)}, {s(sT0)}')
    def ggroup(i, dst):
        if i == 8: a(f's_mov_b32 {s(dst)}, 8'); return
        a(f's_lshl_b32 {s(dst)}, {s(sG)}, 1'); a(f's_add_u32 {s(dst)}, {s(dst)}, {2+i}'); a(f's_and_b32 {s(dst)}, {s(dst)}, 7')
    def wload(sr, slot, tag):
        L = []
        for p in range(4): L.append(lambda p=p: dma(a, sr, dP, sT2, sR4, slot*SLOT + p*1024, 64*p, tag=tag))
        def fo():
            setexec(a, 0xffffffff); dma(a, sr, dO, sT2, sR4, slot*SLOT + 4096, 0, tag=tag); setexec(a, -1)
        return L + [fo]
    def load1(i):
        if not Y:
            def f0(): ggroup(i, sT2); a(f's_mul_i32 {s(sT2)}, {s(sT2)}, {64*1152}')
            return [f0] + wload(SW1, i % 6, ('g', i))
        def fx():
            ggroup(i, sT2); a(f's_lshl_b32 {s(sT2)}, {s(sT2)}, 7')
            dma(a, SX, dX, sT2, sR4, (i % 6)*SLOT + 18432, 0, tag=('g', i))
            dma(a, SX, dX, sT2, sR4, (i % 6)*SLOT + 18432 + 4096, 64, tag=('g', i))
        return [fx]
    def w2init():
        pat_pair(a, dP, t0, t1, 1152, False); pat_odd(a, dO, t0, t1, 1152, False)
        a(f's_mul_i32 {s(sT0)}, {s(sTG)}, {16*1152}')
        a(f's_lshl_b32 {s(sT1)}, {s(sG)}, 8'); a(f's_add_u32 {s(sT1)}, {s(sT1)}, {s(sT0)}'); a(f'v_add_u32 {v(dP)}, {s(sT1)}, {v(dP)}')
        a(f's_lshl_b32 {s(sT1)}, {s(sG)}, 5'); a(f's_add_u32 {s(sT1)}, {s(sT1)}, {s(sT0)}'); a(f's_add_u32 {s(sT1)}, {s(sT1)}, 1024')
        a(f'v_add_u32 {v(dO)}, {s(sT1)}, {v(dO)}')
    def load2(i):
        slot = (i + 3) % 6
        if not Y:
            return [lambda: a(f's_mov_b32 {s(sT2)}, {i*64*1152}')] + wload(SW2, slot, ('h', i))
        def fx():
            a(f's_add_u32 {s(sT2)}, {s(sR5)}, {i*2048}')
            dma(a, SWS, vL16, sT2, sR4, slot*SLOT + 18432, 0, 'sc1', tag=('h', i))
            dma(a, SWS, vL16, sT2, sR4, slot*SLOT + 18432 + 4096, 1024, 'sc1', tag=('h', i))
        return [fx]
    if not Y:
        pat_pair(a, dP, t0, t1, 1152, True); pat_odd(a, dO, t0, t1, 1152, True)
        a(f's_lshr_b32 {s(sT0)}, {s(sTG)}, 1'); a(f's_lshl_b32 {s(sT0)}, {s(sT0)}, 5')
        a(f's_and_b32 {s(sT1)}, {s(sTG)}, 1'); a(f's_lshl_b32 {s(sT1)}, {s(sT1)}, 2'); a(f's_add_u32 {s(sT0)}, {s(sT0)}, {s(sT1)}')
        a(f's_mul_i32 {s(sT0)}, {s(sT0)}, 1152')
        a(f's_mul_i32 {s(sT1)}, {s(sG)}, 288'); a(f's_add_u32 {s(sT0)}, {s(sT0)}, {s(sT1)}')
        a(f's_bitcmp1_b32 {s(sG)}, 0')
        a(f's_cselect_b32 {s(sT1)}, 32, 0'); a(f's_cselect_b32 {s(sT3)}, 0, 256')
        a(f's_add_u32 {s(sT1)}, {s(sT1)}, {s(sT0)}'); a(f's_add_u32 {s(sT3)}, {s(sT3)}, {s(sT0)}')
        a(f'v_add_u32 {v(dP)}, {s(sT1)}, {v(dP)}'); a(f'v_add_u32 {v(dO)}, {s(sT3)}, {v(dO)}')
        a(f's_mul_i32 {s(sR4)}, {s(sTG)}, 4608')
    else:
        pat_x(a, dX, t0, t1)
        a(f's_lshl_b32 {s(sT0)}, {s(sTT)}, 2'); a(f's_add_u32 {s(sT0)}, {s(sT0)}, {s(sTG)}')
        a(f's_mul_i32 {s(sT0)}, {s(sT0)}, 18432')
        a(f'v_add_u32 {v(dX)}, {s(sT0)}, {v(dX)}')
        a(f's_add_u32 {s(sR5)}, {s(sT0)}, {WS_HS}')
        a(f's_lshl_b32 {s(sR4)}, {s(sTG)}, 10')
    kargs_ready(a)
    if Y: nonce_issue(a, 219, 220)
    for i in range(6): run(load1(i))
    if Y: nonce_make(a, 219, 220)
    a(f's_and_b32 {s(sQ)}, {s(sW)}, 1')
    if Y: a(f's_add_u32 {s(sQ)}, {s(sQ)}, 2')
    pat_trlo(a, aLo, aHi, t0)
    a(f's_lshl_b32 {s(sT0)}, {s(sQ)}, 10')
    a(f'v_add_u32 {v(aLo)}, {s(sT0)}, {v(aLo)}'); a(f'v_add_u32 {v(aHi)}, {s(sT0)}, {v(aHi)}')
    a(f'v_lshlrev_b32 {v(aOd)}, 3, {v(vLANE)}')
    pat_xread(a, aB0, t0, t1)
    a(f's_lshl_b32 {s(sT0)}, {s(sTG)}, 10'); a(f'v_add_u32 {v(aB0)}, {s(sT0)}, {v(aB0)}')
    a(f'v_xor_b32 {v(aB1)}, 1024, {v(aB0)}')
    for r in range(4): a(f'v_mov_b32 {v(ONES+r)}, 0x3f803f80')
    RLo, RHi, ROd, RB0, RB1 = (AddrReg(x) for x in (aLo, aHi, aOd, aB0, aB1))
    def areads(pos, slot):
        L = []; b = AF + 12*(pos & 1)
        for half in range(2):
            base = slot*SLOT + (2*(pos & 1) + half)*4608
            L.append(lambda base=base, half=half: tr(a, b + 2*half, RLo, base))
            L.append(lambda base=base, half=half: tr(a, b + 4 + 2*half, RHi, base))
            if not Y: L.append(lambda base=base, half=half: tr(a, b + 8 + 2*half, ROd, base + 4096))
        return L
    def reads1(pos):
        slot = (pos // 2) % 6; xb = slot*SLOT + 18432 + (pos & 1)*4096; b = BF + 8*(pos & 1)
        return [lambda: dsr(a, 4, b, RB0, xb), lambda: dsr(a, 4, b + 4, RB1, xb)] + areads(pos, slot)
    def mf1(pos):
        A_ = AF + 12*(pos & 1); B_ = BF + 8*(pos & 1); z = pos == 0
        M = lambda d, x, y: (lambda: mfma(a, d, x, y, None if z else d))
        L = [M(ACC, A_, B_), M(ACC+4, A_+4, B_), M(ACC+8, A_, B_+4), M(ACC+12, A_+4, B_+4), M(CSA, A_, ONES), M(CSA+4, A_+4, ONES)]
        if not Y: L += [M(ODD, A_+8, B_), M(ODC, A_+8, ONES)]
        else: L += [M(ODD, B_, B_), M(ODC, ONES, B_)]
        return L
    def refill1(G):
        L = []
        if G + 5 < 9: L = load1(G + 5)
        elif not Y:
            if G + 5 == 9: L.append(w2init)
            L += load2(G + 5 - 9)
        if G == 5: L.append(lambda: get_nonce_issue(a, vN))
        return L
    stamp(a, 0)
    front_loop(a, reads1, mf1, refill1, lambda G: ('g', G))
    stamp(a, 1)
    a(f'v_and_b32 {v(t0)}, 15, {v(vLANE)}'); a(f'v_lshlrev_b32 {v(t2)}, 6, {v(t0)}')
    a(f'v_and_b32 {v(t0)}, 8, {v(vLANE)}'); a(f'v_lshl_add_u32 {v(t2)}, {v(t0)}, 2, {v(t2)}')
    a(f'v_lshrrev_b32 {v(t0)}, 4, {v(vLANE)}'); a(f'v_lshl_add_u32 {v(t2)}, {v(t0)}, 3, {v(t2)}')
    a(f's_lshl_b32 {s(sT0)}, {s(sTG)}, 10'); a(f'v_add_u32 {v(t2)}, {s(sT0)}, {v(t2)}')
    a(f's_and_b32 {s(sT0)}, {s(sQ)}, 1'); a(f's_lshl_b32 {s(sT0)}, {s(sT0)}, 12')
    a(f's_add_u32 {s(sT0)}, {s(sT0)}, {((7 if Y else 6) % 6)*SLOT + 18432}')
    a(f'v_add_u32 {v(t0)}, {s(sT0)}, {v(t2)}')
    a(f'ds_read_b64 {v(XN,2)}, {v(t0)}'); a(f'v_xor_b32 {v(t1)}, 32, {v(t0)}'); a(f'ds_read_b64 {v(XN+2,2)}, {v(t1)}')
    a(f'v_xor_b32 {v(t0)}, 1024, {v(t0)}'); a(f'ds_read_b64 {v(XN+4,2)}, {v(t0)}')
    a(f'v_xor_b32 {v(t1)}, 1024, {v(t1)}'); a(f'ds_read_b64 {v(XN+6,2)}, {v(t1)}')
    if not Y:
        a(f's_lshr_b32 {s(sT0)}, {s(sG)}, 1'); a(f's_lshl_b32 {s(sT0)}, {s(sT0)}, 12'); a(f's_add_u32 {s(sT0)}, {s(sT0)}, {2*SLOT + 18432}')
        a(f's_and_b32 {s(sT1)}, {s(sG)}, 1'); a(f's_lshl_b32 {s(sT1)}, {s(sT1)}, 5')
        a(f'v_xor_b32 {v(t2)}, {s(sT1)}, {v(t2)}'); a(f'v_add_u32 {v(t2)}, {s(sT0)}, {v(t2)}')
        a(f'ds_read_b64 {v(XN+8,2)}, {v(t2)}')
    a(f'v_and_b32 {v(t2)}, 15, {v(vLANE)}'); a(f'v_lshlrev_b32 {v(t2)}, 4, {v(t2)}')
    a(f's_lshl_b32 {s(sT0)}, {s(sTG)}, 8'); a(f's_add_u32 {s(sT0)}, {s(sT0)}, {LSC2}'); a(f'v_add_u32 {v(t2)}, {s(sT0)}, {v(t2)}')
    if Y:
        diag_select(a, T8, ODD, t0)
        mean_var(a, ODC, T8, STT, T8+1)
        a(f'v_add_f32 {v(T8+2)}, {hx(f2u(1e-5))}, {v(T8+1)}'); a(f'v_rsq_f32 {v(STT+2)}, {v(T8+2)}')
        a(f'v_mul_f32 {v(T8+1)}, {v(T8+1)}, {v(STT+2)}'); a(f'v_mov_b32 {v(T8+3)}, {hx(f2u(1e-5))}')
        a(f'v_fmac_f32 {v(T8+3)}, {v(T8+1)}, {v(STT+2)}'); a(f'v_rsq_f32 {v(T8+3)}, {v(T8+3)}')
        a(f'v_mul_f32 {v(STT+1)}, {v(T8+3)}, {v(STT+2)}'); a(f'v_mov_b32 {v(STT+3)}, 0')
        setexec(a, DIAG); a(f'ds_write_b128 {v(t2)}, {v(STT,4)}'); setexec(a, -1)
    a(f's_lshr_b32 {s(sT0)}, {s(sG)}, 1'); a(f's_add_u32 {s(sT0)}, {s(sT0)}, 1')
    a(f's_sub_u32 {s(sT1)}, 0, {s(sT0)}'); a(f's_bitcmp1_b32 {s(sG)}, 0'); a(f's_cselect_b32 {s(sT0)}, {s(sT1)}, {s(sT0)}')
    a(f's_lshl_b32 {s(sT1)}, {s(sTT)}, 6'); a(f's_add_u32 {s(sT0)}, {s(sT0)}, {s(sT1)}')
    for i, (ad, mk) in enumerate(((aS0, mk0), (aS1, mk1))):
        a(f's_xor_b32 {s(sT1)}, {s(sTG)}, {i}'); a(f's_lshl_b32 {s(sT1)}, {s(sT1)}, 4'); a(f's_add_u32 {s(sT1)}, {s(sT1)}, {s(sT0)}')
        a(f'v_and_b32 {v(t0)}, 15, {v(vLANE)}'); a(f'v_add_u32 {v(t0)}, {s(sT1)}, {v(t0)}')
        a(f'v_cmp_gt_u32 vcc, 2048, {v(t0)}'); a(f'v_cndmask_b32 {v(mk)}, 0, -1, vcc')
        a(f'v_bfe_u32 {v(t1)}, {v(t0)}, 4, 7'); a(f'v_mul_u32_u24 {v(ad)}, 18432, {v(t1)}')
        a(f'v_and_b32 {v(t0)}, 15, {v(t0)}'); a(f'v_and_or_b32 {v(t0)}, {v(vLANE)}, 48, {v(t0)}')
        if i == 0 and not Y: a(f'v_lshl_add_u32 {v(aSO)}, {v(t0)}, 3, {v(ad)}')
        a(f'v_lshl_add_u32 {v(ad)}, {v(t0)}, 4, {v(ad)}')
    a.wait_all(vm=False); barrier(a)
    a(f'ds_read_b128 {v(STT,4)}, {v(t2)}'); a(f'v_xor_b32 {v(t2)}, 256, {v(t2)}'); a(f'ds_read_b128 {v(STT+4,4)}, {v(t2)}')
    late = load2(5) if not Y else []
    a(f's_mul_i32 {s(sT0)}, {s(sG)}, 9'); a(f's_add_u32 {s(sT0)}, {s(sT0)}, 1'); a(f's_lshr_b32 {s(sT0)}, {s(sT0)}, 1')
    a(f's_add_u32 {s(sT0)}, {s(sT0)}, {s(sQ)}'); a(f's_lshl_b32 {s(sT0)}, {s(sT0)}, 10'); a(f's_add_u32 {s(sT4)}, {s(sT0)}, {WS_HS}')
    a(f's_cmp_lt_u32 {s(sG)}, 2'); a(f's_cselect_b32 {s(sT0)}, 0, {9*1024}'); a(f's_add_u32 {s(sT0)}, {s(sT0)}, {WS_HS + 4*1024}')
    a(f's_and_b32 {s(sT1)}, {s(sG)}, 1'); a(f's_lshl_b32 {s(sT1)}, {s(sT1)}, 9'); a(f's_add_u32 {s(sT5)}, {s(sT0)}, {s(sT1)}')
    for i in range(2):
        a(f'v_mov_b32 {v(K0+4*i)}, {v(STT+4*i)}')
        gelu_consts(a, STT+4*i+1, K0+4*i+1, K0+4*i+2, K0+4*i+3)
    for i, (ad, mk) in enumerate(((aS0, mk0), (aS1, mk1))):
        run(gelu8(a, [(ACC+8*i+r, CSA+r, K0+4*i) for r in range(8)], T8))
        run(pack(a, PK+4*i, T8, 4))
        for r in range(4): a(f'v_and_b32 {v(PK+4*i+r)}, {v(PK+4*i+r)}, {v(mk)}')
        a(f'buffer_store_dwordx4 {v(PK+4*i,4)}, {v(ad)}, {srd(SWS)}, {s(sT4)} offen sc1', tag='st')
    if not Y:
        run(gelu8(a, [(ODD+r, ODC+r, K0) for r in range(4)], T8))
        run(pack(a, PK+8, T8, 2))
        for r in range(2): a(f'v_and_b32 {v(PK+8+r)}, {v(PK+8+r)}, {v(mk0)}')
        a(f'buffer_store_dwordx2 {v(PK+8,2)}, {v(aSO)}, {srd(SWS)}, {s(sT5)} offen sc1', tag='st')
    run(late)
    get_nonce_check(a, vN)
    for i in range(2):
        a(f'v_mul_f32 {v(STT+4*i)}, {v(STT+4*i)}, {v(STT+4*i+2)}')
    def xn_init(dst, src, i, n):
        for r in range(n):
            a(f'v_lshlrev_b32 {v(dst+2*r)}, 16, {v(src+r)}'); a(f'v_and_b32 {v(dst+2*r+1)}, 0xffff0000, {v(src+r)}')
        for r in range(2*n): a(f'v_fma_f32 {v(dst+r)}, {v(dst+r)}, {v(STT+4*i+2)}, {v(STT+4*i)}')
    xn_init(ACC, XN, 0, 4); xn_init(ACC+8, XN+4, 1, 4)
    if not Y: xn_init(ODD, XN+8, 0, 2)
    a(f's_lshl_b32 {s(sT0)}, {s(sTG)}, 10')
    a(f'v_add_u32 {v(aB0)}, {s(sT0)}, {v(vL16)}'); a(f'v_xor_b32 {v(aB1)}, 1024, {v(aB0)}')
    a(f'v_lshlrev_b32 {v(aH0)}, 3, {v(vLANE)}'); a(f'v_add_u32 {v(aH0)}, {s(sT0)}, {v(aH0)}'); a(f'v_xor_b32 {v(aH1)}, 1024, {v(aH0)}')
    RB0, RB1, RH0, RH1 = (AddrReg(x) for x in (aB0, aB1, aH0, aH1))
    if Y:
        a(f's_bitcmp1_b32 {s(sG)}, 0'); a(f's_cselect_b32 {s(sT0)}, 31, 1'); a(f's_cselect_b32 {s(sT1)}, 24, 16')
        a(f's_add_u32 {s(sT0)}, {s(sT0)}, {s(sTT)}'); a(f's_and_b32 {s(sT0)}, {s(sT0)}, 31'); a(f's_lshl_b32 {s(sT0)}, {s(sT0)}, 9')
        a(f's_add_u32 {s(sT0)}, {s(sT0)}, {s(sT1)}'); a(f's_and_b32 {s(sT1)}, {s(sG)}, 2'); a(f's_lshl_b32 {s(sT1)}, {s(sT1)}, 1')
        a(f's_add_u32 {s(sT0)}, {s(sT0)}, {s(sT1)}')
        a(f's_lshl_b32 {s(sT1)}, {s(sTT)}, 9'); a(f's_lshl_b32 {s(sT3)}, {s(sG)}, 2'); a(f's_add_u32 {s(sT1)}, {s(sT1)}, {s(sT3)}')
        a(f'v_mov_b32 {v(t0)}, {s(sT0)}'); a(f'v_mov_b32 {v(t1)}, {s(sT1)}')
        a(f'v_cmp_gt_u32 vcc, 4, {v(vLANE)}'); a(f'v_cndmask_b32 {v(t0)}, {v(t0)}, {v(t1)}, vcc')
        a(f'v_and_b32 {v(t1)}, 3, {v(vLANE)}'); a(f'v_lshl_add_u32 {v(t0)}, {v(t1)}, 7, {v(t0)}')
    a.wait_vm_tag('st');
    stamp(a, 2)
    barrier(a)
    if Y:
        sk = a.newlabel('noflag')
        a(f's_mov_b32 {s(sT3)}, {MB_H}')
        a(f's_cmp_lg_u32 {s(sTG)}, 0'); a(f's_cbranch_scc1 {sk}')
        flag_write(a, t0, sT3, 0xFF, t1); a.vmq.pop()
        a.label(sk)
        a(f's_lshl_b32 {s(sT0)}, {s(sTT)}, 2'); a(f's_add_u32 {s(sT0)}, {s(sT0)}, {s(sG)}'); a(f's_lshl_b32 {s(sT0)}, {s(sT0)}, 7')
        a(f's_add_u32 {s(sT3)}, {s(sT0)}, {MB_H}')
        poll(a, t1, t2, sT3, 0xFF)
        stamp(a, 3)
        for i in range(6): run(load2(i))
    def reads2(pos):
        slot = (pos // 2 + 3) % 6; xb = slot*SLOT + 18432 + (pos & 1)*4096; b = BF + 8*(pos & 1)
        if pos in (4, 13):
            L = [lambda: dsr(a, 2, b, RH0, xb), lambda: dsr(a, 2, b+2, RH0, xb+512), lambda: dsr(a, 2, b+4, RH1, xb), lambda: dsr(a, 2, b+6, RH1, xb+512)]
        else:
            L = [lambda: dsr(a, 4, b, RB0, xb), lambda: dsr(a, 4, b + 4, RB1, xb)]
        return L + areads(pos, slot)
    def mf2(pos):
        A_ = AF + 12*(pos & 1); B_ = BF + 8*(pos & 1)
        M = lambda d, x, y: (lambda: mfma(a, d, x, y, d))
        L = [M(ACC, A_, B_), M(ACC+4, A_+4, B_), M(ACC+8, A_, B_+4), M(ACC+12, A_+4, B_+4)]
        if not Y: L += [M(ODD, A_+8, B_)]
        return L
    front_loop(a, reads2, mf2, lambda G: load2(G + 5) if G + 5 < 9 else [], lambda G: ('h', G))
    stamp(a, 4)
    a(f's_lshl_b32 {s(sT0)}, {s(sTT)}, 2'); a(f's_add_u32 {s(sT0)}, {s(sT0)}, {s(sTG)}')
    a(f's_lshl_b32 {s(sT1)}, {s(sG)}, 2'); a(f's_add_u32 {s(sT1)}, {s(sT1)}, {s(sQ)}'); a(f's_lshl_b32 {s(sT1)}, {s(sT1)}, 10')
    a(f's_add_u32 {s(sT1)}, {s(sT1)}, {WS_X1}')
    for i in range(2):
        run(pack(a, PK+4*i, ACC+8*i, 4))
        a(f's_xor_b32 {s(sT2)}, {s(sT0)}, {i}'); a(f's_mul_i32 {s(sT2)}, {s(sT2)}, 18432'); a(f's_add_u32 {s(sT2)}, {s(sT2)}, {s(sT1)}')
        a(f'buffer_store_dwordx4 {v(PK+4*i,4)}, {v(vL16)}, {srd(SWS)}, {s(sT2)} offen sc1', tag='st')
    if not Y:
        run(pack(a, PK+8, ODD, 2))
        a(f's_mul_i32 {s(sT2)}, {s(sT0)}, 18432'); a(f's_lshl_b32 {s(sT3)}, {s(sG)}, 9'); a(f's_add_u32 {s(sT2)}, {s(sT2)}, {s(sT3)}')
        a(f's_add_u32 {s(sT2)}, {s(sT2)}, {WS_X1 + 16*1024}')
        a(f'v_lshlrev_b32 {v(t0)}, 3, {v(vLANE)}')
        a(f'buffer_store_dwordx2 {v(PK+8,2)}, {v(t0)}, {srd(SWS)}, {s(sT2)} offen sc1', tag='st')
    for i in range(2):
        rs = [ACC+8*i+r for r in range(8)] + ([ODD+r for r in range(4)] if (i == 0 and not Y) else [])
        su, sq = T8 + i, T8 + 2 + i
        a(f'v_add_f32 {v(su)}, {v(rs[0])}, {v(rs[1])}'); a(f'v_mul_f32 {v(sq)}, {v(rs[0])}, {v(rs[0])}')
        a(f'v_fmac_f32 {v(sq)}, {v(rs[1])}, {v(rs[1])}')
        for r in rs[2:]:
            a(f'v_add_f32 {v(su)}, {v(su)}, {v(r)}'); a(f'v_fmac_f32 {v(sq)}, {v(r)}, {v(r)}')
    a(f'v_permlane32_swap_b32 {v(T8)}, {v(T8+1)}'); a(f'v_permlane32_swap_b32 {v(T8+2)}, {v(T8+3)}')
    a(f'v_add_f32 {v(T8)}, {v(T8)}, {v(T8+1)}'); a(f'v_add_f32 {v(T8+2)}, {v(T8+2)}, {v(T8+3)}')
    a(f'v_lshrrev_b32 {v(t0)}, 5, {v(vLANE)}'); a(f'v_xor_b32 {v(t0)}, {s(sT0)}, {v(t0)}'); a(f'v_lshlrev_b32 {v(t0)}, 11, {v(t0)}')
    a(f'v_permlane16_swap_b32 {v(T8)}, {v(T8+2)}')
    a(f'v_and_b32 {v(t1)}, 16, {v(vLANE)}'); a(f'v_lshl_add_u32 {v(t0)}, {v(t1)}, 6, {v(t0)}')
    a(f'v_and_b32 {v(t1)}, 15, {v(vLANE)}'); a(f'v_lshl_add_u32 {v(t0)}, {v(t1)}, 4, {v(t0)}')
    a(f'v_add_f32 {v(T8)}, {v(T8)}, {v(T8+2)}')
    a(f's_lshl_b32 {s(sT1)}, {s(sG)}, 8'); a(f's_lshl_b32 {s(sT2)}, {s(sQ)}, 2'); a(f's_add_u32 {s(sT1)}, {s(sT1)}, {s(sT2)}')
    a(f's_add_u32 {s(sT1)}, {s(sT1)}, {WS_ST}')
    a(f'buffer_store_dword {v(T8)}, {v(t0)}, {srd(SWS)}, {s(sT1)} offen sc1', tag='st')
    w3 = w3_dma_list(a) if Y else []
    if Y: w3.pop(0)()
    a(f'v_lshlrev_b32 {v(t0)}, 7, {v(vLANE)}')
    a(f's_lshl_b32 {s(sT3)}, {s(sTT)}, 12'); a(f's_lshl_b32 {s(sT1)}, {s(sG)}, 2'); a(f's_add_u32 {s(sT3)}, {s(sT3)}, {s(sT1)}')
    a(f's_add_u32 {s(sT3)}, {s(sT3)}, {MB_X}')
    a.wait_vm_tag('st')
    stamp(a, 5)
    barrier(a)
    if not Y:
        sk = a.newlabel('noflag')
        a(f's_cmp_lg_u32 {s(sTG)}, 0'); a(f's_cbranch_scc1 {sk}')
        flag_write(a, t0, sT3, 0xFFFFFFFF, t1); a.vmq.pop()
        a.label(sk)
        e2_poll(a)
        stamp(a, 6)
        x_loads(a)
        s3_addr_init(a)
        barrier(a)
    else:
        run(w3)
        e2_poll(a)
        a.wait_all(lg=False)
        stamp(a, 6)
        barrier(a)
        x_loads(a)
        cs_w3(a)
        s3_addr_init(a)

def nonce_issue(a, vz, ve):
    a(f'v_mov_b32 {v(vz)}, 0')
    a(f'buffer_load_dword {v(ve)}, {v(vz)}, {srd(SWS)}, 0 offen sc1')
def nonce_make(a, vz, ve):
    sk = a.newlabel('nononce')
    a(f's_or_b32 {s(sT0)}, s2, {s(sTG)}'); a(f's_cmp_lg_u32 {s(sT0)}, 0'); a(f's_cbranch_scc1 {sk}')
    o = a.fork()
    o(f'v_readfirstlane_b32 {s(sT0)}, {v(ve)}')
    o(f's_mul_i32 {s(sT0)}, {s(sT0)}, 1664525'); o(f's_add_u32 {s(sT0)}, {s(sT0)}, 1013904223')
    o(f's_cmp_eq_u32 {s(sT0)}, 0'); o(f's_cselect_b32 {s(sT0)}, 1013904223, {s(sT0)}')
    o(f'v_mov_b32 {v(ve)}, {s(sT0)}')
    setexec(o, 1)
    o(f'buffer_store_dword {v(ve)}, {v(vz)}, {srd(SDBG)}, 0 offen sc1')
    o(f'buffer_store_dword {v(ve)}, {v(vz)}, {srd(SWS)}, 0 offen sc1')
    setexec(o, -1)
    a.out += o.out
    a.label(sk)
    a.nop(2)

class Ring:
    def __init__(self, a, nslot=6):
        self.a = a; self.n = nslot
    def prefetch(self, steps, count):
        for i in range(count): self._read(steps, i)
        return count
    def _rd(self, steps, i):
        r = RING + 4*(i % self.n)
        return [(lambda h=h, ar=ar, ad=ad: tr(self.a, r + 2*h, ar, ad)) for h, (ar, ad) in enumerate(steps[i][0])]
    def _read(self, steps, i): run(self._rd(steps, i))
    def block(self, steps, done=0, hooks=None, pd=5):
        hooks = hooks or {}
        nxt = done
        while nxt < min(pd, len(steps)): self._read(steps, nxt); nxt += 1
        for i, (_, mf) in enumerate(steps):
            if i in hooks: hooks[i]()
            rd = []
            if nxt < len(steps) and nxt <= i + pd: rd = self._rd(steps, nxt); nxt += 1
            ms = mf(RING + 4*(i % self.n))
            for m in ms:
                m()
                if rd: rd.pop(0)()
            run(rd)

S4B = []
for p in range(4): S4B.append(HOWN + 8*p)
for n in range(6): S4B.append(XB + 8*n)
for n in range(2): S4B.append(XB + 48 + 8*n)
for n in range(2): S4B.append(XB + 64 + 8*n)
S4B.append(XB + 80)
for n in range(6): S4B.append(XB + 84 + 8*n)
ACC4O, ACC4 = XB + 132, 176
A4CH = {0: 0, 1: 10240, 2: 20480, 3: 30720, 4: 40960, 5: 51200, 6: 61440, 7: 71680, 'x': 81920, 8: 92160, 9: 102400}
B4CH = {0: 112640, 1: 120832, 2: 129024, 3: 137216, 4: 145408, 5: 153600, 'x': 84480, 6: 1024, 7: 9216, 8: 17408, 9: 25600}
def s4_rb(slot, half):
    if slot == 14: return 'x', 0
    sl = slot if slot < 14 else slot - 1
    return sl // 2, 2*(sl % 2) + half

def s34(a, Y):
    R = Ring(a)
    Lo, Hi, Od = AddrReg(vALO), AddrReg(vAHI), AddrReg(vAOD)
    sH, sE, sP = sR0, sR1, sR2
    CS = RING + 16
    a(f's_lshl_b32 {s(sT0)}, {s(sMI)}, 3'); a(f's_add_u32 {s(sT0)}, {s(sT0)}, {s(sJ)}')
    a(f's_lshl_b32 {s(sT1)}, {s(sT0)}, 3'); a(f's_add_u32 {s(sT1)}, {s(sT1)}, {s(sW)}')
    a(f's_mul_i32 {s(sH)}, {s(sT1)}, 36864'); a(f's_add_u32 {s(sH)}, {s(sH)}, {WS_H}')
    a(f's_lshl_b32 {s(sE)}, {s(sT1)}, 9'); a(f's_add_u32 {s(sE)}, {s(sE)}, {MB_E}')
    a(f's_lshl_b32 {s(sT0)}, {s(sMI)}, 2'); a(f's_add_u32 {s(sT0)}, {s(sT0)}, {s(sC)}')
    a(f's_lshl_b32 {s(sR3)}, {s(sT0)}, 3')
    a(f's_add_u32 {s(sT0)}, {s(sR3)}, {s(sW)}'); a(f's_mul_i32 {s(sP)}, {s(sT0)}, 73728')
    a(f's_lshl_b32 {s(sT1)}, {s(sJ)}, 10'); a(f's_add_u32 {s(sP)}, {s(sP)}, {s(sT1)}'); a(f's_add_u32 {s(sP)}, {s(sP)}, {WS_P}')

    def steps3(tiles, acc0, extra=None):
        St = []
        for k in range(18):
            for n, (what, p, eta) in enumerate(tiles):
                ar = Od if what == 'odd' else (Lo, Hi)[eta]
                def mf(fr, k=k, n=n, what=what, eta=eta):
                    L = []
                    for i in range(2):
                        d = acc0(n, i)
                        L.append(lambda d=d, i=i: mfma(a, d, fr, XB + 8*k + 4*i, None if k == 0 else d))
                    if extra and k >= 16: L.append(lambda: mfma(a, extra[0] + 4*eta, fr, extra[1], extra[0] + 4*eta))
                    return L
                St.append(([(ar, w3frag(k, h, what, p)) for h in range(2)], mf))
        return St
    TA = [('odd', None, 0), ('p', 0, 0), ('p', 0, 1), ('p', 1, 0), ('p', 1, 1)]
    accA3 = lambda n, i: ACC3A + 4*i if n == 0 else ACC3A + 8 + 16*((n-1)//2) + 8*i + 4*((n-1) % 2)
    accB3 = lambda n, i: ACCB + 8*i + 4*n
    A3 = steps3(TA, accA3)
    B3a = steps3([('p', 2, 0), ('p', 2, 1)], accB3)
    CS3, ONE3 = 176, 184
    B3b = steps3([('p', 3, 0), ('p', 3, 1)], accB3, extra=(CS3, ONE3))

    def cs_read(dst, tile, n):
        a(f'v_and_b32 {v(vPOLL)}, 48, {v(vLANE)}'); a(f'v_add_u32 {v(vPOLL)}, {LCS}, {v(vPOLL)}')
        for u in range(n): a(f'ds_read_b128 {v(dst+4*u,4)}, {v(vPOLL)} offset:{(tile+u)*64}')
    def hstore(src, kslot_expr_imm, odd=False):
        if odd:
            a(f's_lshl_b32 {s(sT4)}, {s(sC)}, 10'); a(f's_add_u32 {s(sT4)}, {s(sT4)}, 32768')
        else:
            a(f's_lshl_b32 {s(sT4)}, {s(sC)}, 13'); a(f's_add_u32 {s(sT4)}, {s(sT4)}, {kslot_expr_imm}')
        a(f's_add_u32 {s(sT4)}, {s(sT4)}, {s(sH)}')
        a(f'buffer_store_dwordx4 {v(src,4)}, {v(vL16)}, {srd(SWS)}, {s(sT4)} offen sc1', tag='hs')
    def gelu_pair(acc, p, cs, read=True):
        L = []
        if read: L.append(lambda: cs_read(cs, 2*p, 2))
        for i in range(2):
            L += gelu8(a, [(acc + 8*i + r, cs + r, vGC + 4*i) for r in range(8)], vTMP)
            L += pack(a, HOWN + 8*p + 4*i, vTMP, 4)
            L.append(lambda i=i: hstore(HOWN + 8*p + 4*i, p*2048 + i*1024))
        return L
    def stats():
        for n in range(4):
            r = STREG + 4*n
            a(f'v_add_f32 {v(r)}, {v(r)}, {v(r+1)}'); a(f'v_add_f32 {v(r+2)}, {v(r+2)}, {v(r+3)}'); a(f'v_add_f32 {v(r)}, {v(r)}, {v(r+2)}')
        for n in range(4): allreduce_g(a, STREG + 4*n, STREG + 4*n + 1)
        for i in range(2):
            mean_var(a, STREG + 8*i, STREG + 8*i + 4, vGC + 4*i, STREG + 8*i + 1)
            a(f'v_add_f32 {v(STREG+8*i+1)}, {hx(f2u(1e-5))}, {v(STREG+8*i+1)}'); a(f'v_rsq_f32 {v(STREG+8*i+2)}, {v(STREG+8*i+1)}')
            gelu_consts(a, STREG+8*i+2, vGC+4*i+1, vGC+4*i+2, vGC+4*i+3)
    def G3a():
        L = [stats, lambda: cs_read(CS, 8, 1)]
        L += gelu8(a, [(ACC3A + r, CS + (r & 3), vGC + 4*(r >> 2)) for r in range(8)], vTMP)
        L += pack(a, HOWN + 16, vTMP, 4)
        L.append(lambda: hstore(HOWN + 16, 0, odd=True))
        L += gelu_pair(ACC3A + 8, 0, CS) + gelu_pair(ACC3A + 24, 1, CS)
        return L
    def eflag(word):
        a.wait_vm_tag('hs')
        a(f'v_lshlrev_b32 {v(vTMP)}, 7, {v(vLANE)}')
        a(f's_lshl_b32 {s(sT4)}, {s(sC)}, 2'); a(f's_add_u32 {s(sT4)}, {s(sT4)}, {word*4}'); a(f's_add_u32 {s(sT4)}, {s(sT4)}, {s(sE)}')
        flag_write(a, vTMP, sT4, 0xF, vTMP + 1)
    def ebox():
        a(f's_lshl_b32 {s(sT5)}, {s(sC)}, 7'); a(f's_add_u32 {s(sT5)}, {s(sT5)}, {s(sE)}')
    M1 = 0x0F if cfg.no_a else 0x1F
    def w4init():
        pat_pair(a, vDP, vPOLL, vDO, 1152, False)
        a(f'v_bfe_u32 {v(vPOLL)}, {v(vLANE)}, 1, 4'); a(f'v_mul_u32_u24 {v(vPOLL)}, 1152, {v(vPOLL)}')
        a(f'v_and_b32 {v(vDO)}, 1, {v(vLANE)}'); a(f'v_lshl_add_u32 {v(vDO)}, {v(vDO)}, 4, {v(vPOLL)}')
        a(f's_mul_i32 {s(sT0)}, {s(sTG)}, {16*1152}'); a(f's_mul_i32 {s(sT1)}, {s(sJ)}, {576*1152}'); a(f's_add_u32 {s(sT0)}, {s(sT0)}, {s(sT1)}')
        colfix(sT0)
    def colfix(sb):
        a(f's_lshl_b32 {s(sT1)}, {s(sC)}, 8'); a(f's_add_u32 {s(sT1)}, {s(sT1)}, {s(sb)}'); a(f'v_add_u32 {v(vDP)}, {s(sT1)}, {v(vDP)}')
        a(f's_lshl_b32 {s(sT1)}, {s(sC)}, 5'); a(f's_add_u32 {s(sT1)}, {s(sT1)}, {s(sb)}'); a(f's_add_u32 {s(sT1)}, {s(sT1)}, 1024')
        a(f'v_add_u32 {v(vDO)}, {s(sT1)}, {v(vDO)}')
    def woinit(last):
        for d, sh, nb in ((vDP, 2, 2), (vDO, 1, 1)):
            a(f'v_bfe_u32 {v(vPOLL)}, {v(vLANE)}, {sh + 2}, 2')
            a(f'v_mul_u32_u24 {v(d)}, 18, {v(vPOLL)}')
            a(f'v_and_b32 {v(vPOLL)}, 1, {v(vPOLL)}')
            if not last: a(f'v_xor_b32 {v(vPOLL)}, 1, {v(vPOLL)}')
            a(f'v_lshl_add_u32 {v(d)}, {v(vPOLL)}, {4 if last else 1}, {v(d)}')
            a(f'v_bfe_u32 {v(vPOLL)}, {v(vLANE)}, {sh}, 2'); a(f'v_add_u32 {v(d)}, {v(d)}, {v(vPOLL)}')
            a(f'v_mul_u32_u24 {v(d)}, 1152, {v(d)}')
            if nb == 2:
                a(f'v_lshrrev_b32 {v(vPOLL)}, 3, {v(vLANE)}'); a(f'v_and_b32 {v(vPOLL)}, 2, {v(vPOLL)}')
                a(f'v_xor_b32 {v(vPOLL)}, {v(vPOLL)}, {v(vLANE)}'); a(f'v_and_b32 {v(vPOLL)}, 3, {v(vPOLL)}')
            else:
                a(f'v_and_b32 {v(vPOLL)}, 1, {v(vLANE)}')
            a(f'v_lshl_add_u32 {v(d)}, {v(vPOLL)}, 4, {v(d)}')
        a(f's_mul_i32 {s(sT0)}, {s(sJ)}, {72*1152}')
        if not last:
            a(f's_mul_i32 {s(sT1)}, {s(sTG)}, {4*1152}'); a(f's_add_u32 {s(sT0)}, {s(sT0)}, {s(sT1)}')
        colfix(sT0)
    def chrow(ch):
        if ch in (0, 1):
            a(f's_mul_i32 {s(sT2)}, {s(sC)}, {128*1152}')
            if ch: a(f's_add_u32 {s(sT2)}, {s(sT2)}, {64*1152}')
        elif ch == 5: a(f's_mov_b32 {s(sT2)}, {512*1152}')
        elif ch in (6, 'x'): a(f's_mov_b32 {s(sT2)}, 0')
        else:
            u = ch - 2 if ch < 5 else ch - 7
            a(f's_add_u32 {s(sT2)}, {s(sC)}, {u+1}'); a(f's_and_b32 {s(sT2)}, {s(sT2)}, 3'); a(f's_mul_i32 {s(sT2)}, {s(sT2)}, {128*1152}')
            if ch >= 7: a(f's_add_u32 {s(sT2)}, {s(sT2)}, {64*1152}')
    def w4(setA, ch, tag):
        sr = SWO if ch in (6, 'x') else SW4
        base = (A4CH if setA else B4CH)[ch]; g0 = 0 if setA else 128
        def setup():
            chrow(ch)
            if ch == 'x': a(f's_mov_b32 {s(sT3)}, 0')
            else: a(f's_mul_i32 {s(sT3)}, {s(sTG)}, {2560 if setA else 2048}')
        def fp():
            setup()
            if ch == 'x':
                a(f's_lshl_b32 {s(sT0)}, {s(sTG)}, 4'); a(f's_mov_b64 {s(sM,2)}, 0xffff'); a(f's_lshl_b64 exec, {s(sM,2)}, {s(sT0)}')
            dma(a, sr, vDP, sT2, sT3, base, g0, tag=tag); dma(a, sr, vDP, sT2, sT3, base + 1024, g0 + 64, tag=tag)
            if ch == 'x': setexec(a, -1)
        def fo():
            setup()
            if ch == 'x':
                a(f's_lshl_b32 {s(sT0)}, {s(sTG)}, 3'); a(f's_mov_b64 {s(sM,2)}, 0xff'); a(f's_lshl_b64 exec, {s(sM,2)}, {s(sT0)}')
            else: setexec(a, 0xffffffff)
            dma(a, sr, vDO, sT2, sT3, base + 2048, 0, tag=tag)
            setexec(a, -1)
        return [fp, fo] if setA else [fp]
    def p3late():
        a(f's_mov_b32 {s(sT2)}, {8*64*9216}')
        dma(a, SW3, vDP, sT2, sR5, L3P3L, 192, tag='b1')
    wo = lambda setA, tag: [lambda: woinit(False)] + w4(setA, 6, tag)
    wox = lambda setA, tag: [lambda: woinit(True)] + w4(setA, 'x', tag)
    batch1 = [p3late] + wo(True, 'b1') + wox(True, 'b1') + [w4init] + sum((w4(True, ch, 'b1') for ch in (0, 1, 2, 3, 4, 5, 7)), [])
    batch2 = w4(True, 8, 'b2') + w4(True, 9, 'b2') + w4(False, 0, 'b2') + w4(False, 1, 'b2')
    batch3 = sum((w4(False, ch, 'b3') for ch in (2, 3, 4, 5)), []) + wox(False, 'b3')
    batch4 = wo(False, 'b4') + [w4init] + sum((w4(False, ch, 'b4') for ch in (7, 8, 9)), [])
    def hload(slot0, late):
        for u in range(3):
            a(f's_add_u32 {s(sT4)}, {s(sC)}, {u+1}'); a(f's_and_b32 {s(sT4)}, {s(sT4)}, 3'); a(f's_lshl_b32 {s(sT4)}, {s(sT4)}, 13')
            a(f's_add_u32 {s(sT4)}, {s(sT4)}, {s(sH)}')
            if late: a(f's_add_u32 {s(sT4)}, {s(sT4)}, 4096')
            for n in range(4):
                a(f'buffer_load_dwordx4 {v(S4B[slot0 + 2*u] + 4*n, 4)}, {v(vL16)}, {srd(SWS)}, {s(sT4)} offen offset:{n*1024} sc1')
    def early_loads():
        hload(4, False)
        a(f's_add_u32 {s(sT4)}, {s(sH)}, 32768')
        for n in range(4):
            a(f'buffer_load_dwordx4 {v(S4B[10] + 4*n, 4)}, {v(vL16)}, {srd(SWS)}, {s(sT4)} offen offset:{n*1024} sc1')
        if cfg.no_a:
            for r in range(20): a(f'v_mov_b32 {v(S4B[12] + r)}, 0')
        else:
            a(f's_sub_u32 {s(sT4)}, {s(sE)}, {MB_E}'); a(f's_mul_i32 {s(sT4)}, {s(sT4)}, 10'); a(f's_add_u32 {s(sT4)}, {s(sT4)}, {WS_O + 1024}')
            for n in range(5):
                if n == 0:
                    a(f's_sub_u32 {s(sT0)}, {s(sT4)}, 1024')
                    a(f'buffer_load_dwordx4 {v(S4B[12], 4)}, {v(vL16)}, {srd(SWS)}, {s(sT0)} offen sc1')
                else:
                    a(f'buffer_load_dwordx4 {v(S4B[12] + 4*n, 4)}, {v(vL16)}, {srd(SWS)}, {s(sT4)} offen offset:{(n-1)*1024} sc1')
    def oddfix():
        for n in range(2):
            b = S4B[10 + n]
            a(f'v_swap_b32 {v(b+2)}, {v(b+4)}'); a(f'v_swap_b32 {v(b+3)}, {v(b+5)}')
    def steps4(tiles, acc0, setA, slots, first):
        St = []
        for sl in slots:
            for n, (what, p, eta) in enumerate(tiles):
                ar = Od if what == 'odd' else (Lo, Hi)[eta]
                rd = []
                for h in range(1 if sl == 14 else 2):
                    ch, rb = s4_rb(sl, h)
                    if setA: ad = A4CH[ch] + rb*2560 + (2048 if what == 'odd' else p*1024)
                    else: ad = B4CH[ch] + rb*2048 + (p - 2)*1024
                    rd.append((ar, ad))
                def mf(fr, sl=sl, n=n):
                    k16 = sl == 14
                    return [(lambda i=i: mfma(a, acc0(n, i), fr, S4B[sl] + (2 if k16 else 4)*i, None if sl == first else acc0(n, i), k16)) for i in range(2)]
                St.append((rd, mf))
        return St
    accA4 = lambda n, i: ACC4O + 4*i if n == 0 else ACC4 + 16*((n-1)//2) + 8*i + 4*((n-1) % 2)
    A4a = steps4(TA, accA4, True, range(0, 8), 0)
    A4b = steps4(TA, accA4, True, range(8, 21), 0)
    B4a = steps4([('p', 2, 0), ('p', 2, 1)], lambda n, i: ACC4 + 8*i + 4*n, False, range(21), 0)
    B4b = steps4([('p', 3, 0), ('p', 3, 1)], lambda n, i: ACC4 + 16 + 8*i + 4*n, False, range(21), 0)
    def pstore(acc, unit, t):
        run(pack(a, t, acc, 4))
        a(f's_add_u32 {s(sT4)}, {s(sP)}, {unit*8192}')
        a(f'buffer_store_dwordx4 {v(t,4)}, {v(vL16)}, {srd(SWS)}, {s(sT4)} offen sc1', tag='ps')
    def pflag(stage):
        a.wait_vm_tag('ps')
        a(f's_add_u32 {s(sT4)}, {s(sR3)}, {s(sW)}'); a(f's_lshl_b32 {s(sT4)}, {s(sT4)}, 5'); a(f's_add_u32 {s(sT4)}, {s(sT4)}, {s(sJ)}')
        a(f's_lshl_b32 {s(sT4)}, {s(sT4)}, 2'); a(f's_add_u32 {s(sT4)}, {s(sT4)}, {MB_P + stage*32}')
        flag_write(a, vL16, sT4, 1, vPOLL)
    def E4a():
        for u in range(4): pstore(ACC4 + 8*u, u, vTMP + 4*(u & 1))
        pstore(ACC4O, 8, vTMP)
    def b3b_pre():
        cs_read(CS3, 6, 2)
        for r in range(4): a(f'v_mov_b32 {v(ONE3+r)}, 0x3f803f80')
        ebox(); poll_issue(a, ONE3 + 4, ONE3 + 5, sT5, M1)
    def b3b_post():
        ebox(); poll_check(a, ONE3 + 4, ONE3 + 5, sT5, M1)
        early_loads()
    def late():
        ebox(); poll(a, vPOLL, vTMP, sT5, 0xF00); hload(15, True)

    stamp(a, 7)
    if not Y:
        R.block(A3); barrier(a)
        stamp(a, 8)
        n = R.prefetch(B3a, 4); run(G3a()); barrier(a)
        stamp(a, 9)
        R.block(B3a, n, hooks={20: lambda: eflag(0)})
        n = R.prefetch(B3b, 4); run(gelu_pair(ACCB, 2, CS)); barrier(a)
        stamp(a, 10)
        b3b_pre(); R.block(B3b, n); b3b_post()
        n = R.prefetch(A4a, 4); run(gelu_pair(ACCB, 3, CS3, read=False)); barrier(a)
        stamp(a, 11)
        R.block(A4a, n, hooks={20: lambda: eflag(8)})
        n = R.prefetch(A4b, 5); late(); barrier(a)
        stamp(a, 12)
        R.block(A4b, n, hooks={5: oddfix})
        E4a(); pflag(0); barrier(a)
        stamp(a, 13)
    else:
        n = R.prefetch(A3, 5); barrier(a)
        stamp(a, 8)
        R.block(A3, n); barrier(a)
        stamp(a, 9)
        n = R.prefetch(B3a, 4); interleave(a, G3a(), batch1, start=2)
        R.block(B3a, n); eflag(0); a.wait_vm_tag('b1'); barrier(a)
        stamp(a, 10)
        n = R.prefetch(B3b, 4); interleave(a, gelu_pair(ACCB, 2, CS), batch2, start=1)
        b3b_pre(); R.block(B3b, n); a.wait_vm_tag('b2'); barrier(a)
        stamp(a, 11)
        b3b_post()
        n = R.prefetch(A4a, 4); interleave(a, gelu_pair(ACCB, 3, CS3, read=False), batch3)
        R.block(A4a, n, hooks={20: lambda: eflag(8)}); barrier(a)
        stamp(a, 12)
        n = R.prefetch(A4b, 5); late(); run(batch4)
        R.block(A4b, n, hooks={5: oddfix})
        a.wait_vm_tag('b3', 'b4'); barrier(a)
        stamp(a, 13)
        E4a(); pflag(0)
    R.block(B4a)
    n = R.prefetch(B4b, 5)
    pstore(ACC4, 4, vTMP); pstore(ACC4 + 8, 5, vTMP + 4)
    R.block(B4b, n, hooks={24: lambda: pflag(1)})
    pstore(ACC4 + 16, 6, vTMP); pstore(ACC4 + 24, 7, vTMP + 4)
    stamp(a, 14)
    sU = sR0
    def unit_loads(odd):
        a(f's_lshl_b32 {s(sT0)}, {s(sMI)}, 3'); a(f's_add_u32 {s(sT0)}, {s(sT0)}, {s(sJ)}'); a(f's_lshl_b32 {s(sT0)}, {s(sT0)}, 1')
        if not odd:
            a(f's_and_b32 {s(sT1)}, {s(sU)}, 1'); a(f's_add_u32 {s(sT0)}, {s(sT0)}, {s(sT1)}')
        a(f's_mul_i32 {s(sT0)}, {s(sT0)}, 18432')
        if not odd:
            a(f's_lshr_b32 {s(sT1)}, {s(sU)}, 1'); a(f's_lshl_b32 {s(sT2)}, {s(sC)}, 2'); a(f's_add_u32 {s(sT1)}, {s(sT1)}, {s(sT2)}')
            a(f's_lshl_b32 {s(sT2)}, {s(sT1)}, 10'); a(f's_add_u32 {s(sT2)}, {s(sT2)}, {s(sT0)}'); a(f's_add_u32 {s(sT2)}, {s(sT2)}, {WS_X1}')
            a(f'buffer_load_dwordx4 {v(32,4)}, {v(vL16)}, {srd(SWS)}, {s(sT2)} offen sc1')
            a(f's_lshl_b32 {s(sT1)}, {s(sT1)}, 6'); a(f's_add_u32 {s(sR1)}, {s(sT1)}, {s(sT0)}')
        else:
            a(f's_lshl_b32 {s(sT2)}, {s(sC)}, 9'); a(f's_add_u32 {s(sT2)}, {s(sT2)}, {s(sT0)}'); a(f's_add_u32 {s(sT2)}, {s(sT2)}, {WS_X1 + 16384}')
            a(f'v_lshlrev_b32 {v(41)}, 3, {v(vLANE)}')
            a(f'buffer_load_dwordx2 {v(32,2)}, {v(41)}, {srd(SWS)}, {s(sT2)} offen sc1')
            a(f's_add_u32 {s(sT2)}, {s(sT2)}, 18432')
            a(f'buffer_load_dwordx2 {v(34,2)}, {v(41)}, {srd(SWS)}, {s(sT2)} offen sc1')
            a(f's_lshl_b32 {s(sT1)}, {s(sC)}, 5'); a(f's_add_u32 {s(sT1)}, {s(sT1)}, 1024'); a(f's_add_u32 {s(sR1)}, {s(sT1)}, {s(sT0)}')
        dl = 18432 if odd else 32
        a(f'v_and_b32 {v(41)}, 15, {v(vLANE)}'); a(f'v_mul_u32_u24 {v(40)}, 1152, {v(41)}')
        a(f'v_lshrrev_b32 {v(41)}, 4, {v(vLANE)}'); a(f'v_lshl_add_u32 {v(42)}, {v(41)}, 3, {v(40)}')
        a(f'buffer_load_dwordx2 {v(36,2)}, {v(42)}, {srd(SX)}, {s(sR1)} offen')
        a(f's_add_u32 {s(sT2)}, {s(sR1)}, {dl}')
        a(f'buffer_load_dwordx2 {v(38,2)}, {v(42)}, {srd(SX)}, {s(sT2)} offen')
        a(f'v_lshrrev_b32 {v(42)}, 1, {v(41)}'); a(f'v_lshl_add_u32 {v(40)}, {v(42)}, 4, {v(40)}')
        a(f'v_and_b32 {v(41)}, 1, {v(41)}'); a(f'v_mul_u32_u24 {v(41)}, {dl}, {v(41)}'); a(f'v_add_u32 {v(40)}, {v(40)}, {v(41)}')
    def unit_final(stage_expr):
        a(f's_add_u32 {s(sT0)}, {s(sR3)}, {s(sJ)}')
        a(f's_lshl_b32 {s(sT5)}, {s(sT0)}, 7'); a(f's_add_u32 {s(sT5)}, {s(sT5)}, {MB_P}')
        if stage_expr: a(f's_add_u32 {s(sT5)}, {s(sT5)}, {stage_expr}')
        a(f's_mul_i32 {s(sT4)}, {s(sT0)}, 73728'); a(f's_lshl_b32 {s(sT1)}, {s(sU)}, 13'); a(f's_add_u32 {s(sT4)}, {s(sT4)}, {s(sT1)}')
        a(f's_add_u32 {s(sT4)}, {s(sT4)}, {WS_P}'); a(f's_add_u32 {s(sT3)}, {s(sT4)}, 4096')
        poll(a, vPOLL, vTMP, sT5, 0xFF)
        for n in range(8):
            a(f'buffer_load_dwordx4 {v(4*n,4)}, {v(vL16)}, {srd(SWS)}, {s(sT4 if n < 4 else sT3)} offen offset:{(n & 3)*1024} sc1')
        S_ = 44
        for r in range(4):
            a(f'v_lshlrev_b32 {v(S_+2*r)}, 16, {v(32+r)}'); a(f'v_and_b32 {v(S_+2*r+1)}, 0xffff0000, {v(32+r)}')
        for src in [36] + [4*n for n in range(8)]:
            for r in range(4):
                a(f'v_lshlrev_b32 {v(52+r)}, 16, {v(src+r)}'); a(f'v_and_b32 {v(src+r)}, 0xffff0000, {v(src+r)}')
            for r in range(4):
                a(f'v_add_f32 {v(S_+2*r)}, {v(S_+2*r)}, {v(52+r)}'); a(f'v_add_f32 {v(S_+2*r+1)}, {v(S_+2*r+1)}, {v(src+r)}')
        run(pack(a, 56, S_, 4))
        a(f'v_permlane16_swap_b32 {v(56)}, {v(58)}'); a(f'v_permlane16_swap_b32 {v(57)}, {v(59)}')
        a(f'buffer_store_dwordx4 {v(56,4)}, {v(40)}, {srd(SOUT)}, {s(sR1)} offen')
    if Y:
        a(f's_mov_b32 {s(sU)}, {s(sTG)}')
        unit_loads(False); pflag(2); unit_final(None)
    else:
        pflag(2)
        sk = a.newlabel('noodd')
        a(f's_cmp_lg_u32 {s(sTG)}, 0'); a(f's_cbranch_scc1 {sk}')
        a(f's_mov_b32 {s(sU)}, 8'); unit_loads(True); unit_final(None)
        a.label(sk); a.nop(2)
        a(f's_xor_b32 {s(sU)}, {s(sTG)}, 6')
        a(f's_cmp_lt_u32 {s(sTG)}, 2'); a(f's_cselect_b32 {s(sR2)}, 64, 32')
        unit_loads(False); unit_final(s(sR2))
    stamp(a, 15)
    if cfg.stamps:
        a(f'v_mov_b32 {v(0)}, 0')
        for i in range(24):
            a(f'v_mov_b32 {v(1)}, {s(sSTAMP+i)}'); a(f'v_cmp_eq_u32 vcc, {i}, {v(vLANE)}'); a(f'v_cndmask_b32 {v(0)}, {v(0)}, {v(1)}, vcc')
        a(f's_lshl_b32 {s(sT0)}, s2, 3'); a(f's_add_u32 {s(sT0)}, {s(sT0)}, {s(sW)}'); a(f's_lshl_b32 {s(sT0)}, {s(sT0)}, 7')
        a(f's_add_u32 {s(sT0)}, {s(sT0)}, {WS_STAMP}')
        a(f'v_lshlrev_b32 {v(1)}, 2, {v(vLANE)}'); setexec(a, 0xffffffff)
        a(f'buffer_store_dword {v(0)}, {v(1)}, {srd(SWS)}, {s(sT0)} offen')
    a('s_endpgm')

def softmax_unit(a, P, cexp, EP, EN, OUT, T):
    L = []
    E = lambda t: L.append(lambda: a(t))
    mx, mn, s0, s1, s2, s3 = T, T+1, T+2, T+3, T+4, T+5
    E(f'v_max3_f32 {v(mx)}, {v(P)}, {v(P+1)}, {v(P+2)}'); E(f'v_min3_f32 {v(mn)}, {v(P)}, {v(P+1)}, {v(P+2)}')
    for r in range(3, 17, 2):
        E(f'v_max3_f32 {v(mx)}, {v(mx)}, {v(P+r)}, {v(P+r+1)}'); E(f'v_min3_f32 {v(mn)}, {v(mn)}, {v(P+r)}, {v(P+r+1)}')
    E(f'v_max_f32 {v(mx)}, {v(mx)}, {v(P+17)}'); E(f'v_min_f32 {v(mn)}, {v(mn)}, {v(P+17)}')
    E(f'v_mul_f32 {v(mx)}, {v(mx)}, {v(cexp)}'); E(f'v_mul_f32 {v(mn)}, {v(mn)}, {v(cexp)}')
    for r in range(18): E(f'v_fma_f32 {v(EP+r)}, {v(P+r)}, {v(cexp)}, -{v(mx)}')
    for r in range(18):
        E(f'v_exp_f32 {v(EP+r)}, {v(EP+r)}'); E(f'v_fma_f32 {v(EN+r)}, -{v(P+r)}, {v(cexp)}, {v(mn)}')
    for r in range(18):
        E(f'v_exp_f32 {v(EN+r)}, {v(EN+r)}')
        if r == 0: E(f'v_add_f32 {v(s0)}, {v(EP)}, {v(EP+1)}')
        elif r == 1: E(f'v_add_f32 {v(s1)}, {v(EP+2)}, {v(EP+3)}')
        elif r < 16: E(f'v_add_f32 {v((s0, s1)[r & 1])}, {v((s0, s1)[r & 1])}, {v(EP+r+2)}')
        elif r == 16: E(f'v_add_f32 {v(s0)}, {v(s0)}, {v(s1)}')
    E(f'v_rcp_f32 {v(s0)}, {v(s0)}')
    E(f'v_add_f32 {v(s2)}, {v(EN)}, {v(EN+1)}'); E(f'v_add_f32 {v(s3)}, {v(EN+2)}, {v(EN+3)}')
    for r in range(4, 18): E(f'v_add_f32 {v((s2, s3)[r & 1])}, {v((s2, s3)[r & 1])}, {v(EN+r)}')
    E(f'v_add_f32 {v(s2)}, {v(s2)}, {v(s3)}'); E(f'v_rcp_f32 {v(s2)}, {v(s2)}')
    for r in range(18): E(f'v_mul_f32 {v(EP+r)}, {v(EP+r)}, {v(s0)}')
    L += pack(a, OUT, EP, 9)
    for r in range(18): E(f'v_mul_f32 {v(EN+r)}, {v(EN+r)}, {v(s2)}')
    L += pack(a, OUT + 9, EN, 9)
    return L

def front_A_stub(a, Y):
    kargs_ready(a)
    get_nonce_issue(a, 200); get_nonce_check(a, 200)
    if not Y:
        e2_poll(a); x_loads(a); s3_addr_init(a); barrier(a)
    else:
        run(w3_dma_list(a)); e2_poll(a); a.wait_all(lg=False); barrier(a); x_loads(a); cs_w3(a); s3_addr_init(a)

def front_A(a, Y):
    if cfg.no_a: return front_A_stub(a, Y)
    sMT, sHG = sR0, sR1
    LPHI, LST, LCK, SL0, SLOT = 0, 4096, 5120, 24576, 34816
    LPH, LV, LWQ, LCQ = 6144, 142336, 59392, LSC2
    EVEN = 0x0000FFFF0000FFFF
    dX, dW, aA, aB, t0, t1, t2, vN = 224, 225, 228, 229, 230, 231, 232, 233
    if Y: XR, AF, ACC = 0, 144, 184
    else: BF, AF, CF, ACC, CSA, GR, ONES, aC, PH = 0, 16, 56, 80, 120, 132, 148, 234, 152
    a(f's_lshr_b32 {s(sT0)}, {s(sXC)}, 1'); a(f's_lshl_b32 {s(sT0)}, {s(sT0)}, 2'); a(f's_bfe_u32 {s(sT1)}, {s(sIDX)}, 0x20002')
    a(f's_add_u32 {s(sMT)}, {s(sT0)}, {s(sT1)}')
    a(f's_and_b32 {s(sT0)}, {s(sXC)}, 1'); a(f's_lshl_b32 {s(sT0)}, {s(sT0)}, 2'); a(f's_and_b32 {s(sT1)}, {s(sIDX)}, 3')
    a(f's_add_u32 {s(sHG)}, {s(sT0)}, {s(sT1)}')
    pat_x(a, dX, t0, t1)
    a(f's_lshl_b32 {s(sT0)}, {s(sMT)}, 3'); a(f's_add_u32 {s(sT0)}, {s(sT0)}, {s(sW)}'); a(f's_mul_i32 {s(sT0)}, {s(sT0)}, 18432')
    a(f'v_add_u32 {v(dX)}, {s(sT0)}, {v(dX)}')
    a(f's_lshl_b32 {s(sR2)}, {s(sW)}, 10')
    a(f's_mul_i32 {s(sR3)}, {s(sW)}, 2304')
    a(f's_lshr_b32 {s(sT0)}, {s(sTG)}, 1'); a(f's_lshl_b32 {s(sT0)}, {s(sT0)}, 5')
    a(f's_and_b32 {s(sT1)}, {s(sTG)}, 1'); a(f's_lshl_b32 {s(sT1)}, {s(sT1)}, 2'); a(f's_add_u32 {s(sT0)}, {s(sT0)}, {s(sT1)}')
    a(f's_mul_i32 {s(sT0)}, {s(sT0)}, 3456'); a(f's_mul_i32 {s(sT1)}, {s(sHG)}, 144'); a(f's_add_u32 {s(sT0)}, {s(sT0)}, {s(sT1)}')
    for i in range(3):
        a(f'v_add_u32 {v(t0)}, {48*i}, {v(vLANE)}')
        a(f'v_mul_u32_u24 {v(t1)}, 7282, {v(t0)}'); a(f'v_lshrrev_b32 {v(t1)}, 16, {v(t1)}')
        a(f'v_mul_u32_u24 {v(t2)}, 9, {v(t1)}'); a(f'v_sub_u32 {v(t0)}, {v(t0)}, {v(t2)}')
        a(f'v_and_b32 {v(dW+i)}, 9, {v(t1)}')
        a(f'v_and_b32 {v(t2)}, 2, {v(t1)}'); a(f'v_lshl_add_u32 {v(dW+i)}, {v(t2)}, 3, {v(dW+i)}')
        a(f'v_bfe_u32 {v(t2)}, {v(t1)}, 2, 1'); a(f'v_lshl_add_u32 {v(dW+i)}, {v(t2)}, 1, {v(dW+i)}')
        a(f'v_mul_u32_u24 {v(dW+i)}, 3456, {v(dW+i)}'); a(f'v_lshl_add_u32 {v(dW+i)}, {v(t0)}, 4, {v(dW+i)}')
        a(f'v_add_u32 {v(dW+i)}, {s(sT0)}, {v(dW+i)}')
    def wdma(goff, lds, tag):
        a(f's_mov_b32 {s(sT2)}, {goff}')
        setexec(a, (0xffff << 32) | 0xffffffff)
        for i in range(3): dma(a, SQKV, dW + i, sT2, sR3, lds + 768*i, 0, tag=tag)
        setexec(a, -1)
    def load1(G):
        b = SL0 + (G % 4)*SLOT
        def fx():
            a(f's_mov_b32 {s(sT2)}, {G*128}')
            dma(a, SX, dX, sT2, sR2, b + 18432, 0, tag=('g', G)); dma(a, SX, dX, sT2, sR2, b + 18432 + 8192, 64, tag=('g', G))
        return [fx, lambda: wdma(G*64*3456 + (2304 if Y else 1152), b, ('g', G))]
    def loadq(r):
        if r == 4 and Y: return []
        return [lambda: wdma((r*128 + (64 if Y else 0))*3456, LWQ + r*18432, 'wq')]
    kargs_ready(a)
    for G in range(4): run(load1(G))
    a(f'v_bfe_u32 {v(t0)}, {v(vLANE)}, 2, 1'); a(f'v_bfe_u32 {v(t1)}, {v(vLANE)}, 5, 1'); a(f'v_lshl_add_u32 {v(t0)}, {v(t1)}, 1, {v(t0)}')
    a(f'v_bfe_u32 {v(t1)}, {v(vLANE)}, 3, 2'); a(f'v_lshl_add_u32 {v(t0)}, {v(t1)}, 2, {v(t0)}')
    a(f'v_mul_u32_u24 {v(aA)}, 144, {v(t0)}')
    a(f'v_and_b32 {v(t0)}, 1, {v(vLANE)}'); a(f'v_lshl_add_u32 {v(aA)}, {v(t0)}, 5, {v(aA)}')
    a(f'v_bfe_u32 {v(t0)}, {v(vLANE)}, 1, 1'); a(f'v_mul_u32_u24 {v(t0)}, 72, {v(t0)}'); a(f'v_add_u32 {v(aA)}, {v(aA)}, {v(t0)}')
    pat_xread(a, aB, t0, t1)
    a(f's_lshl_b32 {s(sT0)}, {s(sTG)}, 11'); a(f'v_add_u32 {v(aB)}, {s(sT0)}, {v(aB)}')
    RA, RB = AddrReg(aA), AddrReg(aB)
    if not Y:
        a(f's_lshl_b32 {s(sT0)}, {s(sTG)}, 3'); a(f'v_add_u32 {v(aC)}, {s(sT0)}, {v(aA)}')
        a(f's_and_b32 {s(sT0)}, {s(sTG)}, 1'); a(f's_mul_i32 {s(sT0)}, {s(sT0)}, 9216'); a(f's_add_u32 {s(sT0)}, {s(sT0)}, 32')
        a(f'v_add_u32 {v(aC+1)}, {s(sT0)}, {v(aA)}')
        RC0, RC1 = AddrReg(aC), AddrReg(aC + 1)
        for r in range(4): a(f'v_mov_b32 {v(ONES+r)}, 0x3f803f80')
        a(f's_lshl_b32 {s(sT0)}, {s(sTG)}, 6'); a(f's_mul_i32 {s(sT1)}, {s(sHG)}, 2592')
        for i in range(3):
            a(f'v_add_u32 {v(t0)}, {s(sT0)}, {v(vLANE)}')
            if i: a(f'v_add_u32 {v(t0)}, {256*i}, {v(t0)}')
            a(f'v_lshlrev_b32 {v(t1)}, 2, {v(t0)}')
            a(f'buffer_load_dword {v(PH+i)}, {v(t1)}, {srd(SPHI)}, {s(sT1)} offen')
            ad = PH + 3 + i
            a(f'v_mul_u32_u24 {v(t1)}, 7282, {v(t0)}'); a(f'v_lshrrev_b32 {v(t1)}, 16, {v(t1)}')
            a(f'v_mul_u32_u24 {v(t2)}, 9, {v(t1)}'); a(f'v_sub_u32 {v(ad)}, {v(t0)}, {v(t2)}'); a(f'v_lshlrev_b32 {v(ad)}, 2, {v(ad)}')
            a(f'v_mul_u32_u24 {v(t2)}, 3641, {v(t1)}'); a(f'v_lshrrev_b32 {v(t2)}, 16, {v(t2)}')
            a(f'v_mul_u32_u24 {v(t0)}, 18, {v(t2)}'); a(f'v_sub_u32 {v(t1)}, {v(t1)}, {v(t0)}')
            a(f'v_mul_u32_u24 {v(t0)}, 800, {v(t2)}'); a(f'v_add_u32 {v(ad)}, {v(ad)}, {v(t0)}')
            a(f'v_and_b32 {v(t2)}, 1, {v(t2)}'); a(f'v_lshl_add_u32 {v(t1)}, {v(t2)}, 1, {v(t1)}')
            a(f'v_add_u32 {v(t0)}, 16, {v(t1)}'); a(f'v_subrev_u32 {v(t1)}, 2, {v(t1)}'); a(f'v_min_u32 {v(t1)}, {v(t1)}, {v(t0)}')
            a(f'v_mul_u32_u24 {v(t1)}, 40, {v(t1)}'); a(f'v_add_u32 {v(ad)}, {v(ad)}, {v(t1)}')
        a(f's_lshl_b32 {s(sT0)}, {s(sTG)}, 10'); a(f'v_add_u32 {v(t0)}, {s(sT0)}, {v(vL16)}')
        for r in range(4): a(f'v_mov_b32 {v(GR+r)}, 0')
        a(f'ds_write_b128 {v(t0)}, {v(GR,4)}')
        a.wait_all(vm=False)
    def phiwrite():
        a(f'ds_write_b32 {v(PH+3)}, {v(PH)}'); a(f'ds_write_b32 {v(PH+4)}, {v(PH+1)}')
        a(f's_lshl_b32 {s(sT0)}, {s(sTG)}, 6'); a(f'v_add_u32 {v(t0)}, {s(sT0)}, {v(vLANE)}')
        a(f'v_cmp_gt_u32 vcc, 136, {v(t0)}')
        a(f'v_cndmask_b32 {v(PH+5)}, {v(PH+4)}, {v(PH+5)}, vcc'); a(f'v_cndmask_b32 {v(PH+2)}, {v(PH+1)}, {v(PH+2)}, vcc')
        a(f'ds_write_b32 {v(PH+5)}, {v(PH+2)}')
    def reads1(pos):
        b = SL0 + ((pos // 2) % 4)*SLOT
        xb = b + 18432 + (pos & 1)*8192; br = XR + 8*pos if Y else BF + 8*(pos & 1)
        L = [lambda: dsr(a, 4, br, RB, xb), lambda: dsr(a, 4, br + 4, RB, xb + 1024)]
        wb = b + 2*(pos & 1)*2304
        for i in range(5):
            for h in range(2):
                L.append(lambda i=i, h=h: tr(a, AF + 20*(pos & 1) + 4*i + 2*h, RA, wb + (9216 if Y else 0) + h*2304 + 8*i))
        if not Y:
            for n, (ar, o) in enumerate(((RC0, 0), (RC0, 9216), (RC1, 0))):
                for h in range(2):
                    L.append(lambda n=n, ar=ar, o=o, h=h: tr(a, CF + 12*(pos & 1) + 4*n + 2*h, ar, wb + o + h*2304))
        return L
    def mf1(pos):
        z = pos == 0; A_ = AF + 20*(pos & 1); B_ = XR + 8*pos if Y else BF + 8*(pos & 1)
        M = lambda d, x, y: (lambda: mfma(a, d, x, y, None if z else d))
        L = []
        for i in range(5): L += [M(ACC + 4*i, A_ + 4*i, B_), M(ACC + 20 + 4*i, A_ + 4*i, B_ + 4)]
        if not Y:
            L += [M(CSA + 4*n, CF + 12*(pos & 1) + 4*n, ONES) for n in range(3)]
            L += [M(GR, B_, B_), M(GR+4, ONES, B_), M(GR+8, B_+4, B_+4), M(GR+12, ONES, B_+4)]
        return L
    def refill1(G):
        L = []
        if G + 3 < 9: L = load1(G + 3)
        elif G == 6: L = loadq(0)
        elif G == 7: L = loadq(1) + loadq(2)
        else: L = loadq(3) + loadq(4)
        if G == 4 and not Y: L.append(phiwrite)
        if G == 5: L.append(lambda: get_nonce_issue(a, vN))
        return L
    stamp(a, 0)
    front_loop(a, reads1, mf1, refill1, lambda G: ('g', G))
    stamp(a, 1)
    if Y: ST, CSV, T, PKB = 144, 148, 168, 172
    else: ST, CSV, T, PKB = 0, 4, 24, 32
    a(f'v_and_b32 {v(t2)}, 15, {v(vLANE)}'); a(f'v_lshlrev_b32 {v(t2)}, 3, {v(t2)}')
    a(f's_lshl_b32 {s(sT0)}, {s(sTG)}, 8'); a(f's_add_u32 {s(sT0)}, {s(sT0)}, {LST}'); a(f'v_add_u32 {v(t2)}, {s(sT0)}, {v(t2)}')
    a(f'v_and_b32 {v(t1)}, 48, {v(vLANE)}')
    if not Y:
        for i in range(2):
            diag_select(a, T, GR + 8*i, t0)
            mean_var(a, GR + 8*i + 4, T, ST + 2*i, T + 1)
            a(f'v_add_f32 {v(T+1)}, {hx(f2u(1e-5))}, {v(T+1)}'); a(f'v_rsq_f32 {v(ST+2*i+1)}, {v(T+1)}')
        setexec(a, DIAG)
        a(f'ds_write_b64 {v(t2)}, {v(ST,2)}'); a(f'ds_write_b64 {v(t2)}, {v(ST+2,2)} offset:128')
        setexec(a, -1)
        a(f's_lshl_b32 {s(sT0)}, {s(sTG)}, 6'); a(f'v_add_u32 {v(t0)}, {s(sT0)}, {v(t1)}')
        a(f's_and_b32 {s(sT0)}, {s(sTG)}, 1'); a(f's_mul_i32 {s(sT0)}, {s(sT0)}, 320'); a(f'v_add_u32 {v(T)}, {s(sT0)}, {v(t1)}')
        setexec(a, 0x0001000100010001)
        a(f'ds_write_b128 {v(t0)}, {v(CSA,4)} offset:{LCK}'); a(f'ds_write_b128 {v(t0)}, {v(CSA+4,4)} offset:{LCK+320}')
        a(f'ds_write_b128 {v(T)}, {v(CSA+8,4)} offset:{LCK+256}')
        setexec(a, -1)
    a.wait_all(vm=False); barrier(a)
    a(f'ds_read_b64 {v(ST,2)}, {v(t2)}'); a(f'ds_read_b64 {v(ST+2,2)}, {v(t2)} offset:128')
    for i in range(5): a(f'ds_read_b128 {v(CSV+4*i,4)}, {v(t1)} offset:{LCK + (320 if Y else 0) + 64*i}')
    def phi_addr(d):
        a(f'v_bfe_u32 {v(t0)}, {v(vLANE)}, 4, 2'); a(f'v_and_b32 {v(d)}, 3, {v(vLANE)}')
        a(f'v_cmp_eq_u32 vcc, {v(t0)}, {v(d)}'); a(f'v_cndmask_b32 {v(t0)}, 4, {v(t0)}, vcc'); a(f'v_mul_u32_u24 {v(t0)}, 800, {v(t0)}')
        a(f'v_bfe_u32 {v(d)}, {v(vLANE)}, 2, 2'); a(f'v_mul_u32_u24 {v(d)}, 40, {v(d)}'); a(f'v_add_u32 {v(d)}, {v(d)}, {v(t0)}')
    def phi_frags(F, d):
        for i in range(5):
            for n in range(5): a(f'ds_read_b64_tr_b16 {v(F + 10*i + 2*n, 2)}, {v(d)} offset:{LPHI + n*160 + 8*i}')
    def canon(acc, cs, nm, dst, scale=None):
        s_mask = s(sM, 2)
        a(f's_mov_b32 {s(sM)}, 0xffff'); a(f's_mov_b32 {s(sM+1)}, 0xffff')
        for r in range(20): a(f'v_fmac_f32 {v(acc+r)}, {v(nm)}, {v(cs+r)}')
        for r in range(2): a(f'v_cndmask_b32 {v(acc+18+r)}, {v(acc+18+r)}, {v(acc+r)}, {s_mask}')
        if scale is not None:
            for r in range(2, 20): a(f'v_mul_f32 {v(acc+r)}, {v(acc+r)}, {v(scale)}')
        run(pack(a, dst, acc + 2, 9))
    def feature(F, B_, D):
        for n, (fo, bo, k16) in enumerate(((0, 0, False), (4, 4, False), (8, 8, True))):
            for i in range(5): mfma(a, D + 4*i, F + 10*i + fo, B_ + bo, None if n == 0 else D + 4*i, k16)
    def stage_addr(d32, d8, hstride, base32, base8):
        a(f'v_lshrrev_b32 {v(t0)}, 4, {v(vLANE)}'); a(f'v_mul_u32_u24 {v(t0)}, {hstride}, {v(t0)}')
        a(f's_lshl_b32 {s(sT0)}, {s(sTG)}, 5'); a(f'v_and_or_b32 {v(d8)}, {v(vLANE)}, 15, {s(sT0)}')
        a(f'v_lshl_add_u32 {v(d32)}, {v(d8)}, 5, {v(t0)}'); a(f'v_lshl_add_u32 {v(d8)}, {v(d8)}, 3, {v(t0)}')
        a(f'v_add_u32 {v(d32)}, {base32}, {v(d32)}'); a(f'v_add_u32 {v(d8)}, {base8}, {v(d8)}')
    get_nonce_check(a, vN)
    if not Y:
        F, D, EP, OUT = 120, 172, 52, 32
        phi_addr(t2); phi_frags(F, t2)
        for i in range(2):
            canon(ACC + 20*i, CSV, ST + 2*i, PKB + 10*i); a(f'v_mov_b32 {v(PKB + 10*i + 9)}, 0')
            a(f'v_mul_f32 {v(ST+2*i+1)}, {hx(f2u(LOG2E))}, {v(ST+2*i+1)}')
        for i in range(2): feature(F, PKB + 10*i, D + 20*i)
        stage_addr(t1, t2, 9216, LPH, LPH + 8192)
        for i in range(2):
            O_ = (80, 100)[i]
            run(softmax_unit(a, D + 20*i, ST + 2*i + 1, EP, D + 20*i, O_, T))
            for n in range(4): a(f'ds_write_b128 {v(t1)}, {v(O_+4*n,4)} offset:{i*512 + (n >> 1)*4096 + (n & 1)*16}')
            a(f'ds_write_b64 {v(t2)}, {v(O_+16,2)} offset:{i*128}')
        a.wait_vm_tag('wq'); a.wait_all(vm=False);
        stamp(a, 2)
        barrier(a)
        a(f'v_lshlrev_b32 {v(t0)}, 3, {v(vLANE)}'); a(f'v_and_b32 {v(t1)}, 60, {v(vLANE)}'); a(f'v_lshlrev_b32 {v(t1)}, 1, {v(t1)}')
        a(f's_mul_i32 {s(sT0)}, {s(sTG)}, 9216'); a(f's_add_u32 {s(sT0)}, {s(sT0)}, {LPH}')
        a(f's_mul_i32 {s(sT1)}, {s(sTG)}, 5120'); a(f's_add_u32 {s(sT1)}, {s(sT1)}, {LV}')
        p32, p8, w32, w8 = 24, 25, 26, 27
        a(f'v_add_u32 {v(p32)}, {s(sT0)}, {v(t0)}'); a(f'v_add_u32 {v(p8)}, {s(sT0)}, {v(t1)}')
        a(f'v_add_u32 {v(w32)}, {s(sT1)}, {v(t0)}'); a(f'v_add_u32 {v(w8)}, {s(sT1)}, {v(t1)}')
        KF, KA = 32, 112
        for ks in range(4):
            b = KF + 20*ks
            for h in range(2):
                a(f'ds_read_b64_tr_b16 {v(b+12+2*h,2)}, {v(w32)} offset:{ks*1024 + h*512}')
                a(f'ds_read_b64_tr_b16 {v(b+16+2*h,2)}, {v(w8)} offset:{4096 + ks*256 + h*128}')
                a(f'ds_read_b64_tr_b16 {v(b+2*h,2)}, {v(p32)} offset:{ks*1024 + h*512}')
                a(f'ds_read_b64_tr_b16 {v(b+4+2*h,2)}, {v(p32)} offset:{4096 + ks*1024 + h*512}')
                a(f'ds_read_b64_tr_b16 {v(b+8+2*h,2)}, {v(p8)} offset:{8192 + ks*256 + h*128}')
        a(f'v_lshrrev_b32 {v(t0)}, 4, {v(vLANE)}'); a(f'v_mul_u32_u24 {v(t0)}, 320, {v(t0)}')
        a(f'v_and_b32 {v(t1)}, 15, {v(vLANE)}'); a(f'v_lshl_add_u32 {v(t0)}, {v(t1)}, 4, {v(t0)}')
        a(f's_lshl_b32 {s(sR2)}, {s(sHG)}, 2'); a(f's_add_u32 {s(sR2)}, {s(sR2)}, {s(sTG)}')
        a(f's_lshl_b32 {s(sT0)}, {s(sR2)}, 4'); a(f's_add_u32 {s(sT0)}, {s(sT0)}, {s(sMT)}'); a(f's_mul_i32 {s(sT4)}, {s(sT0)}, 3072')
        a(f's_add_u32 {s(sT4)}, {s(sT4)}, {WS_KVP}')
        for ks in range(4):
            b = KF + 20*ks
            for tau in range(3):
                for dl in range(2):
                    d = KA + 8*tau + 4*dl
                    mfma(a, d, b + 4*tau, b + 12 + 4*dl, None if ks == 0 else d)
        for tau, dl, mk in ((0, 0, -1), (1, 0, -1), (2, 0, 0xFFFF), (2, 1, 0xF), (0, 1, 0x000F000F000F000F), (1, 1, None)):
            if mk is not None: setexec(a, mk)
            a(f'buffer_store_dwordx4 {v(KA + 8*tau + 4*dl, 4)}, {v(t0)}, {srd(SWS)}, {s(sT4)} offen offset:{tau*1280 + dl*256} sc1', tag='kp')
        setexec(a, -1)
        RQ0, RQ1 = RC0, RA
        CQ = 140
        for r in range(4): a(f'v_mov_b32 {v(ONES+r)}, 0x3f803f80')
        def qreads(k):
            b = KF + 8*(k % 4)
            for h in range(2):
                tr(a, b + 2*h, RQ0, LWQ + (2*k + h)*2304); tr(a, b + 4 + 2*h, RQ1, LWQ + (2*k + h)*2304 + 32)
        for k in range(3): qreads(k)
        for k in range(18):
            if k + 3 < 18: qreads(k + 3)
            b = KF + 8*(k % 4)
            mfma(a, CQ, b, ONES, None if k == 0 else CQ); mfma(a, CQ + 4, b + 4, ONES, None if k == 0 else CQ + 4)
        a(f'v_and_b32 {v(t1)}, 48, {v(vLANE)}'); a(f'v_add_u32 {v(t1)}, {LCQ}, {v(t1)}')
        a(f's_lshl_b32 {s(sT0)}, {s(sTG)}, 6'); a(f'v_add_u32 {v(t2)}, {s(sT0)}, {v(t1)}')
        setexec(a, 0x0001000100010001)
        a(f'ds_write_b128 {v(t2)}, {v(CQ,4)}'); a(f'ds_write_b128 {v(t1)}, {v(CQ+4,4)} offset:256')
        setexec(a, -1)
        a(f'v_lshlrev_b32 {v(t0)}, 7, {v(vLANE)}')
        a(f's_lshl_b32 {s(sT0)}, {s(sR2)}, 11'); a(f's_add_u32 {s(sT0)}, {s(sT0)}, {MB_K1}')
        a(f's_lshl_b32 {s(sT1)}, {s(sMT)}, 2'); a(f's_add_u32 {s(sT4)}, {s(sT0)}, {s(sT1)}')
        a(f's_lshl_b32 {s(sT1)}, {s(sMT)}, 7'); a(f's_add_u32 {s(sT5)}, {s(sT0)}, {s(sT1)}')
        a.wait_vm_tag('kp')
        flag_write(a, t0, sT4, 0x7FFF, t1)
        a.wait_all(vm=False)
        stamp(a, 3)
        barrier(a)
        sk = a.newlabel('nored')
        a(f's_cmp_eq_u32 {s(sMT)}, 15'); a(f's_cbranch_scc1 {sk}')
        a(f's_mul_i32 {s(sT0)}, {s(sMT)}, 24'); a(f'v_add_u32 {v(t0)}, {s(sT0)}, {v(vLANE)}')
        a(f'v_lshlrev_b32 {v(40)}, 3, {v(t0)}')
        a(f'v_lshrrev_b32 {v(41)}, 1, {v(t0)}'); a(f'v_mul_u32_u24 {v(42)}, 3277, {v(41)}'); a(f'v_lshrrev_b32 {v(42)}, 16, {v(42)}')
        a(f'v_mul_u32_u24 {v(43)}, 20, {v(42)}'); a(f'v_sub_u32 {v(41)}, {v(41)}, {v(43)}')
        a(f'v_lshlrev_b32 {v(41)}, 4, {v(41)}'); a(f'v_and_b32 {v(43)}, 1, {v(t0)}'); a(f'v_lshl_add_u32 {v(41)}, {v(43)}, 2, {v(41)}')
        a(f'v_and_b32 {v(43)}, 1, {v(42)}'); a(f'v_lshl_add_u32 {v(41)}, {v(43)}, 3, {v(41)}')
        a(f'v_lshrrev_b32 {v(42)}, 1, {v(42)}'); a(f'v_mul_u32_u24 {v(42)}, 320, {v(42)}'); a(f'v_add_u32 {v(41)}, {v(41)}, {v(42)}')
        a(f's_mul_i32 {s(sT4)}, {s(sR2)}, {16*3072}'); a(f's_add_u32 {s(sT4)}, {s(sT4)}, {WS_KVP}')
        poll(a, t1, t2, sT5, 0xFFFF)
        stamp(a, 4)
        setexec(a, 0xFFFFFF)
        for m in range(16):
            if m and m % 2 == 0: a(f's_add_u32 {s(sT4)}, {s(sT4)}, 6144')
            a(f'buffer_load_dwordx2 {v(2*m,2)}, {v(40)}, {srd(SWS)}, {s(sT4)} offen offset:{(m & 1)*3072} sc1')
        for m in range(1, 16):
            a(f'v_add_f32 {v(0)}, {v(0)}, {v(2*m)}'); a(f'v_add_f32 {v(1)}, {v(1)}, {v(2*m+1)}')
        a(f'v_cvt_pk_bf16_f32 {v(0)}, {v(0)}, {v(1)}')
        a(f's_lshl_b32 {s(sT4)}, {s(sR2)}, 11'); a(f's_add_u32 {s(sT4)}, {s(sT4)}, {WS_KVF}')
        a(f'buffer_store_dword {v(0)}, {v(41)}, {srd(SWS)}, {s(sT4)} offen sc1', tag='kf')
        setexec(a, -1)
        a(f'v_lshlrev_b32 {v(t0)}, 8, {v(vLANE)}')
        a(f's_lshl_b32 {s(sT0)}, {s(sHG)}, 12'); a(f's_lshl_b32 {s(sT1)}, {s(sTG)}, 4'); a(f's_add_u32 {s(sT1)}, {s(sT1)}, {s(sMT)}')
        a(f's_lshl_b32 {s(sT1)}, {s(sT1)}, 2'); a(f's_add_u32 {s(sT0)}, {s(sT0)}, {s(sT1)}'); a(f's_add_u32 {s(sT4)}, {s(sT0)}, {MB_K2}')
        a.wait_vm_tag('kf')
        flag_write(a, t0, sT4, 0xFFFF, t1)
        a.label(sk); a.nop(2)
        stamp(a, 5)
        e2_poll(a)
        stamp(a, 6)
        x_loads(a)
        barrier(a)
        cs_w3(a)
        s3_addr_init(a)
    else:
        stage_addr(t1, t2, 5120, LV, LV + 4096)
        KN = 234
        for i in range(2):
            canon(ACC + 20*i, CSV, ST + 2*i, PKB, scale=ST + 2*i + 1); a(f'v_mov_b32 {v(PKB + 9)}, 0x3f80')
            for n in range(2): a(f'ds_write_b128 {v(t1)}, {v(PKB+4*n,4)} offset:{i*512 + n*16}')
            a(f'ds_write_b64 {v(t2)}, {v(PKB+8,2)} offset:{i*128}')
            a(f'v_mov_b32 {v(KN+2*i)}, {v(ST+2*i)}'); a(f'v_mul_f32 {v(KN+2*i+1)}, {hx(f2u(LOG2E))}, {v(ST+2*i+1)}')
        a.wait_vm_tag('wq'); a.wait_all(vm=False)
        stamp(a, 2)
        barrier(a)
        def qr(k):
            return [(lambda i=i, h=h: tr(a, AF + 20*(k & 1) + 4*i + 2*h, RA, LWQ + (2*k + h)*2304 + 8*i)) for i in range(5) for h in range(2)]
        run(qr(0))
        for k in range(18):
            side = qr(k + 1) if k + 1 < 18 else []
            a.wait_all(vm=False)
            for f in mf1(k):
                f()
                if side: side.pop(0)()
        F, D, EP, CQ, PB, TT = 0, 52, 92, 112, 132, 152
        phi_addr(t2); phi_frags(F, t2)
        for r in range(4): a(f'v_mov_b32 {v(160+r)}, {v(KN+r)}')
        KN = 160
        a.wait_all(vm=False)
        stamp(a, 3)
        barrier(a)
        a(f'v_and_b32 {v(t1)}, 48, {v(vLANE)}'); a(f'v_add_u32 {v(t1)}, {LCQ}, {v(t1)}')
        for i in range(5): a(f'ds_read_b128 {v(CQ+4*i,4)}, {v(t1)} offset:{64*i}')
        w3 = w3_dma_list(a)
        run(w3[:5])
        for i in range(2):
            canon(ACC + 20*i, CQ, KN + 2*i, PB + 10*i); a(f'v_mov_b32 {v(PB + 10*i + 9)}, 0')
        for i in range(2): feature(F, PB + 10*i, D + 20*i)
        PQ = 184
        interleave(a, softmax_unit(a, D, KN + 1, EP, D, PQ, TT) + softmax_unit(a, D + 20, KN + 3, EP, D + 20, PQ + 18, TT), w3[5:])
        KA = 0
        for r in range(90): a(f'v_mov_b32 {v(KA+r)}, 0')
        a(f'v_lshrrev_b32 {v(t0)}, 4, {v(vLANE)}'); a(f'v_lshlrev_b32 {v(t0)}, 11, {v(t0)}')
        a(f'v_and_b32 {v(t1)}, 3, {v(vLANE)}'); a(f'v_lshl_add_u32 {v(t0)}, {v(t1)}, 4, {v(t0)}')
        a(f's_lshl_b32 {s(sT0)}, {s(sHG)}, 4'); a(f's_add_u32 {s(sT0)}, {s(sT0)}, {s(sMT)}'); a(f's_lshl_b32 {s(sT0)}, {s(sT0)}, 8')
        a(f's_add_u32 {s(sT5)}, {s(sT0)}, {MB_K2}')
        a(f's_lshl_b32 {s(sT4)}, {s(sHG)}, 13'); a(f's_add_u32 {s(sT4)}, {s(sT4)}, {WS_KVF}')
        a.wait_vm_tag('w3')
        stamp(a, 4)
        barrier(a)
        poll(a, t1, t2, sT5, 0x7FFF7FFF7FFF7FFF)
        stamp(a, 5)
        setexec(a, DIAG)
        for i in range(5):
            for sx in range(4):
                a(f'buffer_load_dwordx4 {v(KA + 18*i + 4*sx, 4)}, {v(t0)}, {srd(SWS)}, {s(sT4)} offen offset:{sx*320 + i*64} sc1')
            a(f'buffer_load_dwordx2 {v(KA + 18*i + 16, 2)}, {v(t0)}, {srd(SWS)}, {s(sT4)} offen offset:{4*320 + i*64} sc1')
        setexec(a, -1)
        OA, OP = 92, 132
        for i in range(5):
            for sx in range(5):
                for ti in range(2):
                    d = OA + 20*ti + 4*i
                    mfma(a, d, KA + 18*i + 4*sx, PQ + 18*ti + 4*sx, None if sx == 0 else d, sx == 4)
        a(f's_lshr_b32 {s(sT0)}, {s(sMT)}, 1'); a(f's_lshl_b32 {s(sT0)}, {s(sT0)}, 3'); a(f's_add_u32 {s(sT0)}, {s(sT0)}, {s(sHG)}')
        a(f's_lshl_b32 {s(sT0)}, {s(sT0)}, 1'); a(f's_and_b32 {s(sT1)}, {s(sMT)}, 1'); a(f's_add_u32 {s(sT0)}, {s(sT0)}, {s(sT1)}')
        a(f's_lshl_b32 {s(sT0)}, {s(sT0)}, 2'); a(f's_add_u32 {s(sT0)}, {s(sT0)}, {s(sTG)}')
        a(f's_mul_i32 {s(sT4)}, {s(sT0)}, 5120'); a(f's_add_u32 {s(sT4)}, {s(sT4)}, {WS_O}'); a(f's_add_u32 {s(sT5)}, {s(sT4)}, 4096')
        a(f's_lshl_b32 {s(sR2)}, {s(sT0)}, 9'); a(f's_add_u32 {s(sR2)}, {s(sR2)}, {MB_E + 16}')
        for ti in range(2):
            dn = OA + 20*ti + 18
            a(f'v_add_f32 {v(dn)}, {hx(f2u(1e-6))}, {v(dn)}'); a(f'v_rcp_f32 {v(dn)}, {v(dn)}')
        for ti in range(2):
            b = OA + 20*ti
            for r in range(18): a(f'v_mul_f32 {v(b+r)}, {v(b+r)}, {v(b+18)}')
            run(pack(a, OP + 4*ti, b, 4)); run(pack(a, OP + 8 + 4*ti, b + 8, 4)); run(pack(a, OP + 16 + 2*ti, b + 16, 1))
            a(f'v_mov_b32 {v(OP + 17 + 2*ti)}, 0')
        for n in range(5):
            a(f'buffer_store_dwordx4 {v(OP+4*n,4)}, {v(vL16)}, {srd(SWS)}, {s(sT4 if n < 4 else sT5)} offen offset:{(n & 3)*1024} sc1', tag='os')
        e2_poll(a)
        a.wait_vm_tag('os')
        a(f'v_lshlrev_b32 {v(t0)}, 7, {v(vLANE)}')
        flag_write(a, t0, sR2, 0xF, t1)
        stamp(a, 6)
        x_loads(a)
        s3_addr_init(a)

def build():
    global OOL
    OOL.clear()
    ref = open('cdna_kernels/' + NAME[:-7] + '.s.ref').read().split('\n')
    head = [l for l in ref if l.startswith(';') and '@launch' not in l]
    out = head + ['; @launch grid=(256,1,1) block=(512,1,1) lds=163840',
                  '.amdgcn_target "amdgcn-amd-amdhsa--gfx950"', '.text', f'.globl {NAME}', '.p2align 8', f'.type {NAME},@function', f'{NAME}:']
    a = Asm()
    a('s_cmp_ge_u32 s2, 256'); a('s_cbranch_scc0 L_go'); a('s_endpgm'); a.label('L_go')
    for b, (off, sz) in KARG.items(): a(f's_load_dwordx2 {s(b,2)}, s[0:1], {off}')
    a(f'v_lshrrev_b32 v1, 6, v0'); a(f'v_and_b32 {v(vLANE)}, 63, v0')
    a(f'v_readfirstlane_b32 {s(sW)}, v1')
    a(f'v_lshlrev_b32 {v(vL16)}, 4, {v(vLANE)}')
    for b, (off, sz) in KARG.items():
        a(f's_mov_b32 {s(b+2)}, {sz}'); a(f's_mov_b32 {s(b+3)}, 0x20000')
    if cfg.stamps:
        for i in range(24): a(f's_mov_b32 {s(sSTAMP+i)}, 0')
        stamp(a, 16)
    a(f's_and_b32 {s(sTG)}, {s(sW)}, 3')
    a(f's_and_b32 {s(sXC)}, s2, 7'); a(f's_lshr_b32 {s(sIDX)}, s2, 3')
    a(f's_and_b32 {s(sT0)}, {s(sXC)}, 1'); a(f's_lshl_b32 {s(sT0)}, {s(sT0)}, 2'); a(f's_lshr_b32 {s(sT1)}, {s(sIDX)}, 3'); a(f's_add_u32 {s(sMI)}, {s(sT0)}, {s(sT1)}')
    a(f's_and_b32 {s(sT0)}, {s(sXC)}, 6'); a(f's_bfe_u32 {s(sT1)}, {s(sIDX)}, 0x10002'); a(f's_add_u32 {s(sJ)}, {s(sT0)}, {s(sT1)}')
    a(f's_and_b32 {s(sC)}, {s(sIDX)}, 3')
    a(f's_cmp_ge_u32 {s(sIDX)}, 16'); a('s_cbranch_scc1 L_A')
    a(f's_cmp_ge_u32 {s(sW)}, 4'); a('s_cbranch_scc1 L_BY')
    streams = [a]
    bo = Asm(); front_B(bo, False); bo('s_branch L_SO'); streams.append(bo)
    by = Asm(); by.label('L_BY'); front_B(by, True); by('s_branch L_SY'); streams.append(by)
    ah = Asm(); ah.label('L_A'); ah(f's_cmp_ge_u32 {s(sW)}, 4'); ah('s_cbranch_scc1 L_AY'); streams.append(ah)
    ao = Asm(); front_A(ao, False); streams.append(ao)
    d = Asm(); x_loads(d)
    so = Asm(); so.label('L_SO'); so.vmq = list(d.vmq); s34(so, False); streams.append(so)
    ay = Asm(); ay.label('L_AY'); front_A(ay, True); streams.append(ay)
    sy = Asm(); sy.label('L_SY'); sy.vmq = list(d.vmq); s34(sy, True); streams.append(sy)
    streams += OOL
    for st in streams: out += st.out
    out += ['.section .rodata,"a"', '.p2align 6', f'.amdhsa_kernel {NAME}', '  .amdhsa_next_free_vgpr 256', '  .amdhsa_next_free_sgpr 102',
            '  .amdhsa_accum_offset 256', '  .amdhsa_group_segment_fixed_size 0', '  .amdhsa_kernarg_size 96', '  .amdhsa_user_sgpr_count 2',
            '  .amdhsa_user_sgpr_kernarg_segment_ptr 1', '  .amdhsa_system_sgpr_workgroup_id_x 1', '.end_amdhsa_kernel']
    for nm, st in (('BO', bo), ('BY', by), ('AO', ao), ('AY', ay), ('SO', so), ('SY', sy)):
        print(nm, len(st.out), st.count, file=sys.stderr)
    return '\n'.join(out) + '\n'

if __name__ == '__main__':
    import argparse
    ap = argparse.ArgumentParser()
    ap.add_argument('-o', default='k.s'); ap.add_argument('--stamps', default=''); ap.add_argument('--no-a', action='store_true'); ap.add_argument('--wsbase', type=int, default=0); ap.add_argument('--probe', default='')
    args = ap.parse_args()
    cfg.stamps = args.stamps; cfg.no_a = args.no_a; cfg.probe = args.probe; cfg.wsbase = args.wsbase << 20
    open(args.o, 'w').write(build())
```

```python
import sys, math, struct
sys.path.insert(0, 'gen')
from asmlib import Asm, v, s

NAME = 'parallel_sum__linear_kernel_hedgehog__mixer_s_mlp__prompt_kernel'
def f2u(x): return struct.unpack('<I', struct.pack('<f', x))[0]
def hx(x): return f'0x{x & 0xffffffff:08x}'
LOG2E = 1.4426950408889634
C0 = -2.0 * math.sqrt(2.0 / math.pi) * LOG2E
C1 = C0 * 0.044715
POLL_LIMIT = 40000

SX, SQKV, SPHI, SWO, SW1, SW2, SW3, SW4, SOUT, SDBG, SWS = 4, 8, 12, 16, 20, 24, 28, 32, 36, 40, 44
KARG = {SX: (0, 2359296), SQKV: (8, 1990656), SPHI: (16, 20736), SWO: (24, 663552), SW1: (40, 663552), SW2: (48, 663552),
        SW3: (56, 5308416), SW4: (64, 5308416), SOUT: (72, 2359296), SDBG: (80, 256), SWS: (88, 268435456)}
sW, sTG, sXC, sIDX, sMI, sJ, sC, sNONCE = 48, 49, 50, 51, 52, 53, 54, 55
sR0, sR1, sR2, sR3, sR4, sR5 = 56, 57, 58, 59, 60, 61
sCNT = 62
sT0, sT1, sT2, sT3, sT4, sT5 = 64, 65, 66, 67, 68, 69
sM = 70
sSTAMP = 72
def srd(b): return s(b, 4)

WS_EPOCH = 0
MB_H  = 0x1000
MB_X  = MB_H + 128 * 128
MB_K1 = MB_X + 1024 * 128
MB_K2 = MB_K1 + 512 * 128
MB_E  = MB_K2 + 128 * 256
MB_P  = MB_E + 2048 * 128
WS_STAMP = MB_P + 256 * 128
WS_ST = 0x100000
WS_KVF = WS_ST + 128 * 2048
WS_KVP = 0x180000
WS_HS = 0x400000
WS_X1 = WS_HS + 128 * 18432
WS_O  = WS_X1 + 128 * 18432
WS_H  = 0xC00000
WS_P  = WS_H + 512 * 36864
WS_END = WS_P + 256 * 73728
assert WS_STAMP + 2048 * 128 <= WS_ST and WS_KVP + 512 * 3072 <= WS_HS and WS_O + 512 * 5120 <= WS_H

vLANE, vL16 = 255, 254
XB, HOWN, ACC3A, ACCB, RING = 0, 144, 168, 192, 208
vALO, vAHI, vAOD = 232, 233, 234
vDP, vDO = 235, 236
vGC = 237
vPOLL = 245
vTMP = 246
L3A, L3P2, L3P3, LCS, LSC2 = 0, 92160, 129024, 161792, 162816
L3P3L = 88064

class Cfg:
    stamps = False
    no_a = False
    wsbase = 0
    probe = ''
cfg = Cfg()
OOL = []

class AddrReg:
    def __init__(self, reg, base=0): self.reg = reg; self.base = base
    def off(self, a, addr):
        d = addr - self.base
        if d < 0 or d > 65535 - 16:
            nb = addr & ~0x3ff
            a(f'v_add_u32 {v(self.reg)}, {hx(nb - self.base)}, {v(self.reg)}')
            self.base = nb; d = addr - nb
        return d
    def copy(self): return AddrReg(self.reg, self.base)

def stamp(a, i):
    if not cfg.stamps: return
    a(f'{"s_memtime" if cfg.stamps == "clk" else "s_memrealtime"} {s(sM, 2)}')
    a.wait_all(vm=False)
    a(f's_mov_b32 {s(sSTAMP + i)}, {s(sM)}')

def kargs_ready(a):
    a.wait_all(vm=False)
    if cfg.wsbase:
        a(f's_add_u32 {s(SWS)}, {s(SWS)}, {hx(cfg.wsbase)}'); a(f's_addc_u32 {s(SWS+1)}, {s(SWS+1)}, 0')
        a(f's_mov_b32 {s(SWS+2)}, {268435456 - cfg.wsbase}')
    if cfg.probe in ('rd', 'wr'):
        a(f's_lshl_b32 {s(sT4)}, s2, 3'); a(f's_add_u32 {s(sT4)}, {s(sT4)}, {s(sW)}'); a(f's_lshl_b32 {s(sT4)}, {s(sT4)}, 14')
        a(f's_add_u32 {s(sT4)}, {s(sT4)}, {128 << 20}')
        for i in range(16):
            if cfg.probe == 'rd': a(f'buffer_load_dwordx4 {v(4*i,4)}, {v(vL16)}, {srd(SWS)}, {s(sT4)} offen')
            else: a(f'buffer_store_dwordx4 {v(4*i,4)}, {v(vL16)}, {srd(SWS)}, {s(sT4)} offen sc1')
            a(f's_add_u32 {s(sT4)}, {s(sT4)}, 1024')
        a.wait_all(lg=False)
def barrier(a): a('s_barrier')
def mfma(a, d, x, y, c, k16=False):
    n = 2 if k16 else 4
    op = 'v_mfma_f32_16x16x16_bf16' if k16 else 'v_mfma_f32_16x16x32_bf16'
    a(f'{op} {v(d,4)}, {v(x,n)}, {v(y,n)}, {"0" if c is None else v(c,4)}')
def tr(a, d, ar, addr):
    o = ar.off(a, addr); a(f'ds_read_b64_tr_b16 {v(d,2)}, {v(ar.reg)} offset:{o}')
def dsr(a, n, d, ar, addr):
    o = ar.off(a, addr); a(f'ds_read_b{32*n} {v(d,n)}, {v(ar.reg)} offset:{o}')
def setexec(a, mask):
    if mask == -1: a('s_mov_b64 exec, -1'); return
    lo, hi = mask & 0xffffffff, mask >> 32
    if lo == 0xffffffff: a(f's_mov_b32 exec_hi, {hx(hi)}'); return
    if hi == 0 and lo < 0x80000000: a(f's_mov_b64 exec, {hx(lo)}'); return
    a(f's_mov_b32 exec_lo, {hx(lo)}'); a(f's_mov_b32 exec_hi, {hx(hi)}')
def dma(a, sr, vaddr, soff, sm0, ldsaddr, goff=0, flags='', tag=None):
    assert ldsaddr >= goff
    a(f's_add_u32 m0, {s(sm0)}, {hx(ldsaddr - goff)}')
    o = f' offset:{goff}' if goff else ''
    a(f'buffer_load_dwordx4 {v(vaddr)}, {srd(sr)}, {s(soff)} offen{o} {flags} lds'.replace('  ', ' '), tag=tag)

def interleave(a, main, side, start=0, every=None):
    n = len(main); m = len(side)
    if every is None: every = max(1, (n - start) // (m + 1)) if m else 1
    k = 0
    for i, f in enumerate(main):
        f()
        if k < m and i >= start and (i - start) % every == every - 1:
            side[k](); k += 1
    while k < m: side[k](); k += 1

def get_nonce_issue(a, vt):
    a(f'v_mov_b32 {v(vt)}, 0')
    a(f'buffer_load_dword {v(vt)}, {v(vt)}, {srd(SDBG)}, 0 offen sc1')
def get_nonce_check(a, vt):
    a(f'v_readfirstlane_b32 {s(sNONCE)}, {v(vt)}')
    a(f's_cmp_eq_u32 {s(sNONCE)}, 0')
    slow, back = a.newlabel('nslow'), a.newlabel('nback')
    a(f's_cbranch_scc1 {slow}')
    a.label(back)
    o = Asm(); o.label(slow)
    o(f's_mov_b32 {s(sCNT)}, 0')
    lp = o.newlabel('nloop'); o.label(lp)
    o(f'v_mov_b32 {v(vt)}, 0')
    o(f'buffer_load_dword {v(vt)}, {v(vt)}, {srd(SDBG)}, 0 offen sc1')
    o(f's_add_u32 {s(sCNT)}, {s(sCNT)}, 1')
    o(f'v_readfirstlane_b32 {s(sNONCE)}, {v(vt)}')
    o(f's_cmp_ge_u32 {s(sCNT)}, {POLL_LIMIT}'); o(f's_cbranch_scc1 {back}')
    o(f's_cmp_eq_u32 {s(sNONCE)}, 0'); o(f's_cbranch_scc1 {lp}')
    o(f's_branch {back}')
    OOL.append(o)

def flag_write(a, vaddr, soff, mask, vt):
    a(f'v_mov_b32 {v(vt)}, {s(sNONCE)}')
    setexec(a, mask)
    a(f'buffer_atomic_swap {v(vt)}, {v(vaddr)}, {srd(SWS)}, {s(soff)} offen')
    setexec(a, -1)
def poll_issue(a, vt, va, soff, mask):
    a(f'v_lshlrev_b32 {v(va)}, 2, {v(vLANE)}')
    a(f'v_mov_b32 {v(vt)}, 0')
    setexec(a, mask)
    a(f'buffer_atomic_add {v(vt)}, {v(va)}, {srd(SWS)}, {s(soff)} offen sc0')
    setexec(a, -1)
def poll_check(a, vt, va, soff, mask):
    a.wait_regs([vt])
    setexec(a, mask)
    a(f'v_cmp_ne_u32 vcc, {s(sNONCE)}, {v(vt)}')
    slow, back = a.newlabel('pslow'), a.newlabel('pback')
    a.nop(1)
    a(f's_cbranch_vccnz {slow}')
    a.label(back)
    setexec(a, -1)
    o = Asm(); o.label(slow)
    o(f's_mov_b32 {s(sCNT)}, 0')
    o(f'v_lshlrev_b32 {v(va)}, 2, {v(vLANE)}')
    lp = o.newlabel('ploop'); o.label(lp)
    o(f'v_mov_b32 {v(vt)}, 0')
    o(f'buffer_atomic_add {v(vt)}, {v(va)}, {srd(SWS)}, {s(soff)} offen sc0')
    o(f's_add_u32 {s(sCNT)}, {s(sCNT)}, 1')
    o(f'v_cmp_ne_u32 vcc, {s(sNONCE)}, {v(vt)}')
    o(f's_cmp_ge_u32 {s(sCNT)}, {POLL_LIMIT}'); o(f's_cbranch_scc1 {back}')
    o(f's_cbranch_vccnz {lp}')
    o(f's_branch {back}')
    OOL.append(o)
def poll(a, vt, va, soff, mask):
    poll_issue(a, vt, va, soff, mask); poll_check(a, vt, va, soff, mask)

def pat_pair(a, d, t0, t1, pitch, natural):
    a(f'v_lshrrev_b32 {v(t0)}, 2, {v(vLANE)}')
    if natural:
        a(f'v_and_b32 {v(t1)}, 12, {v(t0)}'); a(f'v_add_u32 {v(t0)}, {v(t0)}, {v(t1)}')
    a(f'v_mul_u32_u24 {v(t0)}, {pitch}, {v(t0)}')
    a(f'v_lshrrev_b32 {v(t1)}, 3, {v(vLANE)}'); a(f'v_and_b32 {v(t1)}, 2, {v(t1)}')
    a(f'v_xor_b32 {v(t1)}, {v(t1)}, {v(vLANE)}'); a(f'v_and_b32 {v(t1)}, 3, {v(t1)}')
    a(f'v_lshl_add_u32 {v(d)}, {v(t1)}, 4, {v(t0)}')
def pat_odd(a, d, t0, t1, pitch, natural):
    a(f'v_bfe_u32 {v(t0)}, {v(vLANE)}, 1, 4')
    if natural:
        a(f'v_and_b32 {v(t1)}, 12, {v(t0)}'); a(f'v_add_u32 {v(t0)}, {v(t0)}, {v(t1)}')
    a(f'v_mul_u32_u24 {v(t0)}, {pitch}, {v(t0)}')
    a(f'v_and_b32 {v(t1)}, 1, {v(vLANE)}')
    a(f'v_lshl_add_u32 {v(d)}, {v(t1)}, 4, {v(t0)}')
def pat_x(a, d, t0, t1):
    a(f'v_lshrrev_b32 {v(t0)}, 2, {v(vLANE)}'); a(f'v_mul_u32_u24 {v(t0)}, 1152, {v(t0)}')
    a(f'v_lshrrev_b32 {v(t1)}, 4, {v(vLANE)}'); a(f'v_and_b32 {v(t1)}, 2, {v(t1)}')
    a(f'v_xor_b32 {v(t1)}, {v(t1)}, {v(vLANE)}'); a(f'v_and_b32 {v(t1)}, 3, {v(t1)}')
    a(f'v_lshl_add_u32 {v(d)}, {v(t1)}, 4, {v(t0)}')
def pat_trlo(a, lo, hi, t0):
    a(f'v_lshrrev_b32 {v(t0)}, 2, {v(vLANE)}'); a(f'v_lshlrev_b32 {v(lo)}, 6, {v(t0)}')
    a(f'v_and_b32 {v(t0)}, 3, {v(vLANE)}'); a(f'v_lshl_add_u32 {v(lo)}, {v(t0)}, 3, {v(lo)}')
    a(f'v_and_b32 {v(t0)}, 16, {v(vLANE)}'); a(f'v_lshl_add_u32 {v(lo)}, {v(t0)}, 1, {v(lo)}')
    a(f'v_xor_b32 {v(hi)}, 32, {v(lo)}')
def pat_xread(a, d, t0, t1):
    a(f'v_and_b32 {v(t0)}, 15, {v(vLANE)}'); a(f'v_lshlrev_b32 {v(d)}, 6, {v(t0)}')
    a(f'v_lshrrev_b32 {v(t0)}, 2, {v(vLANE)}'); a(f'v_and_b32 {v(t0)}, 2, {v(t0)}')
    a(f'v_lshrrev_b32 {v(t1)}, 4, {v(vLANE)}'); a(f'v_xor_b32 {v(t0)}, {v(t0)}, {v(t1)}')
    a(f'v_lshl_add_u32 {v(d)}, {v(t0)}, 4, {v(d)}')

def allreduce_g(a, r, t):
    a(f'v_mov_b32 {v(t)}, {v(r)}'); a(f'v_permlane32_swap_b32 {v(r)}, {v(t)}'); a(f'v_add_f32 {v(r)}, {v(r)}, {v(t)}')
    a(f'v_mov_b32 {v(t)}, {v(r)}'); a(f'v_permlane16_swap_b32 {v(r)}, {v(t)}'); a(f'v_add_f32 {v(r)}, {v(r)}, {v(t)}')

def mean_var(a, su, sq, nm, var):
    a(f'v_mul_f32 {v(nm)}, {hx(f2u(-1.0/576))}, {v(su)}')
    a(f'v_mul_f32 {v(var)}, {hx(f2u(1.0/576))}, {v(sq)}')
    a(f'v_fma_f32 {v(var)}, -{v(nm)}, {v(nm)}, {v(var)}')
    a(f'v_max_f32 {v(var)}, 0, {v(var)}')
def gelu_consts(a, rho, c0, c1, ri):
    a(f'v_rcp_f32 {v(ri)}, {v(rho)}')
    a(f'v_mul_f32 {v(c1)}, {v(rho)}, {v(rho)}')
    a(f'v_mul_f32 {v(c0)}, {hx(f2u(C0))}, {v(rho)}')
    a(f'v_mul_f32 {v(c1)}, {hx(f2u(0.044715))}, {v(c1)}')
    a(f'v_mul_f32 {v(c1)}, {v(c1)}, {v(c0)}')

def gelu8(a, items, tmp):
    L = []
    n = len(items)
    E = lambda t: L.append(lambda: a(t))
    for i, (x, cs, k) in enumerate(items): E(f'v_fmac_f32 {v(x)}, {v(k)}, {v(cs)}')
    for i, (x, cs, k) in enumerate(items): E(f'v_mul_f32 {v(tmp+i)}, {v(x)}, {v(x)}')
    for i, (x, cs, k) in enumerate(items): E(f'v_fma_f32 {v(tmp+i)}, {v(tmp+i)}, {v(k+2)}, {v(k+1)}')
    for i, (x, cs, k) in enumerate(items): E(f'v_mul_f32 {v(tmp+i)}, {v(tmp+i)}, {v(x)}')
    for i, (x, cs, k) in enumerate(items): E(f'v_exp_f32 {v(tmp+i)}, {v(tmp+i)}')
    for i, (x, cs, k) in enumerate(items): E(f'v_fma_f32 {v(tmp+i)}, {v(tmp+i)}, {v(k+3)}, {v(k+3)}')
    for i, (x, cs, k) in enumerate(items): E(f'v_rcp_f32 {v(tmp+i)}, {v(tmp+i)}')
    for i, (x, cs, k) in enumerate(items): E(f'v_mul_f32 {v(tmp+i)}, {v(tmp+i)}, {v(x)}')
    return L
def pack(a, dst, src, n):
    return [(lambda i=i: a(f'v_cvt_pk_bf16_f32 {v(dst+i)}, {v(src+2*i)}, {v(src+2*i+1)}')) for i in range(n)]
def run(L):
    for f in L: f()

def diag_select(a, d, g4, t0):
    a(f'v_and_b32 {v(t0)}, 3, {v(vLANE)}')
    a(f'v_mov_b32 {v(d)}, {v(g4)}')
    for r in (1, 2, 3):
        a(f'v_cmp_eq_u32 vcc, {r}, {v(t0)}')
        a(f'v_cndmask_b32 {v(d)}, {v(d)}, {v(g4+r)}, vcc')
DIAG = 0xF0000F0000F0000F

def front_loop(a, reads, mfmas, refill, gtag, first_wait=True):
    if first_wait: a.wait_vm_tag(gtag(0))
    barrier(a)
    run(reads(0))
    for pos in range(18):
        a.wait_all(vm=False)
        side = []
        if pos + 1 < 18:
            if (pos + 1) % 2 == 0:
                G = (pos + 1) // 2
                a.wait_vm_tag(gtag(G)); barrier(a)
                side = reads(pos + 1) + refill(G)
            else:
                side = reads(pos + 1)
        main = mfmas(pos)
        per = -(-len(side) // len(main))
        for f in main:
            f()
            for _ in range(per):
                if side: side.pop(0)()
        run(side)

def w3_dma_list(a):
    L = []
    def init():
        pat_pair(a, vDP, vTMP, vTMP + 1, 9216, False)
        pat_odd(a, vDO, vTMP, vTMP + 1, 9216, False)
        a(f's_mul_i32 {s(sT0)}, {s(sTG)}, {16*9216}')
        a(f's_mul_i32 {s(sT1)}, {s(sJ)}, 1152'); a(f's_add_u32 {s(sT0)}, {s(sT0)}, {s(sT1)}')
        a(f's_lshl_b32 {s(sT1)}, {s(sC)}, 8'); a(f's_add_u32 {s(sT1)}, {s(sT1)}, {s(sT0)}')
        a(f'v_add_u32 {v(vDP)}, {s(sT1)}, {v(vDP)}')
        a(f's_lshl_b32 {s(sT1)}, {s(sC)}, 5'); a(f's_add_u32 {s(sT1)}, {s(sT1)}, {s(sT0)}'); a(f's_add_u32 {s(sT1)}, {s(sT1)}, 1024')
        a(f'v_add_u32 {v(vDO)}, {s(sT1)}, {v(vDO)}')
        a(f's_mul_i32 {s(sR4)}, {s(sTG)}, 2560'); a(f's_lshl_b32 {s(sR5)}, {s(sTG)}, 10')
    L.append(init)
    for h in range(9):
        def fa(h=h):
            a(f's_mov_b32 {s(sT2)}, {h*64*9216}')
            dma(a, SW3, vDP, sT2, sR4, L3A + h*10240, 0, tag='w3')
            dma(a, SW3, vDP, sT2, sR4, L3A + h*10240 + 1024, 64, tag='w3')
        def fo(h=h):
            a(f's_mov_b32 {s(sT2)}, {h*64*9216}')
            setexec(a, 0xffffffff)
            dma(a, SW3, vDO, sT2, sR4, L3A + h*10240 + 2048, 0, tag='w3')
            setexec(a, -1)
        L += [fa, fo]
    for h in range(9):
        def fb(h=h):
            a(f's_mov_b32 {s(sT2)}, {h*64*9216}')
            dma(a, SW3, vDP, sT2, sR5, L3P2 + h*4096, 128, tag='w3')
            if h < 8: dma(a, SW3, vDP, sT2, sR5, L3P3 + h*4096, 192, tag='w3')
        L.append(fb)
    return L

def e2_poll(a):
    a(f's_lshl_b32 {s(sT0)}, {s(sMI)}, 2'); a(f's_lshr_b32 {s(sT1)}, {s(sW)}, 1'); a(f's_add_u32 {s(sT0)}, {s(sT0)}, {s(sT1)}')
    a(f's_lshl_b32 {s(sT0)}, {s(sT0)}, 3'); a(f's_add_u32 {s(sT0)}, {s(sT0)}, {s(sJ)}')
    a(f's_lshl_b32 {s(sT0)}, {s(sT0)}, 2'); a(f's_add_u32 {s(sT0)}, {s(sT0)}, {s(sC)}')
    a(f's_lshl_b32 {s(sT0)}, {s(sT0)}, 7'); a(f's_add_u32 {s(sT3)}, {s(sT0)}, {MB_X}')
    poll(a, vPOLL, vTMP, sT3, 0xF)

STREG = HOWN
def x_loads(a):
    a(f's_lshl_b32 {s(sT0)}, {s(sMI)}, 3'); a(f's_add_u32 {s(sT0)}, {s(sT0)}, {s(sW)}')
    a(f's_mul_i32 {s(sT1)}, {s(sT0)}, {2*18432}'); a(f's_add_u32 {s(sT1)}, {s(sT1)}, {WS_X1}')
    a(f's_add_u32 {s(sT2)}, {s(sT1)}, 18432')
    a(f'v_lshlrev_b32 {v(vTMP)}, 3, {v(vLANE)}')
    for k in range(18):
        if k and k % 4 == 0:
            a(f's_add_u32 {s(sT1)}, {s(sT1)}, 4096'); a(f's_add_u32 {s(sT2)}, {s(sT2)}, 4096')
        for i in range(2):
            r = XB + 8*k + 4*i; so = (sT1, sT2)[i]; o = (k % 4) * 1024
            if k < 16:
                a(f'buffer_load_dwordx4 {v(r,4)}, {v(vL16)}, {srd(SWS)}, {s(so)} offen offset:{o} sc1')
            else:
                a(f'buffer_load_dwordx2 {v(r,2)}, {v(vTMP)}, {srd(SWS)}, {s(so)} offen offset:{o} sc1')
                a(f'buffer_load_dwordx2 {v(r+2,2)}, {v(vTMP)}, {srd(SWS)}, {s(so)} offen offset:{o+512} sc1')
    a(f's_lshl_b32 {s(sT1)}, {s(sT0)}, 12'); a(f's_add_u32 {s(sT1)}, {s(sT1)}, {WS_ST}')
    for n in range(4):
        a(f'buffer_load_dwordx4 {v(STREG+4*n,4)}, {v(vL16)}, {srd(SWS)}, {s(sT1)} offen offset:{n*1024} sc1')

def s3_addr_init(a):
    pat_trlo(a, vALO, vAHI, vTMP + 1)
    a(f'v_lshlrev_b32 {v(vAOD)}, 3, {v(vLANE)}')

def w3frag(k, half, what, p=None):
    rb = 2*k + half
    if what == 'odd': return L3A + rb*2560 + 2048
    if p < 2: return L3A + rb*2560 + p*1024
    if p == 2: return L3P2 + rb*1024
    return L3P3 + rb*1024 if k < 16 else L3P3L + (rb - 32)*1024

def cs_w3(a):
    ones, acc = ACC3A, ACC3A + 4
    lo, hi, od = vTMP + 2, vTMP + 3, vTMP + 4
    pat_trlo(a, lo, hi, vTMP + 1)
    a(f'v_lshlrev_b32 {v(od)}, 3, {v(vLANE)}'); a(f'v_add_u32 {v(od)}, {L3A + 2048}, {v(od)}')
    a(f's_cmp_lt_u32 {s(sTG)}, 2')
    a(f's_cselect_b32 {s(sT0)}, 5, 2'); a(f's_lshl_b32 {s(sT0)}, {s(sT0)}, 9')
    a(f's_lshl_b32 {s(sT1)}, {s(sTG)}, 10')
    a(f's_cmp_eq_u32 {s(sTG)}, 2'); a(f's_cselect_b32 {s(sT1)}, {L3P2}, {s(sT1)}')
    a(f's_cmp_eq_u32 {s(sTG)}, 3'); a(f's_cselect_b32 {s(sT1)}, {L3P3}, {s(sT1)}')
    a(f's_cselect_b32 {s(sT2)}, 0, 0x3f803f80')
    a(f's_cselect_b32 {s(sT3)}, 0, {s(sT0)}')
    a(f'v_add_u32 {v(lo)}, {s(sT1)}, {v(lo)}'); a(f'v_add_u32 {v(hi)}, {s(sT1)}, {v(hi)}')
    for r in range(4):
        a(f'v_mov_b32 {v(ones+r)}, 0x3f803f80'); a(f'v_mov_b32 {v(acc+12+r)}, {s(sT2)}')
    def reads(k):
        b = RING + 12*(k & 1)
        for half in range(2):
            a(f'ds_read_b64_tr_b16 {v(b+2*half,2)}, {v(lo)}')
            a(f'ds_read_b64_tr_b16 {v(b+4+2*half,2)}, {v(hi)}')
            a(f'ds_read_b64_tr_b16 {v(b+8+2*half,2)}, {v(od)}')
            st = sT0 if 2*k + half < 31 else sT3
            a(f'v_add_u32 {v(lo)}, {s(st)}, {v(lo)}'); a(f'v_add_u32 {v(hi)}, {s(st)}, {v(hi)}')
            a(f'v_add_u32 {v(od)}, 2560, {v(od)}')
    reads(0)
    for k in range(18):
        if k + 1 < 18: reads(k + 1)
        b = RING + 12*(k & 1)
        bo = ones if k < 16 else acc + 12
        mfma(a, acc, b, bo, None if k == 0 else acc)
        mfma(a, acc+4, b+4, bo, None if k == 0 else acc+4)
        mfma(a, acc+8, b+8, ones, None if k == 0 else acc+8)
    a(f'v_and_b32 {v(lo)}, 48, {v(vLANE)}')
    a(f's_lshl_b32 {s(sT0)}, {s(sTG)}, 7'); a(f's_add_u32 {s(sT0)}, {s(sT0)}, {LCS}')
    a(f'v_add_u32 {v(hi)}, {LCS + 512}, {v(lo)}'); a(f'v_add_u32 {v(lo)}, {s(sT0)}, {v(lo)}')
    setexec(a, 0x0001000100010001)
    a(f'ds_write_b128 {v(lo)}, {v(acc,4)}'); a(f'ds_write_b128 {v(lo)}, {v(acc+4,4)} offset:64')
    a(f'ds_write_b128 {v(hi)}, {v(acc+8,4)}')
    setexec(a, -1)
    a.wait_all(vm=False)

def front_B(a, Y):
    sTT, sG, sQ, sB0 = sR0, sR1, sR2, sR3
    SLOT = 26624
    BF, AF, ACC, CSA, ODD, ODC, ONES = 0, 16, 40, 56, 64, 68, 72
    XN, STT, K0, T8, PK = 76, 88, 96, 104, 112
    aLo, aHi, aOd, aB0, aB1, aH0, aH1 = 200, 201, 202, 203, 204, 205, 206
    dP, dO, dX, t0, t1, t2, vN = 207, 208, 209, 210, 211, 212, 213
    aS0, aS1, aSO, mk0, mk1 = 214, 215, 216, 217, 218
    a(f's_and_b32 {s(sG)}, {s(sIDX)}, 3')
    a(f's_bfe_u32 {s(sT0)}, {s(sIDX)}, 0x20002'); a(f's_lshl_b32 {s(sTT)}, {s(sXC)}, 2'); a(f's_add_u32 {s(sTT)}, {s(sTT)}, {s(sT0)}')
    def ggroup(i, dst):
        if i == 8: a(f's_mov_b32 {s(dst)}, 8'); return
        a(f's_lshl_b32 {s(dst)}, {s(sG)}, 1'); a(f's_add_u32 {s(dst)}, {s(dst)}, {2+i}'); a(f's_and_b32 {s(dst)}, {s(dst)}, 7')
    def wload(sr, slot, tag):
        L = []
        for p in range(4): L.append(lambda p=p: dma(a, sr, dP, sT2, sR4, slot*SLOT + p*1024, 64*p, tag=tag))
        def fo():
            setexec(a, 0xffffffff); dma(a, sr, dO, sT2, sR4, slot*SLOT + 4096, 0, tag=tag); setexec(a, -1)
        return L + [fo]
    def load1(i):
        if not Y:
            def f0(): ggroup(i, sT2); a(f's_mul_i32 {s(sT2)}, {s(sT2)}, {64*1152}')
            return [f0] + wload(SW1, i % 6, ('g', i))
        def fx():
            ggroup(i, sT2); a(f's_lshl_b32 {s(sT2)}, {s(sT2)}, 7')
            dma(a, SX, dX, sT2, sR4, (i % 6)*SLOT + 18432, 0, tag=('g', i))
            dma(a, SX, dX, sT2, sR4, (i % 6)*SLOT + 18432 + 4096, 64, tag=('g', i))
        return [fx]
    def w2init():
        pat_pair(a, dP, t0, t1, 1152, False); pat_odd(a, dO, t0, t1, 1152, False)
        a(f's_mul_i32 {s(sT0)}, {s(sTG)}, {16*1152}')
        a(f's_lshl_b32 {s(sT1)}, {s(sG)}, 8'); a(f's_add_u32 {s(sT1)}, {s(sT1)}, {s(sT0)}'); a(f'v_add_u32 {v(dP)}, {s(sT1)}, {v(dP)}')
        a(f's_lshl_b32 {s(sT1)}, {s(sG)}, 5'); a(f's_add_u32 {s(sT1)}, {s(sT1)}, {s(sT0)}'); a(f's_add_u32 {s(sT1)}, {s(sT1)}, 1024')
        a(f'v_add_u32 {v(dO)}, {s(sT1)}, {v(dO)}')
    def load2(i):
        slot = (i + 3) % 6
        if not Y:
            return [lambda: a(f's_mov_b32 {s(sT2)}, {i*64*1152}')] + wload(SW2, slot, ('h', i))
        def fx():
            a(f's_add_u32 {s(sT2)}, {s(sR5)}, {i*2048}')
            dma(a, SWS, vL16, sT2, sR4, slot*SLOT + 18432, 0, 'sc1', tag=('h', i))
            dma(a, SWS, vL16, sT2, sR4, slot*SLOT + 18432 + 4096, 1024, 'sc1', tag=('h', i))
        return [fx]
    if not Y:
        pat_pair(a, dP, t0, t1, 1152, True); pat_odd(a, dO, t0, t1, 1152, True)
        a(f's_lshr_b32 {s(sT0)}, {s(sTG)}, 1'); a(f's_lshl_b32 {s(sT0)}, {s(sT0)}, 5')
        a(f's_and_b32 {s(sT1)}, {s(sTG)}, 1'); a(f's_lshl_b32 {s(sT1)}, {s(sT1)}, 2'); a(f's_add_u32 {s(sT0)}, {s(sT0)}, {s(sT1)}')
        a(f's_mul_i32 {s(sT0)}, {s(sT0)}, 1152')
        a(f's_mul_i32 {s(sT1)}, {s(sG)}, 288'); a(f's_add_u32 {s(sT0)}, {s(sT0)}, {s(sT1)}')
        a(f's_bitcmp1_b32 {s(sG)}, 0')
        a(f's_cselect_b32 {s(sT1)}, 32, 0'); a(f's_cselect_b32 {s(sT3)}, 0, 256')
        a(f's_add_u32 {s(sT1)}, {s(sT1)}, {s(sT0)}'); a(f's_add_u32 {s(sT3)}, {s(sT3)}, {s(sT0)}')
        a(f'v_add_u32 {v(dP)}, {s(sT1)}, {v(dP)}'); a(f'v_add_u32 {v(dO)}, {s(sT3)}, {v(dO)}')
        a(f's_mul_i32 {s(sR4)}, {s(sTG)}, 4608')
    else:
        pat_x(a, dX, t0, t1)
        a(f's_lshl_b32 {s(sT0)}, {s(sTT)}, 2'); a(f's_add_u32 {s(sT0)}, {s(sT0)}, {s(sTG)}')
        a(f's_mul_i32 {s(sT0)}, {s(sT0)}, 18432')
        a(f'v_add_u32 {v(dX)}, {s(sT0)}, {v(dX)}')
        a(f's_add_u32 {s(sR5)}, {s(sT0)}, {WS_HS}')
        a(f's_lshl_b32 {s(sR4)}, {s(sTG)}, 10')
    kargs_ready(a)
    if Y: nonce_issue(a, 219, 220)
    for i in range(6): run(load1(i))
    if Y: nonce_make(a, 219, 220)
    a(f's_and_b32 {s(sQ)}, {s(sW)}, 1')
    if Y: a(f's_add_u32 {s(sQ)}, {s(sQ)}, 2')
    pat_trlo(a, aLo, aHi, t0)
    a(f's_lshl_b32 {s(sT0)}, {s(sQ)}, 10')
    a(f'v_add_u32 {v(aLo)}, {s(sT0)}, {v(aLo)}'); a(f'v_add_u32 {v(aHi)}, {s(sT0)}, {v(aHi)}')
    a(f'v_lshlrev_b32 {v(aOd)}, 3, {v(vLANE)}')
    pat_xread(a, aB0, t0, t1)
    a(f's_lshl_b32 {s(sT0)}, {s(sTG)}, 10'); a(f'v_add_u32 {v(aB0)}, {s(sT0)}, {v(aB0)}')
    a(f'v_xor_b32 {v(aB1)}, 1024, {v(aB0)}')
    for r in range(4): a(f'v_mov_b32 {v(ONES+r)}, 0x3f803f80')
    RLo, RHi, ROd, RB0, RB1 = (AddrReg(x) for x in (aLo, aHi, aOd, aB0, aB1))
    def areads(pos, slot):
        L = []; b = AF + 12*(pos & 1)
        for half in range(2):
            base = slot*SLOT + (2*(pos & 1) + half)*4608
            L.append(lambda base=base, half=half: tr(a, b + 2*half, RLo, base))
            L.append(lambda base=base, half=half: tr(a, b + 4 + 2*half, RHi, base))
            if not Y: L.append(lambda base=base, half=half: tr(a, b + 8 + 2*half, ROd, base + 4096))
        return L
    def reads1(pos):
        slot = (pos // 2) % 6; xb = slot*SLOT + 18432 + (pos & 1)*4096; b = BF + 8*(pos & 1)
        return [lambda: dsr(a, 4, b, RB0, xb), lambda: dsr(a, 4, b + 4, RB1, xb)] + areads(pos, slot)
    def mf1(pos):
        A_ = AF + 12*(pos & 1); B_ = BF + 8*(pos & 1); z = pos == 0
        M = lambda d, x, y: (lambda: mfma(a, d, x, y, None if z else d))
        L = [M(ACC, A_, B_), M(ACC+4, A_+4, B_), M(ACC+8, A_, B_+4), M(ACC+12, A_+4, B_+4), M(CSA, A_, ONES), M(CSA+4, A_+4, ONES)]
        if not Y: L += [M(ODD, A_+8, B_), M(ODC, A_+8, ONES)]
        else: L += [M(ODD, B_, B_), M(ODC, ONES, B_)]
        return L
    def refill1(G):
        L = []
        if G + 5 < 9: L = load1(G + 5)
        elif not Y:
            if G + 5 == 9: L.append(w2init)
            L += load2(G + 5 - 9)
        if G == 5: L.append(lambda: get_nonce_issue(a, vN))
        return L
    stamp(a, 0)
    front_loop(a, reads1, mf1, refill1, lambda G: ('g', G))
    stamp(a, 1)
    a(f'v_and_b32 {v(t0)}, 15, {v(vLANE)}'); a(f'v_lshlrev_b32 {v(t2)}, 6, {v(t0)}')
    a(f'v_and_b32 {v(t0)}, 8, {v(vLANE)}'); a(f'v_lshl_add_u32 {v(t2)}, {v(t0)}, 2, {v(t2)}')
    a(f'v_lshrrev_b32 {v(t0)}, 4, {v(vLANE)}'); a(f'v_lshl_add_u32 {v(t2)}, {v(t0)}, 3, {v(t2)}')
    a(f's_lshl_b32 {s(sT0)}, {s(sTG)}, 10'); a(f'v_add_u32 {v(t2)}, {s(sT0)}, {v(t2)}')
    a(f's_and_b32 {s(sT0)}, {s(sQ)}, 1'); a(f's_lshl_b32 {s(sT0)}, {s(sT0)}, 12')
    a(f's_add_u32 {s(sT0)}, {s(sT0)}, {((7 if Y else 6) % 6)*SLOT + 18432}')
    a(f'v_add_u32 {v(t0)}, {s(sT0)}, {v(t2)}')
    a(f'ds_read_b64 {v(XN,2)}, {v(t0)}'); a(f'v_xor_b32 {v(t1)}, 32, {v(t0)}'); a(f'ds_read_b64 {v(XN+2,2)}, {v(t1)}')
    a(f'v_xor_b32 {v(t0)}, 1024, {v(t0)}'); a(f'ds_read_b64 {v(XN+4,2)}, {v(t0)}')
    a(f'v_xor_b32 {v(t1)}, 1024, {v(t1)}'); a(f'ds_read_b64 {v(XN+6,2)}, {v(t1)}')
    if not Y:
        a(f's_lshr_b32 {s(sT0)}, {s(sG)}, 1'); a(f's_lshl_b32 {s(sT0)}, {s(sT0)}, 12'); a(f's_add_u32 {s(sT0)}, {s(sT0)}, {2*SLOT + 18432}')
        a(f's_and_b32 {s(sT1)}, {s(sG)}, 1'); a(f's_lshl_b32 {s(sT1)}, {s(sT1)}, 5')
        a(f'v_xor_b32 {v(t2)}, {s(sT1)}, {v(t2)}'); a(f'v_add_u32 {v(t2)}, {s(sT0)}, {v(t2)}')
        a(f'ds_read_b64 {v(XN+8,2)}, {v(t2)}')
    a(f'v_and_b32 {v(t2)}, 15, {v(vLANE)}'); a(f'v_lshlrev_b32 {v(t2)}, 4, {v(t2)}')
    a(f's_lshl_b32 {s(sT0)}, {s(sTG)}, 8'); a(f's_add_u32 {s(sT0)}, {s(sT0)}, {LSC2}'); a(f'v_add_u32 {v(t2)}, {s(sT0)}, {v(t2)}')
    if Y:
        diag_select(a, T8, ODD, t0)
        mean_var(a, ODC, T8, STT, T8+1)
        a(f'v_add_f32 {v(T8+2)}, {hx(f2u(1e-5))}, {v(T8+1)}'); a(f'v_rsq_f32 {v(STT+2)}, {v(T8+2)}')
        a(f'v_mul_f32 {v(T8+1)}, {v(T8+1)}, {v(STT+2)}'); a(f'v_mov_b32 {v(T8+3)}, {hx(f2u(1e-5))}')
        a(f'v_fmac_f32 {v(T8+3)}, {v(T8+1)}, {v(STT+2)}'); a(f'v_rsq_f32 {v(T8+3)}, {v(T8+3)}')
        a(f'v_mul_f32 {v(STT+1)}, {v(T8+3)}, {v(STT+2)}'); a(f'v_mov_b32 {v(STT+3)}, 0')
        setexec(a, DIAG); a(f'ds_write_b128 {v(t2)}, {v(STT,4)}'); setexec(a, -1)
    a(f's_lshr_b32 {s(sT0)}, {s(sG)}, 1'); a(f's_add_u32 {s(sT0)}, {s(sT0)}, 1')
    a(f's_sub_u32 {s(sT1)}, 0, {s(sT0)}'); a(f's_bitcmp1_b32 {s(sG)}, 0'); a(f's_cselect_b32 {s(sT0)}, {s(sT1)}, {s(sT0)}')
    a(f's_lshl_b32 {s(sT1)}, {s(sTT)}, 6'); a(f's_add_u32 {s(sT0)}, {s(sT0)}, {s(sT1)}')
    for i, (ad, mk) in enumerate(((aS0, mk0), (aS1, mk1))):
        a(f's_xor_b32 {s(sT1)}, {s(sTG)}, {i}'); a(f's_lshl_b32 {s(sT1)}, {s(sT1)}, 4'); a(f's_add_u32 {s(sT1)}, {s(sT1)}, {s(sT0)}')
        a(f'v_and_b32 {v(t0)}, 15, {v(vLANE)}'); a(f'v_add_u32 {v(t0)}, {s(sT1)}, {v(t0)}')
        a(f'v_cmp_gt_u32 vcc, 2048, {v(t0)}'); a(f'v_cndmask_b32 {v(mk)}, 0, -1, vcc')
        a(f'v_bfe_u32 {v(t1)}, {v(t0)}, 4, 7'); a(f'v_mul_u32_u24 {v(ad)}, 18432, {v(t1)}')
        a(f'v_and_b32 {v(t0)}, 15, {v(t0)}'); a(f'v_and_or_b32 {v(t0)}, {v(vLANE)}, 48, {v(t0)}')
        if i == 0 and not Y: a(f'v_lshl_add_u32 {v(aSO)}, {v(t0)}, 3, {v(ad)}')
        a(f'v_lshl_add_u32 {v(ad)}, {v(t0)}, 4, {v(ad)}')
    a.wait_all(vm=False); barrier(a)
    a(f'ds_read_b128 {v(STT,4)}, {v(t2)}'); a(f'v_xor_b32 {v(t2)}, 256, {v(t2)}'); a(f'ds_read_b128 {v(STT+4,4)}, {v(t2)}')
    late = load2(5) if not Y else []
    a(f's_mul_i32 {s(sT0)}, {s(sG)}, 9'); a(f's_add_u32 {s(sT0)}, {s(sT0)}, 1'); a(f's_lshr_b32 {s(sT0)}, {s(sT0)}, 1')
    a(f's_add_u32 {s(sT0)}, {s(sT0)}, {s(sQ)}'); a(f's_lshl_b32 {s(sT0)}, {s(sT0)}, 10'); a(f's_add_u32 {s(sT4)}, {s(sT0)}, {WS_HS}')
    a(f's_cmp_lt_u32 {s(sG)}, 2'); a(f's_cselect_b32 {s(sT0)}, 0, {9*1024}'); a(f's_add_u32 {s(sT0)}, {s(sT0)}, {WS_HS + 4*1024}')
    a(f's_and_b32 {s(sT1)}, {s(sG)}, 1'); a(f's_lshl_b32 {s(sT1)}, {s(sT1)}, 9'); a(f's_add_u32 {s(sT5)}, {s(sT0)}, {s(sT1)}')
    for i in range(2):
        a(f'v_mov_b32 {v(K0+4*i)}, {v(STT+4*i)}')
        gelu_consts(a, STT+4*i+1, K0+4*i+1, K0+4*i+2, K0+4*i+3)
    for i, (ad, mk) in enumerate(((aS0, mk0), (aS1, mk1))):
        run(gelu8(a, [(ACC+8*i+r, CSA+r, K0+4*i) for r in range(8)], T8))
        run(pack(a, PK+4*i, T8, 4))
        for r in range(4): a(f'v_and_b32 {v(PK+4*i+r)}, {v(PK+4*i+r)}, {v(mk)}')
        a(f'buffer_store_dwordx4 {v(PK+4*i,4)}, {v(ad)}, {srd(SWS)}, {s(sT4)} offen sc1', tag='st')
    if not Y:
        run(gelu8(a, [(ODD+r, ODC+r, K0) for r in range(4)], T8))
        run(pack(a, PK+8, T8, 2))
        for r in range(2): a(f'v_and_b32 {v(PK+8+r)}, {v(PK+8+r)}, {v(mk0)}')
        a(f'buffer_store_dwordx2 {v(PK+8,2)}, {v(aSO)}, {srd(SWS)}, {s(sT5)} offen sc1', tag='st')
    run(late)
    get_nonce_check(a, vN)
    for i in range(2):
        a(f'v_mul_f32 {v(STT+4*i)}, {v(STT+4*i)}, {v(STT+4*i+2)}')
    def xn_init(dst, src, i, n):
        for r in range(n):
            a(f'v_lshlrev_b32 {v(dst+2*r)}, 16, {v(src+r)}'); a(f'v_and_b32 {v(dst+2*r+1)}, 0xffff0000, {v(src+r)}')
        for r in range(2*n): a(f'v_fma_f32 {v(dst+r)}, {v(dst+r)}, {v(STT+4*i+2)}, {v(STT+4*i)}')
    xn_init(ACC, XN, 0, 4); xn_init(ACC+8, XN+4, 1, 4)
    if not Y: xn_init(ODD, XN+8, 0, 2)
    a(f's_lshl_b32 {s(sT0)}, {s(sTG)}, 10')
    a(f'v_add_u32 {v(aB0)}, {s(sT0)}, {v(vL16)}'); a(f'v_xor_b32 {v(aB1)}, 1024, {v(aB0)}')
    a(f'v_lshlrev_b32 {v(aH0)}, 3, {v(vLANE)}'); a(f'v_add_u32 {v(aH0)}, {s(sT0)}, {v(aH0)}'); a(f'v_xor_b32 {v(aH1)}, 1024, {v(aH0)}')
    RB0, RB1, RH0, RH1 = (AddrReg(x) for x in (aB0, aB1, aH0, aH1))
    if Y:
        a(f's_bitcmp1_b32 {s(sG)}, 0'); a(f's_cselect_b32 {s(sT0)}, 31, 1'); a(f's_cselect_b32 {s(sT1)}, 24, 16')
        a(f's_add_u32 {s(sT0)}, {s(sT0)}, {s(sTT)}'); a(f's_and_b32 {s(sT0)}, {s(sT0)}, 31'); a(f's_lshl_b32 {s(sT0)}, {s(sT0)}, 9')
        a(f's_add_u32 {s(sT0)}, {s(sT0)}, {s(sT1)}'); a(f's_and_b32 {s(sT1)}, {s(sG)}, 2'); a(f's_lshl_b32 {s(sT1)}, {s(sT1)}, 1')
        a(f's_add_u32 {s(sT0)}, {s(sT0)}, {s(sT1)}')
        a(f's_lshl_b32 {s(sT1)}, {s(sTT)}, 9'); a(f's_lshl_b32 {s(sT3)}, {s(sG)}, 2'); a(f's_add_u32 {s(sT1)}, {s(sT1)}, {s(sT3)}')
        a(f'v_mov_b32 {v(t0)}, {s(sT0)}'); a(f'v_mov_b32 {v(t1)}, {s(sT1)}')
        a(f'v_cmp_gt_u32 vcc, 4, {v(vLANE)}'); a(f'v_cndmask_b32 {v(t0)}, {v(t0)}, {v(t1)}, vcc')
        a(f'v_and_b32 {v(t1)}, 3, {v(vLANE)}'); a(f'v_lshl_add_u32 {v(t0)}, {v(t1)}, 7, {v(t0)}')
    a.wait_vm_tag('st');
    stamp(a, 2)
    barrier(a)
    if Y:
        sk = a.newlabel('noflag')
        a(f's_mov_b32 {s(sT3)}, {MB_H}')
        a(f's_cmp_lg_u32 {s(sTG)}, 0'); a(f's_cbranch_scc1 {sk}')
        flag_write(a, t0, sT3, 0xFF, t1); a.vmq.pop()
        a.label(sk)
        a(f's_lshl_b32 {s(sT0)}, {s(sTT)}, 2'); a(f's_add_u32 {s(sT0)}, {s(sT0)}, {s(sG)}'); a(f's_lshl_b32 {s(sT0)}, {s(sT0)}, 7')
        a(f's_add_u32 {s(sT3)}, {s(sT0)}, {MB_H}')
        poll(a, t1, t2, sT3, 0xFF)
        stamp(a, 3)
        for i in range(6): run(load2(i))
    def reads2(pos):
        slot = (pos // 2 + 3) % 6; xb = slot*SLOT + 18432 + (pos & 1)*4096; b = BF + 8*(pos & 1)
        if pos in (4, 13):
            L = [lambda: dsr(a, 2, b, RH0, xb), lambda: dsr(a, 2, b+2, RH0, xb+512), lambda: dsr(a, 2, b+4, RH1, xb), lambda: dsr(a, 2, b+6, RH1, xb+512)]
        else:
            L = [lambda: dsr(a, 4, b, RB0, xb), lambda: dsr(a, 4, b + 4, RB1, xb)]
        return L + areads(pos, slot)
    def mf2(pos):
        A_ = AF + 12*(pos & 1); B_ = BF + 8*(pos & 1)
        M = lambda d, x, y: (lambda: mfma(a, d, x, y, d))
        L = [M(ACC, A_, B_), M(ACC+4, A_+4, B_), M(ACC+8, A_, B_+4), M(ACC+12, A_+4, B_+4)]
        if not Y: L += [M(ODD, A_+8, B_)]
        return L
    front_loop(a, reads2, mf2, lambda G: load2(G + 5) if G + 5 < 9 else [], lambda G: ('h', G))
    stamp(a, 4)
    a(f's_lshl_b32 {s(sT0)}, {s(sTT)}, 2'); a(f's_add_u32 {s(sT0)}, {s(sT0)}, {s(sTG)}')
    a(f's_lshl_b32 {s(sT1)}, {s(sG)}, 2'); a(f's_add_u32 {s(sT1)}, {s(sT1)}, {s(sQ)}'); a(f's_lshl_b32 {s(sT1)}, {s(sT1)}, 10')
    a(f's_add_u32 {s(sT1)}, {s(sT1)}, {WS_X1}')
    for i in range(2):
        run(pack(a, PK+4*i, ACC+8*i, 4))
        a(f's_xor_b32 {s(sT2)}, {s(sT0)}, {i}'); a(f's_mul_i32 {s(sT2)}, {s(sT2)}, 18432'); a(f's_add_u32 {s(sT2)}, {s(sT2)}, {s(sT1)}')
        a(f'buffer_store_dwordx4 {v(PK+4*i,4)}, {v(vL16)}, {srd(SWS)}, {s(sT2)} offen sc1', tag='st')
    if not Y:
        run(pack(a, PK+8, ODD, 2))
        a(f's_mul_i32 {s(sT2)}, {s(sT0)}, 18432'); a(f's_lshl_b32 {s(sT3)}, {s(sG)}, 9'); a(f's_add_u32 {s(sT2)}, {s(sT2)}, {s(sT3)}')
        a(f's_add_u32 {s(sT2)}, {s(sT2)}, {WS_X1 + 16*1024}')
        a(f'v_lshlrev_b32 {v(t0)}, 3, {v(vLANE)}')
        a(f'buffer_store_dwordx2 {v(PK+8,2)}, {v(t0)}, {srd(SWS)}, {s(sT2)} offen sc1', tag='st')
    for i in range(2):
        rs = [ACC+8*i+r for r in range(8)] + ([ODD+r for r in range(4)] if (i == 0 and not Y) else [])
        su, sq = T8 + i, T8 + 2 + i
        a(f'v_add_f32 {v(su)}, {v(rs[0])}, {v(rs[1])}'); a(f'v_mul_f32 {v(sq)}, {v(rs[0])}, {v(rs[0])}')
        a(f'v_fmac_f32 {v(sq)}, {v(rs[1])}, {v(rs[1])}')
        for r in rs[2:]:
            a(f'v_add_f32 {v(su)}, {v(su)}, {v(r)}'); a(f'v_fmac_f32 {v(sq)}, {v(r)}, {v(r)}')
    a(f'v_permlane32_swap_b32 {v(T8)}, {v(T8+1)}'); a(f'v_permlane32_swap_b32 {v(T8+2)}, {v(T8+3)}')
    a(f'v_add_f32 {v(T8)}, {v(T8)}, {v(T8+1)}'); a(f'v_add_f32 {v(T8+2)}, {v(T8+2)}, {v(T8+3)}')
    a(f'v_lshrrev_b32 {v(t0)}, 5, {v(vLANE)}'); a(f'v_xor_b32 {v(t0)}, {s(sT0)}, {v(t0)}'); a(f'v_lshlrev_b32 {v(t0)}, 11, {v(t0)}')
    a(f'v_permlane16_swap_b32 {v(T8)}, {v(T8+2)}')
    a(f'v_and_b32 {v(t1)}, 16, {v(vLANE)}'); a(f'v_lshl_add_u32 {v(t0)}, {v(t1)}, 6, {v(t0)}')
    a(f'v_and_b32 {v(t1)}, 15, {v(vLANE)}'); a(f'v_lshl_add_u32 {v(t0)}, {v(t1)}, 4, {v(t0)}')
    a(f'v_add_f32 {v(T8)}, {v(T8)}, {v(T8+2)}')
    a(f's_lshl_b32 {s(sT1)}, {s(sG)}, 8'); a(f's_lshl_b32 {s(sT2)}, {s(sQ)}, 2'); a(f's_add_u32 {s(sT1)}, {s(sT1)}, {s(sT2)}')
    a(f's_add_u32 {s(sT1)}, {s(sT1)}, {WS_ST}')
    a(f'buffer_store_dword {v(T8)}, {v(t0)}, {srd(SWS)}, {s(sT1)} offen sc1', tag='st')
    w3 = w3_dma_list(a) if Y else []
    if Y: w3.pop(0)()
    a(f'v_lshlrev_b32 {v(t0)}, 7, {v(vLANE)}')
    a(f's_lshl_b32 {s(sT3)}, {s(sTT)}, 12'); a(f's_lshl_b32 {s(sT1)}, {s(sG)}, 2'); a(f's_add_u32 {s(sT3)}, {s(sT3)}, {s(sT1)}')
    a(f's_add_u32 {s(sT3)}, {s(sT3)}, {MB_X}')
    a.wait_vm_tag('st')
    stamp(a, 5)
    barrier(a)
    if not Y:
        sk = a.newlabel('noflag')
        a(f's_cmp_lg_u32 {s(sTG)}, 0'); a(f's_cbranch_scc1 {sk}')
        flag_write(a, t0, sT3, 0xFFFFFFFF, t1); a.vmq.pop()
        a.label(sk)
        e2_poll(a)
        stamp(a, 6)
        x_loads(a)
        s3_addr_init(a)
        barrier(a)
    else:
        run(w3)
        e2_poll(a)
        a.wait_all(lg=False)
        stamp(a, 6)
        barrier(a)
        x_loads(a)
        cs_w3(a)
        s3_addr_init(a)

def nonce_issue(a, vz, ve):
    a(f'v_mov_b32 {v(vz)}, 0')
    a(f'buffer_load_dword {v(ve)}, {v(vz)}, {srd(SWS)}, 0 offen sc1')
def nonce_make(a, vz, ve):
    sk = a.newlabel('nononce')
    a(f's_or_b32 {s(sT0)}, s2, {s(sTG)}'); a(f's_cmp_lg_u32 {s(sT0)}, 0'); a(f's_cbranch_scc1 {sk}')
    o = a.fork()
    o(f'v_readfirstlane_b32 {s(sT0)}, {v(ve)}')
    o(f's_mul_i32 {s(sT0)}, {s(sT0)}, 1664525'); o(f's_add_u32 {s(sT0)}, {s(sT0)}, 1013904223')
    o(f's_cmp_eq_u32 {s(sT0)}, 0'); o(f's_cselect_b32 {s(sT0)}, 1013904223, {s(sT0)}')
    o(f'v_mov_b32 {v(ve)}, {s(sT0)}')
    setexec(o, 1)
    o(f'buffer_store_dword {v(ve)}, {v(vz)}, {srd(SDBG)}, 0 offen sc1')
    o(f'buffer_store_dword {v(ve)}, {v(vz)}, {srd(SWS)}, 0 offen sc1')
    setexec(o, -1)
    a.out += o.out
    a.label(sk)
    a.nop(2)

class Ring:
    def __init__(self, a, nslot=6):
        self.a = a; self.n = nslot
    def prefetch(self, steps, count):
        for i in range(count): self._read(steps, i)
        return count
    def _rd(self, steps, i):
        r = RING + 4*(i % self.n)
        return [(lambda h=h, ar=ar, ad=ad: tr(self.a, r + 2*h, ar, ad)) for h, (ar, ad) in enumerate(steps[i][0])]
    def _read(self, steps, i): run(self._rd(steps, i))
    def block(self, steps, done=0, hooks=None, pd=5):
        hooks = hooks or {}
        nxt = done
        while nxt < min(pd, len(steps)): self._read(steps, nxt); nxt += 1
        for i, (_, mf) in enumerate(steps):
            if i in hooks: hooks[i]()
            rd = []
            if nxt < len(steps) and nxt <= i + pd: rd = self._rd(steps, nxt); nxt += 1
            ms = mf(RING + 4*(i % self.n))
            for m in ms:
                m()
                if rd: rd.pop(0)()
            run(rd)

S4B = []
for p in range(4): S4B.append(HOWN + 8*p)
for n in range(6): S4B.append(XB + 8*n)
for n in range(2): S4B.append(XB + 48 + 8*n)
for n in range(2): S4B.append(XB + 64 + 8*n)
S4B.append(XB + 80)
for n in range(6): S4B.append(XB + 84 + 8*n)
ACC4O, ACC4 = XB + 132, 176
A4CH = {0: 0, 1: 10240, 2: 20480, 3: 30720, 4: 40960, 5: 51200, 6: 61440, 7: 71680, 'x': 81920, 8: 92160, 9: 102400}
B4CH = {0: 112640, 1: 120832, 2: 129024, 3: 137216, 4: 145408, 5: 153600, 'x': 84480, 6: 1024, 7: 9216, 8: 17408, 9: 25600}
def s4_rb(slot, half):
    if slot == 14: return 'x', 0
    sl = slot if slot < 14 else slot - 1
    return sl // 2, 2*(sl % 2) + half

def s34(a, Y):
    R = Ring(a)
    Lo, Hi, Od = AddrReg(vALO), AddrReg(vAHI), AddrReg(vAOD)
    sH, sE, sP = sR0, sR1, sR2
    CS = RING + 16
    a(f's_lshl_b32 {s(sT0)}, {s(sMI)}, 3'); a(f's_add_u32 {s(sT0)}, {s(sT0)}, {s(sJ)}')
    a(f's_lshl_b32 {s(sT1)}, {s(sT0)}, 3'); a(f's_add_u32 {s(sT1)}, {s(sT1)}, {s(sW)}')
    a(f's_mul_i32 {s(sH)}, {s(sT1)}, 36864'); a(f's_add_u32 {s(sH)}, {s(sH)}, {WS_H}')
    a(f's_lshl_b32 {s(sE)}, {s(sT1)}, 9'); a(f's_add_u32 {s(sE)}, {s(sE)}, {MB_E}')
    a(f's_lshl_b32 {s(sT0)}, {s(sMI)}, 2'); a(f's_add_u32 {s(sT0)}, {s(sT0)}, {s(sC)}')
    a(f's_lshl_b32 {s(sR3)}, {s(sT0)}, 3')
    a(f's_add_u32 {s(sT0)}, {s(sR3)}, {s(sW)}'); a(f's_mul_i32 {s(sP)}, {s(sT0)}, 73728')
    a(f's_lshl_b32 {s(sT1)}, {s(sJ)}, 10'); a(f's_add_u32 {s(sP)}, {s(sP)}, {s(sT1)}'); a(f's_add_u32 {s(sP)}, {s(sP)}, {WS_P}')

    def steps3(tiles, acc0, extra=None):
        St = []
        for k in range(18):
            for n, (what, p, eta) in enumerate(tiles):
                ar = Od if what == 'odd' else (Lo, Hi)[eta]
                def mf(fr, k=k, n=n, what=what, eta=eta):
                    L = []
                    for i in range(2):
                        d = acc0(n, i)
                        L.append(lambda d=d, i=i: mfma(a, d, fr, XB + 8*k + 4*i, None if k == 0 else d))
                    if extra and k >= 16: L.append(lambda: mfma(a, extra[0] + 4*eta, fr, extra[1], extra[0] + 4*eta))
                    return L
                St.append(([(ar, w3frag(k, h, what, p)) for h in range(2)], mf))
        return St
    TA = [('odd', None, 0), ('p', 0, 0), ('p', 0, 1), ('p', 1, 0), ('p', 1, 1)]
    accA3 = lambda n, i: ACC3A + 4*i if n == 0 else ACC3A + 8 + 16*((n-1)//2) + 8*i + 4*((n-1) % 2)
    accB3 = lambda n, i: ACCB + 8*i + 4*n
    A3 = steps3(TA, accA3)
    B3a = steps3([('p', 2, 0), ('p', 2, 1)], accB3)
    CS3, ONE3 = 176, 184
    B3b = steps3([('p', 3, 0), ('p', 3, 1)], accB3, extra=(CS3, ONE3))

    def cs_read(dst, tile, n):
        a(f'v_and_b32 {v(vPOLL)}, 48, {v(vLANE)}'); a(f'v_add_u32 {v(vPOLL)}, {LCS}, {v(vPOLL)}')
        for u in range(n): a(f'ds_read_b128 {v(dst+4*u,4)}, {v(vPOLL)} offset:{(tile+u)*64}')
    def hstore(src, kslot_expr_imm, odd=False):
        if odd:
            a(f's_lshl_b32 {s(sT4)}, {s(sC)}, 10'); a(f's_add_u32 {s(sT4)}, {s(sT4)}, 32768')
        else:
            a(f's_lshl_b32 {s(sT4)}, {s(sC)}, 13'); a(f's_add_u32 {s(sT4)}, {s(sT4)}, {kslot_expr_imm}')
        a(f's_add_u32 {s(sT4)}, {s(sT4)}, {s(sH)}')
        a(f'buffer_store_dwordx4 {v(src,4)}, {v(vL16)}, {srd(SWS)}, {s(sT4)} offen sc1', tag='hs')
    def gelu_pair(acc, p, cs, read=True):
        L = []
        if read: L.append(lambda: cs_read(cs, 2*p, 2))
        for i in range(2):
            L += gelu8(a, [(acc + 8*i + r, cs + r, vGC + 4*i) for r in range(8)], vTMP)
            L += pack(a, HOWN + 8*p + 4*i, vTMP, 4)
            L.append(lambda i=i: hstore(HOWN + 8*p + 4*i, p*2048 + i*1024))
        return L
    def stats():
        for n in range(4):
            r = STREG + 4*n
            a(f'v_add_f32 {v(r)}, {v(r)}, {v(r+1)}'); a(f'v_add_f32 {v(r+2)}, {v(r+2)}, {v(r+3)}'); a(f'v_add_f32 {v(r)}, {v(r)}, {v(r+2)}')
        for n in range(4): allreduce_g(a, STREG + 4*n, STREG + 4*n + 1)
        for i in range(2):
            mean_var(a, STREG + 8*i, STREG + 8*i + 4, vGC + 4*i, STREG + 8*i + 1)
            a(f'v_add_f32 {v(STREG+8*i+1)}, {hx(f2u(1e-5))}, {v(STREG+8*i+1)}'); a(f'v_rsq_f32 {v(STREG+8*i+2)}, {v(STREG+8*i+1)}')
            gelu_consts(a, STREG+8*i+2, vGC+4*i+1, vGC+4*i+2, vGC+4*i+3)
    def G3a():
        L = [stats, lambda: cs_read(CS, 8, 1)]
        L += gelu8(a, [(ACC3A + r, CS + (r & 3), vGC + 4*(r >> 2)) for r in range(8)], vTMP)
        L += pack(a, HOWN + 16, vTMP, 4)
        L.append(lambda: hstore(HOWN + 16, 0, odd=True))
        L += gelu_pair(ACC3A + 8, 0, CS) + gelu_pair(ACC3A + 24, 1, CS)
        return L
    def eflag(word):
        a.wait_vm_tag('hs')
        a(f'v_lshlrev_b32 {v(vTMP)}, 7, {v(vLANE)}')
        a(f's_lshl_b32 {s(sT4)}, {s(sC)}, 2'); a(f's_add_u32 {s(sT4)}, {s(sT4)}, {word*4}'); a(f's_add_u32 {s(sT4)}, {s(sT4)}, {s(sE)}')
        flag_write(a, vTMP, sT4, 0xF, vTMP + 1)
    def ebox():
        a(f's_lshl_b32 {s(sT5)}, {s(sC)}, 7'); a(f's_add_u32 {s(sT5)}, {s(sT5)}, {s(sE)}')
    M1 = 0x0F if cfg.no_a else 0x1F
    def w4init():
        pat_pair(a, vDP, vPOLL, vDO, 1152, False)
        a(f'v_bfe_u32 {v(vPOLL)}, {v(vLANE)}, 1, 4'); a(f'v_mul_u32_u24 {v(vPOLL)}, 1152, {v(vPOLL)}')
        a(f'v_and_b32 {v(vDO)}, 1, {v(vLANE)}'); a(f'v_lshl_add_u32 {v(vDO)}, {v(vDO)}, 4, {v(vPOLL)}')
        a(f's_mul_i32 {s(sT0)}, {s(sTG)}, {16*1152}'); a(f's_mul_i32 {s(sT1)}, {s(sJ)}, {576*1152}'); a(f's_add_u32 {s(sT0)}, {s(sT0)}, {s(sT1)}')
        colfix(sT0)
    def colfix(sb):
        a(f's_lshl_b32 {s(sT1)}, {s(sC)}, 8'); a(f's_add_u32 {s(sT1)}, {s(sT1)}, {s(sb)}'); a(f'v_add_u32 {v(vDP)}, {s(sT1)}, {v(vDP)}')
        a(f's_lshl_b32 {s(sT1)}, {s(sC)}, 5'); a(f's_add_u32 {s(sT1)}, {s(sT1)}, {s(sb)}'); a(f's_add_u32 {s(sT1)}, {s(sT1)}, 1024')
        a(f'v_add_u32 {v(vDO)}, {s(sT1)}, {v(vDO)}')
    def woinit(last):
        for d, sh, nb in ((vDP, 2, 2), (vDO, 1, 1)):
            a(f'v_bfe_u32 {v(vPOLL)}, {v(vLANE)}, {sh + 2}, 2')
            a(f'v_mul_u32_u24 {v(d)}, 18, {v(vPOLL)}')
            a(f'v_and_b32 {v(vPOLL)}, 1, {v(vPOLL)}')
            if not last: a(f'v_xor_b32 {v(vPOLL)}, 1, {v(vPOLL)}')
            a(f'v_lshl_add_u32 {v(d)}, {v(vPOLL)}, {4 if last else 1}, {v(d)}')
            a(f'v_bfe_u32 {v(vPOLL)}, {v(vLANE)}, {sh}, 2'); a(f'v_add_u32 {v(d)}, {v(d)}, {v(vPOLL)}')
            a(f'v_mul_u32_u24 {v(d)}, 1152, {v(d)}')
            if nb == 2:
                a(f'v_lshrrev_b32 {v(vPOLL)}, 3, {v(vLANE)}'); a(f'v_and_b32 {v(vPOLL)}, 2, {v(vPOLL)}')
                a(f'v_xor_b32 {v(vPOLL)}, {v(vPOLL)}, {v(vLANE)}'); a(f'v_and_b32 {v(vPOLL)}, 3, {v(vPOLL)}')
            else:
                a(f'v_and_b32 {v(vPOLL)}, 1, {v(vLANE)}')
            a(f'v_lshl_add_u32 {v(d)}, {v(vPOLL)}, 4, {v(d)}')
        a(f's_mul_i32 {s(sT0)}, {s(sJ)}, {72*1152}')
        if not last:
            a(f's_mul_i32 {s(sT1)}, {s(sTG)}, {4*1152}'); a(f's_add_u32 {s(sT0)}, {s(sT0)}, {s(sT1)}')
        colfix(sT0)
    def chrow(ch):
        if ch in (0, 1):
            a(f's_mul_i32 {s(sT2)}, {s(sC)}, {128*1152}')
            if ch: a(f's_add_u32 {s(sT2)}, {s(sT2)}, {64*1152}')
        elif ch == 5: a(f's_mov_b32 {s(sT2)}, {512*1152}')
        elif ch in (6, 'x'): a(f's_mov_b32 {s(sT2)}, 0')
        else:
            u = ch - 2 if ch < 5 else ch - 7
            a(f's_add_u32 {s(sT2)}, {s(sC)}, {u+1}'); a(f's_and_b32 {s(sT2)}, {s(sT2)}, 3'); a(f's_mul_i32 {s(sT2)}, {s(sT2)}, {128*1152}')
            if ch >= 7: a(f's_add_u32 {s(sT2)}, {s(sT2)}, {64*1152}')
    def w4(setA, ch, tag):
        sr = SWO if ch in (6, 'x') else SW4
        base = (A4CH if setA else B4CH)[ch]; g0 = 0 if setA else 128
        def setup():
            chrow(ch)
            if ch == 'x': a(f's_mov_b32 {s(sT3)}, 0')
            else: a(f's_mul_i32 {s(sT3)}, {s(sTG)}, {2560 if setA else 2048}')
        def fp():
            setup()
            if ch == 'x':
                a(f's_lshl_b32 {s(sT0)}, {s(sTG)}, 4'); a(f's_mov_b64 {s(sM,2)}, 0xffff'); a(f's_lshl_b64 exec, {s(sM,2)}, {s(sT0)}')
            dma(a, sr, vDP, sT2, sT3, base, g0, tag=tag); dma(a, sr, vDP, sT2, sT3, base + 1024, g0 + 64, tag=tag)
            if ch == 'x': setexec(a, -1)
        def fo():
            setup()
            if ch == 'x':
                a(f's_lshl_b32 {s(sT0)}, {s(sTG)}, 3'); a(f's_mov_b64 {s(sM,2)}, 0xff'); a(f's_lshl_b64 exec, {s(sM,2)}, {s(sT0)}')
            else: setexec(a, 0xffffffff)
            dma(a, sr, vDO, sT2, sT3, base + 2048, 0, tag=tag)
            setexec(a, -1)
        return [fp, fo] if setA else [fp]
    def p3late():
        a(f's_mov_b32 {s(sT2)}, {8*64*9216}')
        dma(a, SW3, vDP, sT2, sR5, L3P3L, 192, tag='b1')
    wo = lambda setA, tag: [lambda: woinit(False)] + w4(setA, 6, tag)
    wox = lambda setA, tag: [lambda: woinit(True)] + w4(setA, 'x', tag)
    batch1 = [p3late] + wo(True, 'b1') + wox(True, 'b1') + [w4init] + sum((w4(True, ch, 'b1') for ch in (0, 1, 2, 3, 4, 5, 7)), [])
    batch2 = w4(True, 8, 'b2') + w4(True, 9, 'b2') + w4(False, 0, 'b2') + w4(False, 1, 'b2')
    batch3 = sum((w4(False, ch, 'b3') for ch in (2, 3, 4, 5)), []) + wox(False, 'b3')
    batch4 = wo(False, 'b4') + [w4init] + sum((w4(False, ch, 'b4') for ch in (7, 8, 9)), [])
    def hload(slot0, late):
        for u in range(3):
            a(f's_add_u32 {s(sT4)}, {s(sC)}, {u+1}'); a(f's_and_b32 {s(sT4)}, {s(sT4)}, 3'); a(f's_lshl_b32 {s(sT4)}, {s(sT4)}, 13')
            a(f's_add_u32 {s(sT4)}, {s(sT4)}, {s(sH)}')
            if late: a(f's_add_u32 {s(sT4)}, {s(sT4)}, 4096')
            for n in range(4):
                a(f'buffer_load_dwordx4 {v(S4B[slot0 + 2*u] + 4*n, 4)}, {v(vL16)}, {srd(SWS)}, {s(sT4)} offen offset:{n*1024} sc1')
    def early_loads():
        hload(4, False)
        a(f's_add_u32 {s(sT4)}, {s(sH)}, 32768')
        for n in range(4):
            a(f'buffer_load_dwordx4 {v(S4B[10] + 4*n, 4)}, {v(vL16)}, {srd(SWS)}, {s(sT4)} offen offset:{n*1024} sc1')
        if cfg.no_a:
            for r in range(20): a(f'v_mov_b32 {v(S4B[12] + r)}, 0')
        else:
            a(f's_sub_u32 {s(sT4)}, {s(sE)}, {MB_E}'); a(f's_mul_i32 {s(sT4)}, {s(sT4)}, 10'); a(f's_add_u32 {s(sT4)}, {s(sT4)}, {WS_O + 1024}')
            for n in range(5):
                if n == 0:
                    a(f's_sub_u32 {s(sT0)}, {s(sT4)}, 1024')
                    a(f'buffer_load_dwordx4 {v(S4B[12], 4)}, {v(vL16)}, {srd(SWS)}, {s(sT0)} offen sc1')
                else:
                    a(f'buffer_load_dwordx4 {v(S4B[12] + 4*n, 4)}, {v(vL16)}, {srd(SWS)}, {s(sT4)} offen offset:{(n-1)*1024} sc1')
    def oddfix():
        for n in range(2):
            b = S4B[10 + n]
            a(f'v_swap_b32 {v(b+2)}, {v(b+4)}'); a(f'v_swap_b32 {v(b+3)}, {v(b+5)}')
    def steps4(tiles, acc0, setA, slots, first):
        St = []
        for sl in slots:
            for n, (what, p, eta) in enumerate(tiles):
                ar = Od if what == 'odd' else (Lo, Hi)[eta]
                rd = []
                for h in range(1 if sl == 14 else 2):
                    ch, rb = s4_rb(sl, h)
                    if setA: ad = A4CH[ch] + rb*2560 + (2048 if what == 'odd' else p*1024)
                    else: ad = B4CH[ch] + rb*2048 + (p - 2)*1024
                    rd.append((ar, ad))
                def mf(fr, sl=sl, n=n):
                    k16 = sl == 14
                    return [(lambda i=i: mfma(a, acc0(n, i), fr, S4B[sl] + (2 if k16 else 4)*i, None if sl == first else acc0(n, i), k16)) for i in range(2)]
                St.append((rd, mf))
        return St
    accA4 = lambda n, i: ACC4O + 4*i if n == 0 else ACC4 + 16*((n-1)//2) + 8*i + 4*((n-1) % 2)
    A4a = steps4(TA, accA4, True, range(0, 8), 0)
    A4b = steps4(TA, accA4, True, range(8, 21), 0)
    B4a = steps4([('p', 2, 0), ('p', 2, 1)], lambda n, i: ACC4 + 8*i + 4*n, False, range(21), 0)
    B4b = steps4([('p', 3, 0), ('p', 3, 1)], lambda n, i: ACC4 + 16 + 8*i + 4*n, False, range(21), 0)
    def pstore(acc, unit, t):
        run(pack(a, t, acc, 4))
        a(f's_add_u32 {s(sT4)}, {s(sP)}, {unit*8192}')
        a(f'buffer_store_dwordx4 {v(t,4)}, {v(vL16)}, {srd(SWS)}, {s(sT4)} offen sc1', tag='ps')
    def pflag(stage):
        a.wait_vm_tag('ps')
        a(f's_add_u32 {s(sT4)}, {s(sR3)}, {s(sW)}'); a(f's_lshl_b32 {s(sT4)}, {s(sT4)}, 5'); a(f's_add_u32 {s(sT4)}, {s(sT4)}, {s(sJ)}')
        a(f's_lshl_b32 {s(sT4)}, {s(sT4)}, 2'); a(f's_add_u32 {s(sT4)}, {s(sT4)}, {MB_P + stage*32}')
        flag_write(a, vL16, sT4, 1, vPOLL)
    def E4a():
        for u in range(4): pstore(ACC4 + 8*u, u, vTMP + 4*(u & 1))
        pstore(ACC4O, 8, vTMP)
    def b3b_pre():
        cs_read(CS3, 6, 2)
        for r in range(4): a(f'v_mov_b32 {v(ONE3+r)}, 0x3f803f80')
        ebox(); poll_issue(a, ONE3 + 4, ONE3 + 5, sT5, M1)
    def b3b_post():
        ebox(); poll_check(a, ONE3 + 4, ONE3 + 5, sT5, M1)
        early_loads()
    def late():
        ebox(); poll(a, vPOLL, vTMP, sT5, 0xF00); hload(15, True)

    stamp(a, 7)
    if not Y:
        R.block(A3); barrier(a)
        stamp(a, 8)
        n = R.prefetch(B3a, 4); run(G3a()); barrier(a)
        stamp(a, 9)
        R.block(B3a, n, hooks={20: lambda: eflag(0)})
        n = R.prefetch(B3b, 4); run(gelu_pair(ACCB, 2, CS)); barrier(a)
        stamp(a, 10)
        b3b_pre(); R.block(B3b, n); b3b_post()
        n = R.prefetch(A4a, 4); run(gelu_pair(ACCB, 3, CS3, read=False)); barrier(a)
        stamp(a, 11)
        R.block(A4a, n, hooks={20: lambda: eflag(8)})
        n = R.prefetch(A4b, 5); late(); barrier(a)
        stamp(a, 12)
        R.block(A4b, n, hooks={5: oddfix})
        E4a(); pflag(0); barrier(a)
        stamp(a, 13)
    else:
        n = R.prefetch(A3, 5); barrier(a)
        stamp(a, 8)
        R.block(A3, n); barrier(a)
        stamp(a, 9)
        n = R.prefetch(B3a, 4); interleave(a, G3a(), batch1, start=2)
        R.block(B3a, n); eflag(0); a.wait_vm_tag('b1'); barrier(a)
        stamp(a, 10)
        n = R.prefetch(B3b, 4); interleave(a, gelu_pair(ACCB, 2, CS), batch2, start=1)
        b3b_pre(); R.block(B3b, n); a.wait_vm_tag('b2'); barrier(a)
        stamp(a, 11)
        b3b_post()
        n = R.prefetch(A4a, 4); interleave(a, gelu_pair(ACCB, 3, CS3, read=False), batch3)
        R.block(A4a, n, hooks={20: lambda: eflag(8)}); barrier(a)
        stamp(a, 12)
        n = R.prefetch(A4b, 5); late(); run(batch4)
        R.block(A4b, n, hooks={5: oddfix})
        a.wait_vm_tag('b3', 'b4'); barrier(a)
        stamp(a, 13)
        E4a(); pflag(0)
    R.block(B4a)
    n = R.prefetch(B4b, 5)
    pstore(ACC4, 4, vTMP); pstore(ACC4 + 8, 5, vTMP + 4)
    R.block(B4b, n, hooks={24: lambda: pflag(1)})
    pstore(ACC4 + 16, 6, vTMP); pstore(ACC4 + 24, 7, vTMP + 4)
    stamp(a, 14)
    sU = sR0
    def unit_loads(odd):
        a(f's_lshl_b32 {s(sT0)}, {s(sMI)}, 3'); a(f's_add_u32 {s(sT0)}, {s(sT0)}, {s(sJ)}'); a(f's_lshl_b32 {s(sT0)}, {s(sT0)}, 1')
        if not odd:
            a(f's_and_b32 {s(sT1)}, {s(sU)}, 1'); a(f's_add_u32 {s(sT0)}, {s(sT0)}, {s(sT1)}')
        a(f's_mul_i32 {s(sT0)}, {s(sT0)}, 18432')
        if not odd:
            a(f's_lshr_b32 {s(sT1)}, {s(sU)}, 1'); a(f's_lshl_b32 {s(sT2)}, {s(sC)}, 2'); a(f's_add_u32 {s(sT1)}, {s(sT1)}, {s(sT2)}')
            a(f's_lshl_b32 {s(sT2)}, {s(sT1)}, 10'); a(f's_add_u32 {s(sT2)}, {s(sT2)}, {s(sT0)}'); a(f's_add_u32 {s(sT2)}, {s(sT2)}, {WS_X1}')
            a(f'buffer_load_dwordx4 {v(32,4)}, {v(vL16)}, {srd(SWS)}, {s(sT2)} offen sc1')
            a(f's_lshl_b32 {s(sT1)}, {s(sT1)}, 6'); a(f's_add_u32 {s(sR1)}, {s(sT1)}, {s(sT0)}')
        else:
            a(f's_lshl_b32 {s(sT2)}, {s(sC)}, 9'); a(f's_add_u32 {s(sT2)}, {s(sT2)}, {s(sT0)}'); a(f's_add_u32 {s(sT2)}, {s(sT2)}, {WS_X1 + 16384}')
            a(f'v_lshlrev_b32 {v(41)}, 3, {v(vLANE)}')
            a(f'buffer_load_dwordx2 {v(32,2)}, {v(41)}, {srd(SWS)}, {s(sT2)} offen sc1')
            a(f's_add_u32 {s(sT2)}, {s(sT2)}, 18432')
            a(f'buffer_load_dwordx2 {v(34,2)}, {v(41)}, {srd(SWS)}, {s(sT2)} offen sc1')
            a(f's_lshl_b32 {s(sT1)}, {s(sC)}, 5'); a(f's_add_u32 {s(sT1)}, {s(sT1)}, 1024'); a(f's_add_u32 {s(sR1)}, {s(sT1)}, {s(sT0)}')
        dl = 18432 if odd else 32
        a(f'v_and_b32 {v(41)}, 15, {v(vLANE)}'); a(f'v_mul_u32_u24 {v(40)}, 1152, {v(41)}')
        a(f'v_lshrrev_b32 {v(41)}, 4, {v(vLANE)}'); a(f'v_lshl_add_u32 {v(42)}, {v(41)}, 3, {v(40)}')
        a(f'buffer_load_dwordx2 {v(36,2)}, {v(42)}, {srd(SX)}, {s(sR1)} offen')
        a(f's_add_u32 {s(sT2)}, {s(sR1)}, {dl}')
        a(f'buffer_load_dwordx2 {v(38,2)}, {v(42)}, {srd(SX)}, {s(sT2)} offen')
        a(f'v_lshrrev_b32 {v(42)}, 1, {v(41)}'); a(f'v_lshl_add_u32 {v(40)}, {v(42)}, 4, {v(40)}')
        a(f'v_and_b32 {v(41)}, 1, {v(41)}'); a(f'v_mul_u32_u24 {v(41)}, {dl}, {v(41)}'); a(f'v_add_u32 {v(40)}, {v(40)}, {v(41)}')
    def unit_final(stage_expr):
        a(f's_add_u32 {s(sT0)}, {s(sR3)}, {s(sJ)}')
        a(f's_lshl_b32 {s(sT5)}, {s(sT0)}, 7'); a(f's_add_u32 {s(sT5)}, {s(sT5)}, {MB_P}')
        if stage_expr: a(f's_add_u32 {s(sT5)}, {s(sT5)}, {stage_expr}')
        a(f's_mul_i32 {s(sT4)}, {s(sT0)}, 73728'); a(f's_lshl_b32 {s(sT1)}, {s(sU)}, 13'); a(f's_add_u32 {s(sT4)}, {s(sT4)}, {s(sT1)}')
        a(f's_add_u32 {s(sT4)}, {s(sT4)}, {WS_P}'); a(f's_add_u32 {s(sT3)}, {s(sT4)}, 4096')
        poll(a, vPOLL, vTMP, sT5, 0xFF)
        for n in range(8):
            a(f'buffer_load_dwordx4 {v(4*n,4)}, {v(vL16)}, {srd(SWS)}, {s(sT4 if n < 4 else sT3)} offen offset:{(n & 3)*1024} sc1')
        S_ = 44
        for r in range(4):
            a(f'v_lshlrev_b32 {v(S_+2*r)}, 16, {v(32+r)}'); a(f'v_and_b32 {v(S_+2*r+1)}, 0xffff0000, {v(32+r)}')
        for src in [36] + [4*n for n in range(8)]:
            for r in range(4):
                a(f'v_lshlrev_b32 {v(52+r)}, 16, {v(src+r)}'); a(f'v_and_b32 {v(src+r)}, 0xffff0000, {v(src+r)}')
            for r in range(4):
                a(f'v_add_f32 {v(S_+2*r)}, {v(S_+2*r)}, {v(52+r)}'); a(f'v_add_f32 {v(S_+2*r+1)}, {v(S_+2*r+1)}, {v(src+r)}')
        run(pack(a, 56, S_, 4))
        a(f'v_permlane16_swap_b32 {v(56)}, {v(58)}'); a(f'v_permlane16_swap_b32 {v(57)}, {v(59)}')
        a(f'buffer_store_dwordx4 {v(56,4)}, {v(40)}, {srd(SOUT)}, {s(sR1)} offen')
    if Y:
        a(f's_mov_b32 {s(sU)}, {s(sTG)}')
        unit_loads(False); pflag(2); unit_final(None)
    else:
        pflag(2)
        sk = a.newlabel('noodd')
        a(f's_cmp_lg_u32 {s(sTG)}, 0'); a(f's_cbranch_scc1 {sk}')
        a(f's_mov_b32 {s(sU)}, 8'); unit_loads(True); unit_final(None)
        a.label(sk); a.nop(2)
        a(f's_xor_b32 {s(sU)}, {s(sTG)}, 6')
        a(f's_cmp_lt_u32 {s(sTG)}, 2'); a(f's_cselect_b32 {s(sR2)}, 64, 32')
        unit_loads(False); unit_final(s(sR2))
    stamp(a, 15)
    if cfg.probe == 'fix':
        lp = a.newlabel('hold'); a.label(lp)
        a('s_memrealtime s[98:99]'); a.wait_all(vm=False)
        a('s_sub_u32 s98, s98, s96'); a('s_cmp_lt_u32 s98, 10000'); a(f's_cbranch_scc1 {lp}')
    if cfg.stamps:
        a(f'v_mov_b32 {v(0)}, 0')
        for i in range(24):
            a(f'v_mov_b32 {v(1)}, {s(sSTAMP+i)}'); a(f'v_cmp_eq_u32 vcc, {i}, {v(vLANE)}'); a(f'v_cndmask_b32 {v(0)}, {v(0)}, {v(1)}, vcc')
        a(f's_lshl_b32 {s(sT0)}, s2, 3'); a(f's_add_u32 {s(sT0)}, {s(sT0)}, {s(sW)}'); a(f's_lshl_b32 {s(sT0)}, {s(sT0)}, 7')
        a(f's_add_u32 {s(sT0)}, {s(sT0)}, {WS_STAMP}')
        a(f'v_lshlrev_b32 {v(1)}, 2, {v(vLANE)}'); setexec(a, 0xffffffff)
        a(f'buffer_store_dword {v(0)}, {v(1)}, {srd(SWS)}, {s(sT0)} offen')
    a('s_endpgm')

def softmax_unit(a, P, cexp, EP, EN, OUT, T):
    L = []
    E = lambda t: L.append(lambda: a(t))
    mx, mn, s0, s1, s2, s3 = T, T+1, T+2, T+3, T+4, T+5
    E(f'v_max3_f32 {v(mx)}, {v(P)}, {v(P+1)}, {v(P+2)}'); E(f'v_min3_f32 {v(mn)}, {v(P)}, {v(P+1)}, {v(P+2)}')
    for r in range(3, 17, 2):
        E(f'v_max3_f32 {v(mx)}, {v(mx)}, {v(P+r)}, {v(P+r+1)}'); E(f'v_min3_f32 {v(mn)}, {v(mn)}, {v(P+r)}, {v(P+r+1)}')
    E(f'v_max_f32 {v(mx)}, {v(mx)}, {v(P+17)}'); E(f'v_min_f32 {v(mn)}, {v(mn)}, {v(P+17)}')
    E(f'v_mul_f32 {v(mx)}, {v(mx)}, {v(cexp)}'); E(f'v_mul_f32 {v(mn)}, {v(mn)}, {v(cexp)}')
    for r in range(18): E(f'v_fma_f32 {v(EP+r)}, {v(P+r)}, {v(cexp)}, -{v(mx)}')
    for r in range(18):
        E(f'v_exp_f32 {v(EP+r)}, {v(EP+r)}'); E(f'v_fma_f32 {v(EN+r)}, -{v(P+r)}, {v(cexp)}, {v(mn)}')
    for r in range(18):
        E(f'v_exp_f32 {v(EN+r)}, {v(EN+r)}')
        if r == 0: E(f'v_add_f32 {v(s0)}, {v(EP)}, {v(EP+1)}')
        elif r == 1: E(f'v_add_f32 {v(s1)}, {v(EP+2)}, {v(EP+3)}')
        elif r < 16: E(f'v_add_f32 {v((s0, s1)[r & 1])}, {v((s0, s1)[r & 1])}, {v(EP+r+2)}')
        elif r == 16: E(f'v_add_f32 {v(s0)}, {v(s0)}, {v(s1)}')
    E(f'v_rcp_f32 {v(s0)}, {v(s0)}')
    E(f'v_add_f32 {v(s2)}, {v(EN)}, {v(EN+1)}'); E(f'v_add_f32 {v(s3)}, {v(EN+2)}, {v(EN+3)}')
    for r in range(4, 18): E(f'v_add_f32 {v((s2, s3)[r & 1])}, {v((s2, s3)[r & 1])}, {v(EN+r)}')
    E(f'v_add_f32 {v(s2)}, {v(s2)}, {v(s3)}'); E(f'v_rcp_f32 {v(s2)}, {v(s2)}')
    for r in range(18): E(f'v_mul_f32 {v(EP+r)}, {v(EP+r)}, {v(s0)}')
    L += pack(a, OUT, EP, 9)
    for r in range(18): E(f'v_mul_f32 {v(EN+r)}, {v(EN+r)}, {v(s2)}')
    L += pack(a, OUT + 9, EN, 9)
    return L

def front_A_stub(a, Y):
    kargs_ready(a)
    get_nonce_issue(a, 200); get_nonce_check(a, 200)
    if not Y:
        e2_poll(a); x_loads(a); s3_addr_init(a); barrier(a)
    else:
        run(w3_dma_list(a)); e2_poll(a); a.wait_all(lg=False); barrier(a); x_loads(a); cs_w3(a); s3_addr_init(a)

def front_A(a, Y):
    if cfg.no_a: return front_A_stub(a, Y)
    sMT, sHG = sR0, sR1
    LPHI, LST, LCK, SL0, SLOT = 0, 4096, 5120, 24576, 34816
    LPH, LV, LWQ, LCQ = 6144, 142336, 59392, LSC2
    EVEN = 0x0000FFFF0000FFFF
    dX, dW, aA, aB, t0, t1, t2, vN = 224, 225, 228, 229, 230, 231, 232, 233
    if Y: XR, AF, ACC = 0, 144, 184
    else: BF, AF, CF, ACC, CSA, GR, ONES, aC, PH = 0, 16, 56, 80, 120, 132, 148, 234, 152
    a(f's_lshr_b32 {s(sT0)}, {s(sXC)}, 1'); a(f's_lshl_b32 {s(sT0)}, {s(sT0)}, 2'); a(f's_bfe_u32 {s(sT1)}, {s(sIDX)}, 0x20002')
    a(f's_add_u32 {s(sMT)}, {s(sT0)}, {s(sT1)}')
    a(f's_and_b32 {s(sT0)}, {s(sXC)}, 1'); a(f's_lshl_b32 {s(sT0)}, {s(sT0)}, 2'); a(f's_and_b32 {s(sT1)}, {s(sIDX)}, 3')
    a(f's_add_u32 {s(sHG)}, {s(sT0)}, {s(sT1)}')
    pat_x(a, dX, t0, t1)
    a(f's_lshl_b32 {s(sT0)}, {s(sMT)}, 3'); a(f's_add_u32 {s(sT0)}, {s(sT0)}, {s(sW)}'); a(f's_mul_i32 {s(sT0)}, {s(sT0)}, 18432')
    a(f'v_add_u32 {v(dX)}, {s(sT0)}, {v(dX)}')
    a(f's_lshl_b32 {s(sR2)}, {s(sW)}, 10')
    a(f's_mul_i32 {s(sR3)}, {s(sW)}, 2304')
    a(f's_lshr_b32 {s(sT0)}, {s(sTG)}, 1'); a(f's_lshl_b32 {s(sT0)}, {s(sT0)}, 5')
    a(f's_and_b32 {s(sT1)}, {s(sTG)}, 1'); a(f's_lshl_b32 {s(sT1)}, {s(sT1)}, 2'); a(f's_add_u32 {s(sT0)}, {s(sT0)}, {s(sT1)}')
    a(f's_mul_i32 {s(sT0)}, {s(sT0)}, 3456'); a(f's_mul_i32 {s(sT1)}, {s(sHG)}, 144'); a(f's_add_u32 {s(sT0)}, {s(sT0)}, {s(sT1)}')
    for i in range(3):
        a(f'v_add_u32 {v(t0)}, {48*i}, {v(vLANE)}')
        a(f'v_mul_u32_u24 {v(t1)}, 7282, {v(t0)}'); a(f'v_lshrrev_b32 {v(t1)}, 16, {v(t1)}')
        a(f'v_mul_u32_u24 {v(t2)}, 9, {v(t1)}'); a(f'v_sub_u32 {v(t0)}, {v(t0)}, {v(t2)}')
        a(f'v_and_b32 {v(dW+i)}, 9, {v(t1)}')
        a(f'v_and_b32 {v(t2)}, 2, {v(t1)}'); a(f'v_lshl_add_u32 {v(dW+i)}, {v(t2)}, 3, {v(dW+i)}')
        a(f'v_bfe_u32 {v(t2)}, {v(t1)}, 2, 1'); a(f'v_lshl_add_u32 {v(dW+i)}, {v(t2)}, 1, {v(dW+i)}')
        a(f'v_mul_u32_u24 {v(dW+i)}, 3456, {v(dW+i)}'); a(f'v_lshl_add_u32 {v(dW+i)}, {v(t0)}, 4, {v(dW+i)}')
        a(f'v_add_u32 {v(dW+i)}, {s(sT0)}, {v(dW+i)}')
    def wdma(goff, lds, tag):
        a(f's_mov_b32 {s(sT2)}, {goff}')
        setexec(a, (0xffff << 32) | 0xffffffff)
        for i in range(3): dma(a, SQKV, dW + i, sT2, sR3, lds + 768*i, 0, tag=tag)
        setexec(a, -1)
    def load1(G):
        b = SL0 + (G % 4)*SLOT
        def fx():
            a(f's_mov_b32 {s(sT2)}, {G*128}')
            dma(a, SX, dX, sT2, sR2, b + 18432, 0, tag=('g', G)); dma(a, SX, dX, sT2, sR2, b + 18432 + 8192, 64, tag=('g', G))
        return [fx, lambda: wdma(G*64*3456 + (2304 if Y else 1152), b, ('g', G))]
    def loadq(r):
        if r == 4 and Y: return []
        return [lambda: wdma((r*128 + (64 if Y else 0))*3456, LWQ + r*18432, 'wq')]
    kargs_ready(a)
    for G in range(4): run(load1(G))
    a(f'v_bfe_u32 {v(t0)}, {v(vLANE)}, 2, 1'); a(f'v_bfe_u32 {v(t1)}, {v(vLANE)}, 5, 1'); a(f'v_lshl_add_u32 {v(t0)}, {v(t1)}, 1, {v(t0)}')
    a(f'v_bfe_u32 {v(t1)}, {v(vLANE)}, 3, 2'); a(f'v_lshl_add_u32 {v(t0)}, {v(t1)}, 2, {v(t0)}')
    a(f'v_mul_u32_u24 {v(aA)}, 144, {v(t0)}')
    a(f'v_and_b32 {v(t0)}, 1, {v(vLANE)}'); a(f'v_lshl_add_u32 {v(aA)}, {v(t0)}, 5, {v(aA)}')
    a(f'v_bfe_u32 {v(t0)}, {v(vLANE)}, 1, 1'); a(f'v_mul_u32_u24 {v(t0)}, 72, {v(t0)}'); a(f'v_add_u32 {v(aA)}, {v(aA)}, {v(t0)}')
    pat_xread(a, aB, t0, t1)
    a(f's_lshl_b32 {s(sT0)}, {s(sTG)}, 11'); a(f'v_add_u32 {v(aB)}, {s(sT0)}, {v(aB)}')
    RA, RB = AddrReg(aA), AddrReg(aB)
    if not Y:
        a(f's_lshl_b32 {s(sT0)}, {s(sTG)}, 3'); a(f'v_add_u32 {v(aC)}, {s(sT0)}, {v(aA)}')
        a(f's_and_b32 {s(sT0)}, {s(sTG)}, 1'); a(f's_mul_i32 {s(sT0)}, {s(sT0)}, 9216'); a(f's_add_u32 {s(sT0)}, {s(sT0)}, 32')
        a(f'v_add_u32 {v(aC+1)}, {s(sT0)}, {v(aA)}')
        RC0, RC1 = AddrReg(aC), AddrReg(aC + 1)
        for r in range(4): a(f'v_mov_b32 {v(ONES+r)}, 0x3f803f80')
        a(f's_lshl_b32 {s(sT0)}, {s(sTG)}, 6'); a(f's_mul_i32 {s(sT1)}, {s(sHG)}, 2592')
        for i in range(3):
            a(f'v_add_u32 {v(t0)}, {s(sT0)}, {v(vLANE)}')
            if i: a(f'v_add_u32 {v(t0)}, {256*i}, {v(t0)}')
            a(f'v_lshlrev_b32 {v(t1)}, 2, {v(t0)}')
            a(f'buffer_load_dword {v(PH+i)}, {v(t1)}, {srd(SPHI)}, {s(sT1)} offen')
            ad = PH + 3 + i
            a(f'v_mul_u32_u24 {v(t1)}, 7282, {v(t0)}'); a(f'v_lshrrev_b32 {v(t1)}, 16, {v(t1)}')
            a(f'v_mul_u32_u24 {v(t2)}, 9, {v(t1)}'); a(f'v_sub_u32 {v(ad)}, {v(t0)}, {v(t2)}'); a(f'v_lshlrev_b32 {v(ad)}, 2, {v(ad)}')
            a(f'v_mul_u32_u24 {v(t2)}, 3641, {v(t1)}'); a(f'v_lshrrev_b32 {v(t2)}, 16, {v(t2)}')
            a(f'v_mul_u32_u24 {v(t0)}, 18, {v(t2)}'); a(f'v_sub_u32 {v(t1)}, {v(t1)}, {v(t0)}')
            a(f'v_mul_u32_u24 {v(t0)}, 800, {v(t2)}'); a(f'v_add_u32 {v(ad)}, {v(ad)}, {v(t0)}')
            a(f'v_and_b32 {v(t2)}, 1, {v(t2)}'); a(f'v_lshl_add_u32 {v(t1)}, {v(t2)}, 1, {v(t1)}')
            a(f'v_add_u32 {v(t0)}, 16, {v(t1)}'); a(f'v_subrev_u32 {v(t1)}, 2, {v(t1)}'); a(f'v_min_u32 {v(t1)}, {v(t1)}, {v(t0)}')
            a(f'v_mul_u32_u24 {v(t1)}, 40, {v(t1)}'); a(f'v_add_u32 {v(ad)}, {v(ad)}, {v(t1)}')
        a(f's_lshl_b32 {s(sT0)}, {s(sTG)}, 10'); a(f'v_add_u32 {v(t0)}, {s(sT0)}, {v(vL16)}')
        for r in range(4): a(f'v_mov_b32 {v(GR+r)}, 0')
        a(f'ds_write_b128 {v(t0)}, {v(GR,4)}')
        a.wait_all(vm=False)
    def phiwrite():
        a(f'ds_write_b32 {v(PH+3)}, {v(PH)}'); a(f'ds_write_b32 {v(PH+4)}, {v(PH+1)}')
        a(f's_lshl_b32 {s(sT0)}, {s(sTG)}, 6'); a(f'v_add_u32 {v(t0)}, {s(sT0)}, {v(vLANE)}')
        a(f'v_cmp_gt_u32 vcc, 136, {v(t0)}')
        a(f'v_cndmask_b32 {v(PH+5)}, {v(PH+4)}, {v(PH+5)}, vcc'); a(f'v_cndmask_b32 {v(PH+2)}, {v(PH+1)}, {v(PH+2)}, vcc')
        a(f'ds_write_b32 {v(PH+5)}, {v(PH+2)}')
    def reads1(pos):
        b = SL0 + ((pos // 2) % 4)*SLOT
        xb = b + 18432 + (pos & 1)*8192; br = XR + 8*pos if Y else BF + 8*(pos & 1)
        L = [lambda: dsr(a, 4, br, RB, xb), lambda: dsr(a, 4, br + 4, RB, xb + 1024)]
        wb = b + 2*(pos & 1)*2304
        for i in range(5):
            for h in range(2):
                L.append(lambda i=i, h=h: tr(a, AF + 20*(pos & 1) + 4*i + 2*h, RA, wb + (9216 if Y else 0) + h*2304 + 8*i))
        if not Y:
            for n, (ar, o) in enumerate(((RC0, 0), (RC0, 9216), (RC1, 0))):
                for h in range(2):
                    L.append(lambda n=n, ar=ar, o=o, h=h: tr(a, CF + 12*(pos & 1) + 4*n + 2*h, ar, wb + o + h*2304))
        return L
    def mf1(pos):
        z = pos == 0; A_ = AF + 20*(pos & 1); B_ = XR + 8*pos if Y else BF + 8*(pos & 1)
        M = lambda d, x, y: (lambda: mfma(a, d, x, y, None if z else d))
        L = []
        for i in range(5): L += [M(ACC + 4*i, A_ + 4*i, B_), M(ACC + 20 + 4*i, A_ + 4*i, B_ + 4)]
        if not Y:
            L += [M(CSA + 4*n, CF + 12*(pos & 1) + 4*n, ONES) for n in range(3)]
            L += [M(GR, B_, B_), M(GR+4, ONES, B_), M(GR+8, B_+4, B_+4), M(GR+12, ONES, B_+4)]
        return L
    def refill1(G):
        L = []
        if G + 3 < 9: L = load1(G + 3)
        elif G == 6: L = loadq(0)
        elif G == 7: L = loadq(1) + loadq(2)
        else: L = loadq(3) + loadq(4)
        if G == 4 and not Y: L.append(phiwrite)
        if G == 5: L.append(lambda: get_nonce_issue(a, vN))
        return L
    stamp(a, 0)
    front_loop(a, reads1, mf1, refill1, lambda G: ('g', G))
    stamp(a, 1)
    if Y: ST, CSV, T, PKB = 144, 148, 168, 172
    else: ST, CSV, T, PKB = 0, 4, 24, 32
    a(f'v_and_b32 {v(t2)}, 15, {v(vLANE)}'); a(f'v_lshlrev_b32 {v(t2)}, 3, {v(t2)}')
    a(f's_lshl_b32 {s(sT0)}, {s(sTG)}, 8'); a(f's_add_u32 {s(sT0)}, {s(sT0)}, {LST}'); a(f'v_add_u32 {v(t2)}, {s(sT0)}, {v(t2)}')
    a(f'v_and_b32 {v(t1)}, 48, {v(vLANE)}')
    if not Y:
        for i in range(2):
            diag_select(a, T, GR + 8*i, t0)
            mean_var(a, GR + 8*i + 4, T, ST + 2*i, T + 1)
            a(f'v_add_f32 {v(T+1)}, {hx(f2u(1e-5))}, {v(T+1)}'); a(f'v_rsq_f32 {v(ST+2*i+1)}, {v(T+1)}')
        setexec(a, DIAG)
        a(f'ds_write_b64 {v(t2)}, {v(ST,2)}'); a(f'ds_write_b64 {v(t2)}, {v(ST+2,2)} offset:128')
        setexec(a, -1)
        a(f's_lshl_b32 {s(sT0)}, {s(sTG)}, 6'); a(f'v_add_u32 {v(t0)}, {s(sT0)}, {v(t1)}')
        a(f's_and_b32 {s(sT0)}, {s(sTG)}, 1'); a(f's_mul_i32 {s(sT0)}, {s(sT0)}, 320'); a(f'v_add_u32 {v(T)}, {s(sT0)}, {v(t1)}')
        setexec(a, 0x0001000100010001)
        a(f'ds_write_b128 {v(t0)}, {v(CSA,4)} offset:{LCK}'); a(f'ds_write_b128 {v(t0)}, {v(CSA+4,4)} offset:{LCK+320}')
        a(f'ds_write_b128 {v(T)}, {v(CSA+8,4)} offset:{LCK+256}')
        setexec(a, -1)
    a.wait_all(vm=False); barrier(a)
    a(f'ds_read_b64 {v(ST,2)}, {v(t2)}'); a(f'ds_read_b64 {v(ST+2,2)}, {v(t2)} offset:128')
    for i in range(5): a(f'ds_read_b128 {v(CSV+4*i,4)}, {v(t1)} offset:{LCK + (320 if Y else 0) + 64*i}')
    def phi_addr(d):
        a(f'v_bfe_u32 {v(t0)}, {v(vLANE)}, 4, 2'); a(f'v_and_b32 {v(d)}, 3, {v(vLANE)}')
        a(f'v_cmp_eq_u32 vcc, {v(t0)}, {v(d)}'); a(f'v_cndmask_b32 {v(t0)}, 4, {v(t0)}, vcc'); a(f'v_mul_u32_u24 {v(t0)}, 800, {v(t0)}')
        a(f'v_bfe_u32 {v(d)}, {v(vLANE)}, 2, 2'); a(f'v_mul_u32_u24 {v(d)}, 40, {v(d)}'); a(f'v_add_u32 {v(d)}, {v(d)}, {v(t0)}')
    def phi_frags(F, d):
        for i in range(5):
            for n in range(5): a(f'ds_read_b64_tr_b16 {v(F + 10*i + 2*n, 2)}, {v(d)} offset:{LPHI + n*160 + 8*i}')
    def canon(acc, cs, nm, dst, scale=None):
        s_mask = s(sM, 2)
        a(f's_mov_b32 {s(sM)}, 0xffff'); a(f's_mov_b32 {s(sM+1)}, 0xffff')
        for r in range(20): a(f'v_fmac_f32 {v(acc+r)}, {v(nm)}, {v(cs+r)}')
        for r in range(2): a(f'v_cndmask_b32 {v(acc+18+r)}, {v(acc+18+r)}, {v(acc+r)}, {s_mask}')
        if scale is not None:
            for r in range(2, 20): a(f'v_mul_f32 {v(acc+r)}, {v(acc+r)}, {v(scale)}')
        run(pack(a, dst, acc + 2, 9))
    def feature(F, B_, D):
        for n, (fo, bo, k16) in enumerate(((0, 0, False), (4, 4, False), (8, 8, True))):
            for i in range(5): mfma(a, D + 4*i, F + 10*i + fo, B_ + bo, None if n == 0 else D + 4*i, k16)
    def stage_addr(d32, d8, hstride, base32, base8):
        a(f'v_lshrrev_b32 {v(t0)}, 4, {v(vLANE)}'); a(f'v_mul_u32_u24 {v(t0)}, {hstride}, {v(t0)}')
        a(f's_lshl_b32 {s(sT0)}, {s(sTG)}, 5'); a(f'v_and_or_b32 {v(d8)}, {v(vLANE)}, 15, {s(sT0)}')
        a(f'v_lshl_add_u32 {v(d32)}, {v(d8)}, 5, {v(t0)}'); a(f'v_lshl_add_u32 {v(d8)}, {v(d8)}, 3, {v(t0)}')
        a(f'v_add_u32 {v(d32)}, {base32}, {v(d32)}'); a(f'v_add_u32 {v(d8)}, {base8}, {v(d8)}')
    get_nonce_check(a, vN)
    if not Y:
        F, D, EP, OUT = 120, 172, 52, 32
        phi_addr(t2); phi_frags(F, t2)
        for i in range(2):
            canon(ACC + 20*i, CSV, ST + 2*i, PKB + 10*i); a(f'v_mov_b32 {v(PKB + 10*i + 9)}, 0')
            a(f'v_mul_f32 {v(ST+2*i+1)}, {hx(f2u(LOG2E))}, {v(ST+2*i+1)}')
        for i in range(2): feature(F, PKB + 10*i, D + 20*i)
        stage_addr(t1, t2, 9216, LPH, LPH + 8192)
        for i in range(2):
            O_ = (80, 100)[i]
            run(softmax_unit(a, D + 20*i, ST + 2*i + 1, EP, D + 20*i, O_, T))
            for n in range(4): a(f'ds_write_b128 {v(t1)}, {v(O_+4*n,4)} offset:{i*512 + (n >> 1)*4096 + (n & 1)*16}')
            a(f'ds_write_b64 {v(t2)}, {v(O_+16,2)} offset:{i*128}')
        a.wait_vm_tag('wq'); a.wait_all(vm=False);
        stamp(a, 2)
        barrier(a)
        a(f'v_lshlrev_b32 {v(t0)}, 3, {v(vLANE)}'); a(f'v_and_b32 {v(t1)}, 60, {v(vLANE)}'); a(f'v_lshlrev_b32 {v(t1)}, 1, {v(t1)}')
        a(f's_mul_i32 {s(sT0)}, {s(sTG)}, 9216'); a(f's_add_u32 {s(sT0)}, {s(sT0)}, {LPH}')
        a(f's_mul_i32 {s(sT1)}, {s(sTG)}, 5120'); a(f's_add_u32 {s(sT1)}, {s(sT1)}, {LV}')
        p32, p8, w32, w8 = 24, 25, 26, 27
        a(f'v_add_u32 {v(p32)}, {s(sT0)}, {v(t0)}'); a(f'v_add_u32 {v(p8)}, {s(sT0)}, {v(t1)}')
        a(f'v_add_u32 {v(w32)}, {s(sT1)}, {v(t0)}'); a(f'v_add_u32 {v(w8)}, {s(sT1)}, {v(t1)}')
        KF, KA = 32, 112
        for ks in range(4):
            b = KF + 20*ks
            for h in range(2):
                a(f'ds_read_b64_tr_b16 {v(b+12+2*h,2)}, {v(w32)} offset:{ks*1024 + h*512}')
                a(f'ds_read_b64_tr_b16 {v(b+16+2*h,2)}, {v(w8)} offset:{4096 + ks*256 + h*128}')
                a(f'ds_read_b64_tr_b16 {v(b+2*h,2)}, {v(p32)} offset:{ks*1024 + h*512}')
                a(f'ds_read_b64_tr_b16 {v(b+4+2*h,2)}, {v(p32)} offset:{4096 + ks*1024 + h*512}')
                a(f'ds_read_b64_tr_b16 {v(b+8+2*h,2)}, {v(p8)} offset:{8192 + ks*256 + h*128}')
        a(f'v_lshrrev_b32 {v(t0)}, 4, {v(vLANE)}'); a(f'v_mul_u32_u24 {v(t0)}, 320, {v(t0)}')
        a(f'v_and_b32 {v(t1)}, 15, {v(vLANE)}'); a(f'v_lshl_add_u32 {v(t0)}, {v(t1)}, 4, {v(t0)}')
        a(f's_lshl_b32 {s(sR2)}, {s(sHG)}, 2'); a(f's_add_u32 {s(sR2)}, {s(sR2)}, {s(sTG)}')
        a(f's_lshl_b32 {s(sT0)}, {s(sR2)}, 4'); a(f's_add_u32 {s(sT0)}, {s(sT0)}, {s(sMT)}'); a(f's_mul_i32 {s(sT4)}, {s(sT0)}, 3072')
        a(f's_add_u32 {s(sT4)}, {s(sT4)}, {WS_KVP}')
        for ks in range(4):
            b = KF + 20*ks
            for tau in range(3):
                for dl in range(2):
                    d = KA + 8*tau + 4*dl
                    mfma(a, d, b + 4*tau, b + 12 + 4*dl, None if ks == 0 else d)
        for tau, dl, mk in ((0, 0, -1), (1, 0, -1), (2, 0, 0xFFFF), (2, 1, 0xF), (0, 1, 0x000F000F000F000F), (1, 1, None)):
            if mk is not None: setexec(a, mk)
            a(f'buffer_store_dwordx4 {v(KA + 8*tau + 4*dl, 4)}, {v(t0)}, {srd(SWS)}, {s(sT4)} offen offset:{tau*1280 + dl*256} sc1', tag='kp')
        setexec(a, -1)
        RQ0, RQ1 = RC0, RA
        CQ = 140
        for r in range(4): a(f'v_mov_b32 {v(ONES+r)}, 0x3f803f80')
        def qreads(k):
            b = KF + 8*(k % 4)
            for h in range(2):
                tr(a, b + 2*h, RQ0, LWQ + (2*k + h)*2304); tr(a, b + 4 + 2*h, RQ1, LWQ + (2*k + h)*2304 + 32)
        for k in range(3): qreads(k)
        for k in range(18):
            if k + 3 < 18: qreads(k + 3)
            b = KF + 8*(k % 4)
            mfma(a, CQ, b, ONES, None if k == 0 else CQ); mfma(a, CQ + 4, b + 4, ONES, None if k == 0 else CQ + 4)
        a(f'v_and_b32 {v(t1)}, 48, {v(vLANE)}'); a(f'v_add_u32 {v(t1)}, {LCQ}, {v(t1)}')
        a(f's_lshl_b32 {s(sT0)}, {s(sTG)}, 6'); a(f'v_add_u32 {v(t2)}, {s(sT0)}, {v(t1)}')
        setexec(a, 0x0001000100010001)
        a(f'ds_write_b128 {v(t2)}, {v(CQ,4)}'); a(f'ds_write_b128 {v(t1)}, {v(CQ+4,4)} offset:256')
        setexec(a, -1)
        a(f'v_lshlrev_b32 {v(t0)}, 7, {v(vLANE)}')
        a(f's_lshl_b32 {s(sT0)}, {s(sR2)}, 11'); a(f's_add_u32 {s(sT0)}, {s(sT0)}, {MB_K1}')
        a(f's_lshl_b32 {s(sT1)}, {s(sMT)}, 2'); a(f's_add_u32 {s(sT4)}, {s(sT0)}, {s(sT1)}')
        a(f's_lshl_b32 {s(sT1)}, {s(sMT)}, 7'); a(f's_add_u32 {s(sT5)}, {s(sT0)}, {s(sT1)}')
        a.wait_vm_tag('kp')
        flag_write(a, t0, sT4, 0x7FFF, t1)
        a.wait_all(vm=False)
        stamp(a, 3)
        barrier(a)
        sk = a.newlabel('nored')
        a(f's_cmp_eq_u32 {s(sMT)}, 15'); a(f's_cbranch_scc1 {sk}')
        a(f's_mul_i32 {s(sT0)}, {s(sMT)}, 24'); a(f'v_add_u32 {v(t0)}, {s(sT0)}, {v(vLANE)}')
        a(f'v_lshlrev_b32 {v(40)}, 3, {v(t0)}')
        a(f'v_lshrrev_b32 {v(41)}, 1, {v(t0)}'); a(f'v_mul_u32_u24 {v(42)}, 3277, {v(41)}'); a(f'v_lshrrev_b32 {v(42)}, 16, {v(42)}')
        a(f'v_mul_u32_u24 {v(43)}, 20, {v(42)}'); a(f'v_sub_u32 {v(41)}, {v(41)}, {v(43)}')
        a(f'v_lshlrev_b32 {v(41)}, 4, {v(41)}'); a(f'v_and_b32 {v(43)}, 1, {v(t0)}'); a(f'v_lshl_add_u32 {v(41)}, {v(43)}, 2, {v(41)}')
        a(f'v_and_b32 {v(43)}, 1, {v(42)}'); a(f'v_lshl_add_u32 {v(41)}, {v(43)}, 3, {v(41)}')
        a(f'v_lshrrev_b32 {v(42)}, 1, {v(42)}'); a(f'v_mul_u32_u24 {v(42)}, 320, {v(42)}'); a(f'v_add_u32 {v(41)}, {v(41)}, {v(42)}')
        a(f's_mul_i32 {s(sT4)}, {s(sR2)}, {16*3072}'); a(f's_add_u32 {s(sT4)}, {s(sT4)}, {WS_KVP}')
        poll(a, t1, t2, sT5, 0xFFFF)
        stamp(a, 4)
        setexec(a, 0xFFFFFF)
        for m in range(16):
            if m and m % 2 == 0: a(f's_add_u32 {s(sT4)}, {s(sT4)}, 6144')
            a(f'buffer_load_dwordx2 {v(2*m,2)}, {v(40)}, {srd(SWS)}, {s(sT4)} offen offset:{(m & 1)*3072} sc1')
        for m in range(1, 16):
            a(f'v_add_f32 {v(0)}, {v(0)}, {v(2*m)}'); a(f'v_add_f32 {v(1)}, {v(1)}, {v(2*m+1)}')
        a(f'v_cvt_pk_bf16_f32 {v(0)}, {v(0)}, {v(1)}')
        a(f's_lshl_b32 {s(sT4)}, {s(sR2)}, 11'); a(f's_add_u32 {s(sT4)}, {s(sT4)}, {WS_KVF}')
        a(f'buffer_store_dword {v(0)}, {v(41)}, {srd(SWS)}, {s(sT4)} offen sc1', tag='kf')
        setexec(a, -1)
        a(f'v_lshlrev_b32 {v(t0)}, 8, {v(vLANE)}')
        a(f's_lshl_b32 {s(sT0)}, {s(sHG)}, 12'); a(f's_lshl_b32 {s(sT1)}, {s(sTG)}, 4'); a(f's_add_u32 {s(sT1)}, {s(sT1)}, {s(sMT)}')
        a(f's_lshl_b32 {s(sT1)}, {s(sT1)}, 2'); a(f's_add_u32 {s(sT0)}, {s(sT0)}, {s(sT1)}'); a(f's_add_u32 {s(sT4)}, {s(sT0)}, {MB_K2}')
        a.wait_vm_tag('kf')
        flag_write(a, t0, sT4, 0xFFFF, t1)
        a.label(sk); a.nop(2)
        stamp(a, 5)
        e2_poll(a)
        stamp(a, 6)
        x_loads(a)
        barrier(a)
        cs_w3(a)
        s3_addr_init(a)
    else:
        stage_addr(t1, t2, 5120, LV, LV + 4096)
        KN = 234
        for i in range(2):
            canon(ACC + 20*i, CSV, ST + 2*i, PKB, scale=ST + 2*i + 1); a(f'v_mov_b32 {v(PKB + 9)}, 0x3f80')
            for n in range(2): a(f'ds_write_b128 {v(t1)}, {v(PKB+4*n,4)} offset:{i*512 + n*16}')
            a(f'ds_write_b64 {v(t2)}, {v(PKB+8,2)} offset:{i*128}')
            a(f'v_mov_b32 {v(KN+2*i)}, {v(ST+2*i)}'); a(f'v_mul_f32 {v(KN+2*i+1)}, {hx(f2u(LOG2E))}, {v(ST+2*i+1)}')
        a.wait_vm_tag('wq'); a.wait_all(vm=False)
        stamp(a, 2)
        barrier(a)
        def qr(k):
            return [(lambda i=i, h=h: tr(a, AF + 20*(k & 1) + 4*i + 2*h, RA, LWQ + (2*k + h)*2304 + 8*i)) for i in range(5) for h in range(2)]
        run(qr(0))
        for k in range(18):
            side = qr(k + 1) if k + 1 < 18 else []
            a.wait_all(vm=False)
            for f in mf1(k):
                f()
                if side: side.pop(0)()
        F, D, EP, CQ, PB, TT = 0, 52, 92, 112, 132, 152
        phi_addr(t2); phi_frags(F, t2)
        for r in range(4): a(f'v_mov_b32 {v(160+r)}, {v(KN+r)}')
        KN = 160
        a.wait_all(vm=False)
        stamp(a, 3)
        barrier(a)
        a(f'v_and_b32 {v(t1)}, 48, {v(vLANE)}'); a(f'v_add_u32 {v(t1)}, {LCQ}, {v(t1)}')
        for i in range(5): a(f'ds_read_b128 {v(CQ+4*i,4)}, {v(t1)} offset:{64*i}')
        w3 = w3_dma_list(a)
        run(w3[:5])
        for i in range(2):
            canon(ACC + 20*i, CQ, KN + 2*i, PB + 10*i); a(f'v_mov_b32 {v(PB + 10*i + 9)}, 0')
        for i in range(2): feature(F, PB + 10*i, D + 20*i)
        PQ = 184
        interleave(a, softmax_unit(a, D, KN + 1, EP, D, PQ, TT) + softmax_unit(a, D + 20, KN + 3, EP, D + 20, PQ + 18, TT), w3[5:])
        KA = 0
        for r in range(90): a(f'v_mov_b32 {v(KA+r)}, 0')
        a(f'v_lshrrev_b32 {v(t0)}, 4, {v(vLANE)}'); a(f'v_lshlrev_b32 {v(t0)}, 11, {v(t0)}')
        a(f'v_and_b32 {v(t1)}, 3, {v(vLANE)}'); a(f'v_lshl_add_u32 {v(t0)}, {v(t1)}, 4, {v(t0)}')
        a(f's_lshl_b32 {s(sT0)}, {s(sHG)}, 4'); a(f's_add_u32 {s(sT0)}, {s(sT0)}, {s(sMT)}'); a(f's_lshl_b32 {s(sT0)}, {s(sT0)}, 8')
        a(f's_add_u32 {s(sT5)}, {s(sT0)}, {MB_K2}')
        a(f's_lshl_b32 {s(sT4)}, {s(sHG)}, 13'); a(f's_add_u32 {s(sT4)}, {s(sT4)}, {WS_KVF}')
        a.wait_vm_tag('w3')
        stamp(a, 4)
        barrier(a)
        poll(a, t1, t2, sT5, 0x7FFF7FFF7FFF7FFF)
        stamp(a, 5)
        setexec(a, DIAG)
        for i in range(5):
            for sx in range(4):
                a(f'buffer_load_dwordx4 {v(KA + 18*i + 4*sx, 4)}, {v(t0)}, {srd(SWS)}, {s(sT4)} offen offset:{sx*320 + i*64} sc1')
            a(f'buffer_load_dwordx2 {v(KA + 18*i + 16, 2)}, {v(t0)}, {srd(SWS)}, {s(sT4)} offen offset:{4*320 + i*64} sc1')
        setexec(a, -1)
        OA, OP = 92, 132
        for i in range(5):
            for sx in range(5):
                for ti in range(2):
                    d = OA + 20*ti + 4*i
                    mfma(a, d, KA + 18*i + 4*sx, PQ + 18*ti + 4*sx, None if sx == 0 else d, sx == 4)
        a(f's_lshr_b32 {s(sT0)}, {s(sMT)}, 1'); a(f's_lshl_b32 {s(sT0)}, {s(sT0)}, 3'); a(f's_add_u32 {s(sT0)}, {s(sT0)}, {s(sHG)}')
        a(f's_lshl_b32 {s(sT0)}, {s(sT0)}, 1'); a(f's_and_b32 {s(sT1)}, {s(sMT)}, 1'); a(f's_add_u32 {s(sT0)}, {s(sT0)}, {s(sT1)}')
        a(f's_lshl_b32 {s(sT0)}, {s(sT0)}, 2'); a(f's_add_u32 {s(sT0)}, {s(sT0)}, {s(sTG)}')
        a(f's_mul_i32 {s(sT4)}, {s(sT0)}, 5120'); a(f's_add_u32 {s(sT4)}, {s(sT4)}, {WS_O}'); a(f's_add_u32 {s(sT5)}, {s(sT4)}, 4096')
        a(f's_lshl_b32 {s(sR2)}, {s(sT0)}, 9'); a(f's_add_u32 {s(sR2)}, {s(sR2)}, {MB_E + 16}')
        for ti in range(2):
            dn = OA + 20*ti + 18
            a(f'v_add_f32 {v(dn)}, {hx(f2u(1e-6))}, {v(dn)}'); a(f'v_rcp_f32 {v(dn)}, {v(dn)}')
        for ti in range(2):
            b = OA + 20*ti
            for r in range(18): a(f'v_mul_f32 {v(b+r)}, {v(b+r)}, {v(b+18)}')
            run(pack(a, OP + 4*ti, b, 4)); run(pack(a, OP + 8 + 4*ti, b + 8, 4)); run(pack(a, OP + 16 + 2*ti, b + 16, 1))
            a(f'v_mov_b32 {v(OP + 17 + 2*ti)}, 0')
        for n in range(5):
            a(f'buffer_store_dwordx4 {v(OP+4*n,4)}, {v(vL16)}, {srd(SWS)}, {s(sT4 if n < 4 else sT5)} offen offset:{(n & 3)*1024} sc1', tag='os')
        e2_poll(a)
        a.wait_vm_tag('os')
        a(f'v_lshlrev_b32 {v(t0)}, 7, {v(vLANE)}')
        flag_write(a, t0, sR2, 0xF, t1)
        stamp(a, 6)
        x_loads(a)
        s3_addr_init(a)

def build():
    global OOL
    OOL.clear()
    ref = open('cdna_kernels/' + NAME[:-7] + '.s.ref').read().split('\n')
    head = [l for l in ref if l.startswith(';') and '@launch' not in l]
    out = head + ['; @launch grid=(256,1,1) block=(512,1,1) lds=163840',
                  '.amdgcn_target "amdgcn-amd-amdhsa--gfx950"', '.text', f'.globl {NAME}', '.p2align 8', f'.type {NAME},@function', f'{NAME}:']
    a = Asm()
    a('s_cmp_ge_u32 s2, 256'); a('s_cbranch_scc0 L_go'); a('s_endpgm'); a.label('L_go')
    if cfg.probe == 'fix': a('s_memrealtime s[96:97]')
    for b, (off, sz) in KARG.items(): a(f's_load_dwordx2 {s(b,2)}, s[0:1], {off}')
    a(f'v_lshrrev_b32 v1, 6, v0'); a(f'v_and_b32 {v(vLANE)}, 63, v0')
    a(f'v_readfirstlane_b32 {s(sW)}, v1')
    a(f'v_lshlrev_b32 {v(vL16)}, 4, {v(vLANE)}')
    for b, (off, sz) in KARG.items():
        a(f's_mov_b32 {s(b+2)}, {sz}'); a(f's_mov_b32 {s(b+3)}, 0x20000')
    if cfg.stamps:
        for i in range(24): a(f's_mov_b32 {s(sSTAMP+i)}, 0')
        stamp(a, 16)
    a(f's_and_b32 {s(sTG)}, {s(sW)}, 3')
    a(f's_and_b32 {s(sXC)}, s2, 7'); a(f's_lshr_b32 {s(sIDX)}, s2, 3')
    a(f's_and_b32 {s(sT0)}, {s(sXC)}, 1'); a(f's_lshl_b32 {s(sT0)}, {s(sT0)}, 2'); a(f's_lshr_b32 {s(sT1)}, {s(sIDX)}, 3'); a(f's_add_u32 {s(sMI)}, {s(sT0)}, {s(sT1)}')
    a(f's_and_b32 {s(sT0)}, {s(sXC)}, 6'); a(f's_bfe_u32 {s(sT1)}, {s(sIDX)}, 0x10002'); a(f's_add_u32 {s(sJ)}, {s(sT0)}, {s(sT1)}')
    a(f's_and_b32 {s(sC)}, {s(sIDX)}, 3')
    a(f's_cmp_ge_u32 {s(sIDX)}, 16'); a('s_cbranch_scc1 L_A')
    a(f's_cmp_ge_u32 {s(sW)}, 4'); a('s_cbranch_scc1 L_BY')
    streams = [a]
    bo = Asm(); front_B(bo, False); bo('s_branch L_SO'); streams.append(bo)
    by = Asm(); by.label('L_BY'); front_B(by, True); by('s_branch L_SY'); streams.append(by)
    ah = Asm(); ah.label('L_A'); ah(f's_cmp_ge_u32 {s(sW)}, 4'); ah('s_cbranch_scc1 L_AY'); streams.append(ah)
    ao = Asm(); front_A(ao, False); streams.append(ao)
    d = Asm(); x_loads(d)
    so = Asm(); so.label('L_SO'); so.vmq = list(d.vmq); s34(so, False); streams.append(so)
    ay = Asm(); ay.label('L_AY'); front_A(ay, True); streams.append(ay)
    sy = Asm(); sy.label('L_SY'); sy.vmq = list(d.vmq); s34(sy, True); streams.append(sy)
    streams += OOL
    for st in streams: out += st.out
    out += ['.section .rodata,"a"', '.p2align 6', f'.amdhsa_kernel {NAME}', '  .amdhsa_next_free_vgpr 256', '  .amdhsa_next_free_sgpr 102',
            '  .amdhsa_accum_offset 256', '  .amdhsa_group_segment_fixed_size 0', '  .amdhsa_kernarg_size 96', '  .amdhsa_user_sgpr_count 2',
            '  .amdhsa_user_sgpr_kernarg_segment_ptr 1', '  .amdhsa_system_sgpr_workgroup_id_x 1', '.end_amdhsa_kernel']
    for nm, st in (('BO', bo), ('BY', by), ('AO', ao), ('AY', ay), ('SO', so), ('SY', sy)):
        print(nm, len(st.out), st.count, file=sys.stderr)
    return '\n'.join(out) + '\n'

if __name__ == '__main__':
    import argparse
    ap = argparse.ArgumentParser()
    ap.add_argument('-o', default='k.s'); ap.add_argument('--stamps', default=''); ap.add_argument('--no-a', action='store_true'); ap.add_argument('--wsbase', type=int, default=0); ap.add_argument('--probe', default='')
    args = ap.parse_args()
    cfg.stamps = args.stamps; cfg.no_a = args.no_a; cfg.probe = args.probe; cfg.wsbase = args.wsbase << 20
    open(args.o, 'w').write(build())
```
